```python
import torch

def _softmax(x, axis=-1):
    return torch.softmax(x, dim=axis)
def _gelu(x):
    return torch.nn.functional.gelu(x, approximate="tanh")
def _silu(x):
    return torch.nn.functional.silu(x)
def _sigmoid(x):
    return torch.sigmoid(x)
def _layernorm(x, axis=-1, eps=1e-5):
    m = x.mean(dim=axis, keepdim=True)
    v = x.var(dim=axis, keepdim=True, unbiased=False)
    return (x - m) / torch.sqrt(v + eps)
def _scatter_add(tgt, idx, src, axis=0):
    return tgt.clone().index_add_(axis, idx, src)
def _segment_sum(src, seg, n):
    out = torch.zeros((n,) + src.shape[1:], dtype=src.dtype)
    return out.index_add_(0, seg, src)
def _pad(x, pw):
    flat = tuple(v for pair in reversed(pw) for v in pair)
    return torch.nn.functional.pad(x, flat)

kernel_name = 'recurrent_scan__ssm_conv_s4__glu_gated_glu__prompt'

def setup_inputs():

    _w = (lambda a: (lambda t: t.to(torch.bfloat16) if t.is_floating_point() else t)(torch.as_tensor(a)))
    def _A_setup():
        B, L, D, N = 1, 2048, 512, 128
        A_re = -(lambda _x: torch.exp(torch.as_tensor(_x)))((lambda *s: torch.randn(*s, dtype=torch.bfloat16) * 6.4)(D, N))
        A_im = torch.pi * (lambda *s: torch.randn(*s, dtype=torch.bfloat16) * 0.05)(D, N)
        B_re = (lambda *s: torch.randn(*s, dtype=torch.bfloat16) * 0.05)(D, N)
        B_im = (lambda *s: torch.randn(*s, dtype=torch.bfloat16) * 0.05)(D, N)
        C_re = (lambda *s: torch.randn(*s, dtype=torch.bfloat16) * 0.05)(D, N)
        C_im = (lambda *s: torch.randn(*s, dtype=torch.bfloat16) * 0.05)(D, N)
        log_dt = (lambda *s: torch.randn(*s, dtype=torch.bfloat16) * 0.05)(D) * 0.5 - 4.0
        Dskip = (lambda *s: torch.randn(*s, dtype=torch.bfloat16) * 0.05)(D)
        return {
            "u": _w((lambda *s: torch.randn(*s, dtype=torch.bfloat16) * 0.05)(B, L, D)),
            "A_re": _w(A_re),
            "A_im": _w(A_im),
            "B_re": _w(B_re),
            "B_im": _w(B_im),
            "C_re": _w(C_re),
            "C_im": _w(C_im),
            "log_dt": _w(log_dt),
            "Dskip": _w(Dskip),
        }
    _A_in = _A_setup()

    def _B_setup():
        B, S, D, F = 1, 2048, 512, 1792
        return {
            "x": _w((lambda *s: torch.randn(*s, dtype=torch.bfloat16) * 0.05)(B, S, D)),
            "w_gate": _w((lambda *s: torch.randn(*s, dtype=torch.bfloat16) * 0.05)(D, F)),
            "w_up": _w((lambda *s: torch.randn(*s, dtype=torch.bfloat16) * 0.05)(D, F)),
            "w_down": _w((lambda *s: torch.randn(*s, dtype=torch.bfloat16) * 0.05)(F, D)),
        }
    _B_in = _B_setup()

    return {
        "A_u": _A_in["u"],
        "A_A_re": _A_in["A_re"],
        "A_A_im": _A_in["A_im"],
        "A_B_re": _A_in["B_re"],
        "A_B_im": _A_in["B_im"],
        "A_C_re": _A_in["C_re"],
        "A_C_im": _A_in["C_im"],
        "A_log_dt": _A_in["log_dt"],
        "A_Dskip": _A_in["Dskip"],
        "B_x": _B_in["x"],
        "B_w_gate": _B_in["w_gate"],
        "B_w_up": _B_in["w_up"],
        "B_w_down": _B_in["w_down"],
    }

def reference(A_u, A_A_re, A_A_im, A_B_re, A_B_im, A_C_re, A_C_im, A_log_dt, A_Dskip, B_x, B_w_gate, B_w_up, B_w_down):
    def _A_ref(u, A_re, A_im, B_re, B_im, C_re, C_im, log_dt, Dskip):
        Bsz, L, D = u.shape
        dt = torch.exp(log_dt)[:, None]
        A = A_re + 1j * A_im
        Bc = B_re + 1j * B_im
        Cc = C_re + 1j * C_im
        logdA = dt * A
        dB = dt * Bc
        l = (lambda x, dt: x.to(dt))(torch.arange(L), A_re.dtype)
        P = torch.exp(logdA[:, :, None] * l[None, None, :])
        K = torch.einsum("dn,dnl,dn->dl", Cc, P, dB).real
        L2 = 2 * L
        Kp = _pad(K, ((0, 0), (0, L)))
        up = (lambda x, *d: x.permute(*d))(u, 0, 2, 1)
        up = _pad(up, ((0, 0), (0, 0), (0, L)))
        Kf = (lambda x, axes=(-2,-1): torch.fft.rfft2(x.float(), dim=axes))(Kp[:, None, :], axes=(-2, -1))
        Uf = (lambda x, axes=(-2,-1): torch.fft.rfft2(x.float(), dim=axes))(up[:, :, None, :], axes=(-2, -1))
        Yf = Uf * Kf[None, :, :, :]
        y = (lambda x, s, axes=(-2,-1): torch.fft.irfft2(x, s=s, dim=axes).to(torch.bfloat16))(Yf, (1, L2), axes=(-2, -1))[:, :, 0, :L]
        y = (lambda x, *d: x.permute(*d))(y, 0, 2, 1) + u * Dskip[None, None, :]
        return y

    def _B_ref(x, w_gate, w_up, w_down):
        g = torch.einsum("bsd,df->bsf", x, w_gate)
        u = torch.einsum("bsd,df->bsf", x, w_up)
        h = _sigmoid(g) * u
        return torch.einsum("bsf,fd->bsd", h, w_down)

    x = A_u
    xn = _layernorm(x, axis=-1)
    s = _A_ref(xn, A_A_re, A_A_im, A_B_re, A_B_im, A_C_re, A_C_im, A_log_dt, A_Dskip)
    g = _silu(_B_ref(xn, B_w_gate, B_w_up, B_w_down))
    return x + s * g
```

```python
import re

TRANS = ("v_exp_f32", "v_log_f32", "v_rcp_f32", "v_rsq_f32", "v_sqrt_f32", "v_sin_f32", "v_cos_f32",
         "v_rcp_iflag_f32", "v_exp_f16", "v_rcp_f16")

_reg_re = re.compile(r"\b([vas])(\d+)\b|\b([vas])\[(\d+):(\d+)\]|\b(vcc|exec|m0|scc)\b")


def regs_of(op):
    out = []
    for m in _reg_re.finditer(op):
        if m.group(1):
            out.append((m.group(1), int(m.group(2))))
        elif m.group(3):
            for i in range(int(m.group(4)), int(m.group(5)) + 1):
                out.append((m.group(3), i))
        else:
            out.append((m.group(6), 0))
    return out


def split_ops(s):
    ops, depth, cur = [], 0, ""
    for ch in s:
        if ch == "[":
            depth += 1
        if ch == "]":
            depth -= 1
        if ch == "," and depth == 0:
            ops.append(cur.strip())
            cur = ""
        else:
            cur += ch
    if cur.strip():
        ops.append(cur.strip())
    return ops


class Ins:
    __slots__ = ("text", "mn", "ops", "kind", "wr", "rd", "mods")

    def __init__(self, text):
        self.text = text
        t = text.strip()
        parts = t.split(None, 1)
        self.mn = parts[0]
        rest = parts[1] if len(parts) > 1 else ""
        ops = split_ops(rest)
        self.mods = ""
        if ops:
            last = ops[-1].split(None, 1)
            if len(last) > 1:
                ops[-1] = last[0]
                self.mods = last[1]
        self.ops = ops
        mn = self.mn
        self.wr, self.rd = [], []
        R = lambda i: regs_of(ops[i]) if i < len(ops) else []
        allr = lambda a: [r for i in range(a, len(ops)) for r in regs_of(ops[i])]
        if mn.startswith("v_mfma"):
            self.kind = "mfma"
            self.wr = R(0)
            self.rd = allr(1)
        elif mn.startswith("v_"):
            self.kind = "valu"
            if mn.startswith("v_cmp"):
                self.wr = R(0)
                self.rd = allr(1)
                if mn.startswith("v_cmpx"):
                    self.wr += [("exec", 0)]
            elif mn.startswith(("v_add_co", "v_sub_co", "v_addc_co", "v_subb_co", "v_mad_u64")):
                self.wr = R(0) + R(1)
                self.rd = allr(2)
            elif mn.startswith(("v_permlane16_swap", "v_permlane32_swap", "v_swap")):
                self.wr = R(0) + R(1)
                self.rd = R(0) + R(1)
            elif mn.startswith(("v_fmac", "v_pk_fmac", "v_dot2c", "v_writelane")):
                self.wr = R(0)
                self.rd = allr(0)
            else:
                self.wr = R(0)
                self.rd = allr(1)
                if mn.startswith("v_cndmask") and len(ops) == 3:
                    self.rd += [("vcc", 0)]
            if "sdwa" in mn or "dst_sel" in self.mods or mn.endswith("d16_hi"):
                self.rd += R(0)
        elif mn.startswith("ds_"):
            self.kind = "ds"
            if mn.startswith(("ds_read", "ds_bpermute", "ds_permute", "ds_swizzle")) or "_rtn" in mn:
                self.wr = R(0)
                self.rd = allr(1)
            else:
                self.rd = allr(0)
        elif mn.startswith(("buffer_", "global_")):
            self.kind = "vmem"
            if "load" in mn and " lds" not in (" " + self.mods) and "load_lds" not in mn:
                self.wr = R(0)
                self.rd = allr(1)
                if "d16" in mn:
                    self.rd += R(0)
            else:
                self.rd = allr(0)
                if " lds" in (" " + self.mods) or "load_lds" in mn:
                    self.rd += [("m0", 0)]
        elif mn.startswith("s_"):
            self.kind = "salu"
            if mn.startswith(("s_cmp", "s_cbranch", "s_branch", "s_waitcnt", "s_barrier", "s_nop", "s_endpgm",
                              "s_sleep", "s_setprio", "s_bitcmp")):
                self.rd = allr(0)
            else:
                self.wr = R(0)
                self.rd = allr(1)
                if "saveexec" in mn:
                    self.wr += [("exec", 0)]
        else:
            self.kind = "other"


class Asm:
    def __init__(self):
        self.items = []
        self.uid = 0

    def __call__(self, text):
        for ln in text.strip("\n").split("\n"):
            s = ln.split(";")[0].strip()
            if not s:
                continue
            if s.endswith(":") or s.startswith("."):
                self.items.append(s)
            else:
                self.items.append(Ins(s))

    def label(self, name):
        self.items.append(name + ":")

    def newlabel(self, base="L"):
        self.uid += 1
        return f"{base}_{self.uid}"

    def comment(self, c):
        self.items.append("; " + c)

    def finalize(self):
        out = []
        last_valu_wr = {}
        last_trans_wr = {}
        last_mfma_wr = {}
        last_mfma_c = {}
        last_valu_sgpr = {}
        last_store_data = {}
        last_salu_m0 = -100
        last_valu_exec = -100
        pos = 0

        def need(p, n):
            return max(0, p + n + 1 - pos)

        for it in self.items:
            if isinstance(it, str):
                out.append(it)
                continue
            ins = it
            k = ins.kind
            pad = 0
            vr = [r for r in ins.rd if r[0] in "va"]
            vw = [r for r in ins.wr if r[0] in "va"]
            sr = [r for r in ins.rd if r[0] in ("s", "vcc")]
            if k == "mfma":
                passes = 8 if "32x32" in ins.mn else 4
                c_regs = regs_of(ins.ops[3])
                ab_regs = regs_of(ins.ops[1]) + regs_of(ins.ops[2])
                d_regs = regs_of(ins.ops[0])
                for r in vr:
                    if r in last_valu_wr:
                        pad = max(pad, need(last_valu_wr[r], 2))
                for r in ab_regs:
                    if r in last_mfma_wr:
                        p, ps = last_mfma_wr[r]
                        pad = max(pad, need(p, {4: 8, 8: 12}[ps]))
                for r in c_regs:
                    if r in last_mfma_wr:
                        p, ps, = last_mfma_wr[r][:2]
                        if not (c_regs == d_regs and self_same.get(r) == tuple(c_regs)):
                            pad = max(pad, need(p, {4: 6, 8: 10}[ps]))
                pad = max(pad, need(last_valu_exec, 4))
            elif k == "valu":
                istrans = ins.mn.startswith(TRANS)
                for r in vr:
                    if r in last_trans_wr and not istrans:
                        pad = max(pad, need(last_trans_wr[r], 1))
                    if r in last_trans_wr and istrans:
                        pad = max(pad, need(last_trans_wr[r], 1))
                    if r in last_mfma_wr:
                        p, ps = last_mfma_wr[r]
                        pad = max(pad, need(p, {4: 8, 8: 12}[ps]))
                for r in vw:
                    if r in last_mfma_wr:
                        p, ps = last_mfma_wr[r]
                        pad = max(pad, need(p, {4: 8, 8: 12}[ps]))
                    if r in last_mfma_c:
                        p, ps = last_mfma_c[r]
                        pad = max(pad, need(p, {4: 3, 8: 7}[ps]))
                    if r in last_store_data:
                        pad = max(pad, need(last_store_data[r], 2))
                isdpp = ("dpp" in ins.mn) or ("quad_perm" in ins.mods) or ("row_" in ins.mods)
                if isdpp:
                    for r in vr:
                        if r in last_valu_wr:
                            pad = max(pad, need(last_valu_wr[r], 2))
                    pad = max(pad, need(last_valu_exec, 5))
                if ins.mn.startswith("v_permlane"):
                    for r in vr:
                        if r in last_valu_wr:
                            pad = max(pad, need(last_valu_wr[r], 2))
                    pad = max(pad, need(last_valu_exec, 4))
                if ins.mn.startswith(("v_readlane", "v_readfirstlane")):
                    for r in vr:
                        if r in last_valu_wr:
                            pad = max(pad, need(last_valu_wr[r], 1))
                    pad = max(pad, need(last_valu_exec, 4))
                if ins.mn.startswith(("v_readlane", "v_writelane")):
                    for r in sr:
                        if r in last_valu_sgpr:
                            pad = max(pad, need(last_valu_sgpr[r], 4))
                for r in sr:
                    if r in last_valu_sgpr:
                        pad = max(pad, need(last_valu_sgpr[r], 2))
                for r in vr:
                    if r in last_sdwa_wr:
                        pad = max(pad, need(last_sdwa_wr[r], 1))
            elif k in ("vmem", "ds"):
                for r in vr + vw:
                    if r in last_mfma_wr:
                        p, ps = last_mfma_wr[r]
                        pad = max(pad, need(p, {4: 8, 8: 12}[ps]))
                for r in sr:
                    if r in last_valu_sgpr:
                        pad = max(pad, need(last_valu_sgpr[r], 5))
                if ("m0", 0) in ins.rd:
                    pad = max(pad, need(last_salu_m0, 1))
                for r in vw:
                    if r in last_store_data:
                        pad = max(pad, need(last_store_data[r], 1))
            elif k == "salu":
                for r in sr:
                    if r in last_valu_sgpr:
                        pad = max(pad, need(last_valu_sgpr[r], 3))
                if ins.mn.startswith("s_cbranch_vcc") and ("vcc", 0) in last_valu_sgpr:
                    pad = max(pad, need(last_valu_sgpr[("vcc", 0)], 5))
                if ins.mn.startswith("s_cbranch_exec"):
                    pad = max(pad, need(last_valu_exec, 5))
            while pad > 0:
                n = min(pad, 16)
                out.append(Ins(f"s_nop {n - 1}"))
                pos += n
                pad -= n
            out.append(ins)
            if k == "mfma":
                passes = 8 if "32x32" in ins.mn else 4
                d_regs = regs_of(ins.ops[0])
                for r in d_regs:
                    last_mfma_wr[r] = (pos, passes)
                    self_same[r] = tuple(d_regs)
                    last_valu_wr.pop(r, None)
                for r in regs_of(ins.ops[3]):
                    last_mfma_c[r] = (pos, passes)
            elif k == "valu":
                for r in ins.wr:
                    if r[0] in "va":
                        last_valu_wr[r] = pos
                        last_mfma_wr.pop(r, None)
                        if ins.mn.startswith(TRANS):
                            last_trans_wr[r] = pos
                        else:
                            last_trans_wr.pop(r, None)
                        if "sdwa" in ins.mn or "op_sel" in ins.mods and not ins.mn.startswith("v_pk_"):
                            last_sdwa_wr[r] = pos
                        else:
                            last_sdwa_wr.pop(r, None)
                    elif r[0] in ("s", "vcc"):
                        last_valu_sgpr[r] = pos
                    elif r[0] == "exec":
                        last_valu_exec = pos
            elif k == "vmem":
                if "store" in ins.mn and ("x4" in ins.mn or "x3" in ins.mn):
                    for r in regs_of(ins.ops[0 if ins.mn.startswith("buffer") else 1]):
                        last_store_data[r] = pos
                for r in ins.wr:
                    last_mfma_wr.pop(r, None)
                    last_valu_wr.pop(r, None)
                    last_trans_wr.pop(r, None)
            elif k == "ds":
                for r in ins.wr:
                    last_mfma_wr.pop(r, None)
                    last_valu_wr.pop(r, None)
                    last_trans_wr.pop(r, None)
            elif k == "salu":
                for r in ins.wr:
                    if r == ("m0", 0):
                        last_salu_m0 = pos
                    last_valu_sgpr.pop(r, None)
            if ins.mn == "s_nop":
                pos += int(ins.ops[0]) + 1
            else:
                pos += 1
        self.items = out

    def text(self):
        lines = []
        for it in self.items:
            if isinstance(it, str):
                lines.append(it if it.endswith(":") or it.startswith(".") else "    " + it)
            else:
                lines.append("    " + it.text)
        return "\n".join(lines) + "\n"


self_same = {}
last_sdwa_wr = {}
```

```python
from gen import *


class VM:
    def __init__(self):
        self.ops = []

    def issue(self, tag, n=1):
        self.ops += [tag] * n

    def wait(self, a, tag):
        idx = max(i for i, t in enumerate(self.ops) if t == tag)
        n = len(self.ops) - 1 - idx
        a(f"s_waitcnt vmcnt({min(n, 63)})")


def gemm1_setup(a):
    a(f"""
    s_and_b32 s76, s2, 7                 ; xcd
    s_lshr_b32 s77, s2, 3                ; idx
    s_and_b32 s78, s76, 1
    s_lshl_b32 s78, s78, 3
    s_and_b32 s79, s77, 7
    s_add_u32 s4, s78, s79               ; mt
    s_lshr_b32 s78, s76, 1
    s_lshl_b32 s78, s78, 2
    s_lshr_b32 s79, s77, 3
    s_add_u32 s5, s78, s79               ; nt
    s_mul_i32 s6, s5, 224
    s_mul_i32 s7, s3, 896
    ; k_hi = (i&4) | ((i&1)<<1) | ((i>>1)&1)
    s_and_b32 s78, s3, 4
    s_and_b32 s79, s3, 1
    s_lshl_b32 s79, s79, 1
    s_or_b32 s78, s78, s79
    s_lshr_b32 s79, s3, 1
    s_and_b32 s79, s79, 1
    s_or_b32 s78, s78, s79
    s_lshl_b32 s78, s78, 2               ; 4*k_hi
    v_mul_u32_u24 v30, 147, v1
    v_lshrrev_b32 v30, 11, v30           ; L/14
    v_mul_u32_u24 v31, 14, v30
    v_sub_u32 v31, v1, v31               ; c
    v_add_u32 v30, s78, v30              ; k
    v_mul_u32_u24 v30, 3584, v30
    v_lshl_add_u32 v30, v31, 4, v30
    """)


def dma_block(a, b):
    slot = (b % 3) * SLOT
    a("s_mov_b32 exec_hi, 0x00ffffff")
    for hf in range(2):
        for img in range(2):
            q = SRD_WG if img == 0 else SRD_WU
            a(f"""
            s_add_u32 s76, s6, {(64*b + 32*hf) * 3584}
            s_add_u32 m0, s7, {slot + hf*14336 + img*7168}
            buffer_load_dwordx4 v30, s[{q}:{q+3}], s76 offen lds
            """)
    a("s_mov_b32 exec_hi, -1")
    return 4


def gemm1_prefetch(a, nblk):
    gemm1_setup(a)
    n = 0
    for b in range(nblk):
        n += dma_block(a, b)
    return n


XF = 64
ACC1 = 192
WF = 32


def gemm1(a, wait, vm=None, signal=None):
    if vm is None:
        vm = VM()
        vm.issue("D0", 4)
        vm.issue("D1", 4)
    if wait:
        wait(a)
    a(f"""
    s_and_b32 s77, s3, 3                 ; tg
    s_lshl_b32 s78, s4, 7
    s_lshl_b32 s79, s77, 5
    s_add_u32 s78, s78, s79
    s_lshl_b32 s78, s78, 10
    s_add_u32 s78, s78, {XN_OFF}
    s_add_u32 s79, s78, 16384
    v_lshlrev_b32 v28, 10, v2
    v_lshl_add_u32 v28, v3, 4, v28
    """)
    for s in range(16):
        for tt in range(2):
            r = XF + (tt * 16 + s) * 4
            a(f"buffer_load_dwordx4 v[{r}:{r+3}], v28, s[{SRD_WS}:{SRD_WS+3}], s{78+tt} offen offset:{64*s} sc1")
            vm.issue(f"X{s}")
    a(f"""
    v_lshrrev_b32 v24, 1, v3             ; kg>>1
    v_lshlrev_b32 v24, 4, v24
    v_and_b32 v25, 1, v3
    v_lshl_add_u32 v24, v25, 2, v24
    v_lshrrev_b32 v25, 2, v2             ; r
    v_add_u32 v24, v24, v25
    v_mul_u32_u24 v24, 224, v24
    v_and_b32 v25, 3, v2
    v_lshl_add_u32 v24, v25, 3, v24      ; slot0
    v_add_u32 v25, {SLOT}, v24
    v_add_u32 v26, {2*SLOT}, v24
    s_cmp_ge_u32 s3, 4
    s_cbranch_scc1 Lg1_part1
    """)
    import copy
    vms = [vm, copy.deepcopy(vm)]
    for part in range(2):
        vm = vms[part]
        tiles = list(range(4)) if part == 0 else list(range(4, 7))
        def acc(img, jj, tt):
            r = ACC1 + ((img * 4 + jj) * 2 + tt) * 4
            return f"v[{r}:{r+3}]"
        for b in range(8):
            vm.wait(a, f"D{b}")
            a("s_barrier")
            if b + 2 < 8:
                vm.issue(f"D{b+2}", dma_block(a, b + 2))
            va = 24 + (b % 3)
            frs = [(hf, jj, img) for hf in range(2) for jj in range(len(tiles)) for img in range(2)]
            def rd(i):
                hf, jj, img = frs[i]
                w = WF + (i % 8) * 4
                off = hf * 14336 + img * 7168 + 32 * tiles[jj]
                a(f"ds_read_b64_tr_b16 v[{w}:{w+1}], v{va} offset:{off}")
                a(f"ds_read_b64_tr_b16 v[{w+2}:{w+3}], v{va} offset:{off+1792}")
            PD = 3
            for i in range(PD):
                rd(i)
            for i, (hf, jj, img) in enumerate(frs):
                s = 2 * b + hf
                if jj == 0 and img == 0:
                    vm.wait(a, f"X{s}")
                out = min(PD - 1, len(frs) - 1 - i)
                a(f"s_waitcnt lgkmcnt({2*out})")
                w = WF + (i % 8) * 4
                for tt in range(2):
                    xr = XF + (tt * 16 + s) * 4
                    cc = "0" if s == 0 else acc(img, jj, tt)
                    a(f"v_mfma_f32_16x16x32_bf16 {acc(img, jj, tt)}, v[{w}:{w+3}], v[{xr}:{xr+3}], {cc}")
                if i + PD < len(frs):
                    rd(i + PD)
        a(f"""
        v_lshlrev_b32 v5, 4, v1
        s_and_b32 s77, s3, 3
        s_lshl_b32 s78, s4, 3
        s_lshl_b32 s79, s77, 1
        s_add_u32 s78, s78, s79
        s_mul_i32 s78, s78, {56*1024}
        s_add_u32 s78, s78, {H_OFF}
        s_mul_i32 s79, s5, 7                 ; tau0
        s_mov_b32 s82, {NLOG2E}
        """)
        for jj, j in enumerate(tiles):
            a(f"""
            s_add_u32 s80, s79, {j}
            s_lshr_b32 s81, s80, 1
            s_lshl_b32 s81, s81, 10
            s_and_b32 s80, s80, 1
            s_lshl_b32 s80, s80, 3
            s_add_u32 s80, s80, s81
            s_add_u32 s80, s80, s78
            s_add_u32 s81, s80, {56*1024}
            """)
            for tt in range(2):
                g = ACC1 + ((0 * 4 + jj) * 2 + tt) * 4
                u = ACC1 + ((1 * 4 + jj) * 2 + tt) * 4
                o = 8 + 2 * ((jj * 2 + tt) % 8)
                for pr in range(2):
                    g0, g1, u0, u1 = g + 2 * pr, g + 2 * pr + 1, u + 2 * pr, u + 2 * pr + 1
                    a(f"""
                    v_cvt_pk_bf16_f32 v32, v{g0}, v{g1}
                    v_cvt_pk_bf16_f32 v33, v{u0}, v{u1}
                    v_lshlrev_b32 v34, 16, v32
                    v_and_b32 v35, 0xffff0000, v32
                    v_mul_f32 v34, s82, v34
                    v_mul_f32 v35, s82, v35
                    v_exp_f32 v34, v34
                    v_exp_f32 v35, v35
                    v_lshlrev_b32 v36, 16, v33
                    v_and_b32 v37, 0xffff0000, v33
                    v_add_f32 v34, 1.0, v34
                    v_add_f32 v35, 1.0, v35
                    v_rcp_f32 v34, v34
                    v_rcp_f32 v35, v35
                    s_nop 0
                    v_cvt_pk_bf16_f32 v32, v34, v35
                    v_lshlrev_b32 v34, 16, v32
                    v_and_b32 v35, 0xffff0000, v32
                    v_mul_f32 v34, v34, v36
                    v_mul_f32 v35, v35, v37
                    v_cvt_pk_bf16_f32 v{o+pr}, v34, v35
                    """)
                a(f"buffer_store_dwordx2 v[{o}:{o+1}], v5, s[{SRD_WS}:{SRD_WS+3}], s{80+tt} offen sc1")
        if part == 0:
            a("s_branch Lg1_done\nLg1_part1:")
    a("Lg1_done:")
    if signal:
        signal(a)


def gemm2_map(a):
    a(f"""
    s_and_b32 s76, s2, 7
    s_lshr_b32 s77, s2, 3
    s_lshl_b32 s76, s76, 2
    s_and_b32 s78, s77, 3
    s_add_u32 s4, s76, s78               ; tt
    s_lshr_b32 s5, s77, 2                ; dd
    """)


def gemm2_main(a):
    a(f"""
    v_lshlrev_b32 v5, 4, v1
    s_mul_i32 s76, s3, 14                ; J0
    s_lshl_b32 s77, s4, 2                ; T0 = 4tt
    s_mul_i32 s77, s77, 56
    s_add_u32 s77, s77, s76
    s_lshl_b32 s77, s77, 10
    s_add_u32 s80, s77, {H_OFF}
    s_add_u32 s81, s80, {56*1024}
    s_add_u32 s82, s80, {2*56*1024}
    s_add_u32 s83, s80, {3*56*1024}
    s_lshl_b32 s77, s76, 5
    s_lshl_b32 s78, s5, 2
    s_add_u32 s77, s77, s78
    s_lshl_b32 s77, s77, 10
    s_add_u32 s84, s77, {WDT_OFF}
    """)
    ACC = 32
    ST3 = [96, 128, 160, 192]
    NS = 4
    def issue(jj):
        fb = ST3[jj % NS]
        for b in range(4):
            a(f"buffer_load_dwordx4 v[{fb+4*b}:{fb+4*b+3}], v5, s[{SRD_WS}:{SRD_WS+3}], s{80+b} offen sc1")
        for aa in range(4):
            a(f"buffer_load_dwordx4 v[{fb+16+4*aa}:{fb+16+4*aa+3}], v5, s[{SRD_WS}:{SRD_WS+3}], s84 offen offset:{1024*aa} sc1")
        a(f"""
        s_add_u32 s80, s80, 1024
        s_add_u32 s81, s81, 1024
        s_add_u32 s82, s82, 1024
        s_add_u32 s83, s83, 1024
        s_add_u32 s84, s84, 32768
        """)
    for jj in range(NS - 1):
        issue(jj)
    for jj in range(14):
        if jj + NS - 1 < 14:
            issue(jj + NS - 1)
        outstanding = min(NS - 1, 13 - jj)
        a(f"s_waitcnt vmcnt({8*outstanding})")
        fb = ST3[jj % NS]
        for aa in range(4):
            for b in range(4):
                r = ACC + (aa * 4 + b) * 4
                cc = "0" if jj == 0 else f"v[{r}:{r+3}]"
                a(f"v_mfma_f32_16x16x32_bf16 v[{r}:{r+3}], v[{fb+16+4*aa}:{fb+16+4*aa+3}], v[{fb+4*b}:{fb+4*b+3}], {cc}")
    a(f"""
    s_lshl_b32 s76, s3, 14
    s_add_u32 s76, s76, {G2P}
    v_add_u32 v6, s76, v5
    """)
    for i in range(16):
        a(f"ds_write_b128 v6, v[{ACC+4*i}:{ACC+4*i+3}] offset:{1024*i}")
    a("s_waitcnt lgkmcnt(0)")


def final(a, waitC=None):
    a(f"""
    s_lshr_b32 s76, s3, 1                ; aa
    s_lshl_b32 s77, s3, 1
    s_and_b32 s77, s77, 3                ; b0
    s_lshl_b32 s78, s4, 6
    s_lshl_b32 s79, s77, 4
    s_add_u32 s78, s78, s79
    s_lshl_b32 s78, s78, 10
    s_lshl_b32 s79, s5, 7                ; 64dd*2
    s_add_u32 s78, s78, s79
    s_lshl_b32 s79, s76, 5               ; 16aa*2
    s_add_u32 s78, s78, s79
    s_add_u32 s79, s78, 16384            ; b0+1
    v_lshlrev_b32 v7, 10, v2
    v_lshl_add_u32 v7, v3, 3, v7         ; t*1024 + 4q*2
    buffer_load_dwordx2 v[10:11], v7, s[{SRD_X}:{SRD_X+3}], s78 offen
    buffer_load_dwordx2 v[12:13], v7, s[{SRD_X}:{SRD_X+3}], s79 offen
    """)
    if waitC:
        waitC(a)
    a(f"""
    v_lshrrev_b32 v8, 4, v0              ; d local 0..31
    v_and_b32 v9, 15, v0                 ; piece
    v_lshlrev_b32 v14, 12, v8
    v_lshl_add_u32 v14, v9, 3, v14
    s_lshl_b32 s80, s5, 18               ; 64dd*4096
    s_lshl_b32 s81, s4, 7                ; 64tt*2
    s_add_u32 s80, s80, s81
    s_add_u32 s80, s80, {S_OFF}
    s_add_u32 s81, s80, {32*4096}
    buffer_load_dwordx2 v[16:17], v14, s[{SRD_WS}:{SRD_WS+3}], s80 offen sc1
    buffer_load_dwordx2 v[18:19], v14, s[{SRD_WS}:{SRD_WS+3}], s81 offen sc1
    v_mul_u32_u24 v15, {SROW}, v8
    v_lshl_add_u32 v15, v9, 3, v15
    v_add_u32 v15, {STILE}, v15
    s_waitcnt vmcnt(0)
    ds_write_b64 v15, v[16:17]
    ds_write_b64 v15, v[18:19] offset:{32*SROW}
    s_waitcnt lgkmcnt(0)
    s_barrier
    s_lshl_b32 s80, s3, 11
    s_add_u32 s80, s80, {G2P}
    v_lshl_add_u32 v20, v1, 4, s80
    """)
    for i in range(2):
        for kq in range(4):
            r = 32 + (i * 4 + kq) * 4
            a(f"ds_read_b128 v[{r}:{r+3}], v20 offset:{kq*16384 + i*1024}")
    a(f"""
    v_lshlrev_b32 v21, 2, v3
    s_lshl_b32 s80, s76, 4
    v_add_u32 v21, s80, v21
    v_mul_u32_u24 v21, {SROW}, v21
    v_lshl_add_u32 v21, v2, 1, v21
    s_lshl_b32 s80, s77, 5
    s_add_u32 s80, s80, {STILE}
    v_add_u32 v21, s80, v21
    """)
    for i in range(2):
        for e in range(4):
            a(f"ds_read_u16 v{64+4*i+e}, v21 offset:{e*SROW + 32*i}")
    a(f"s_mov_b32 s82, {NLOG2E}\n s_waitcnt lgkmcnt(0)")
    for i in range(2):
        b0 = 32 + i * 16
        for e in range(4):
            a(f"""
            v_add_f32 v{b0+e}, v{b0+e}, v{b0+4+e}
            v_add_f32 v{b0+8+e}, v{b0+8+e}, v{b0+12+e}
            v_add_f32 v{b0+e}, v{b0+e}, v{b0+8+e}
            """)
        for pr in range(2):
            o0, o1 = b0 + 2 * pr, b0 + 2 * pr + 1
            s0, s1 = 64 + 4 * i + 2 * pr, 64 + 4 * i + 2 * pr + 1
            xx = 10 + 2 * i + pr
            a(f"""
            v_cvt_pk_bf16_f32 v22, v{o0}, v{o1}
            v_lshlrev_b32 v23, 16, v22
            v_and_b32 v24, 0xffff0000, v22
            v_mul_f32 v25, s82, v23
            v_mul_f32 v26, s82, v24
            v_exp_f32 v25, v25
            v_exp_f32 v26, v26
            v_lshlrev_b32 v{s0}, 16, v{s0}
            v_lshlrev_b32 v{s1}, 16, v{s1}
            v_add_f32 v25, 1.0, v25
            v_add_f32 v26, 1.0, v26
            v_rcp_f32 v25, v25
            v_rcp_f32 v26, v26
            s_nop 0
            v_mul_f32 v25, v25, v23
            v_mul_f32 v26, v26, v24
            v_cvt_pk_bf16_f32 v22, v25, v26
            v_lshlrev_b32 v23, 16, v22
            v_and_b32 v24, 0xffff0000, v22
            v_mul_f32 v23, v23, v{s0}
            v_mul_f32 v24, v24, v{s1}
            v_cvt_pk_bf16_f32 v22, v23, v24
            v_lshlrev_b32 v23, 16, v22
            v_and_b32 v24, 0xffff0000, v22
            v_lshlrev_b32 v25, 16, v{xx}
            v_and_b32 v26, 0xffff0000, v{xx}
            v_add_f32 v23, v23, v25
            v_add_f32 v24, v24, v26
            v_cvt_pk_bf16_f32 v{28+2*i+pr}, v23, v24
            """)
        a(f"buffer_store_dwordx2 v[{28+2*i}:{29+2*i}], v7, s[{SRD_OUT}:{SRD_OUT+3}], s{78+i} offen")


def k3(a):
    gemm2_map(a)
    a("s_cmp_ge_u32 s3, 4\n s_cbranch_scc1 Lk3_skip")
    gemm2_main(a)
    a("Lk3_skip:")
    final(a)
    a("s_waitcnt vmcnt(0)")
```

```python
from gen import *

F32 = lambda x: hex(__import__("struct").unpack("<I", __import__("struct").pack("<f", x))[0])

S_ISC = 90
S_DEBUG = False

KP = 48
def kgen_issue(a):
    t = ST
    n = 0
    a(f"""
    v_lshlrev_b32 v62, 2, v1
    v_mov_b32 v63, 0
    s_lshl_b32 s{t}, s2, 9            ; (2wg)*256
    s_add_u32 s{t+1}, s{t}, 256
    s_lshl_b32 s{t+2}, s2, 2
    """)
    for i in range(6):
        q = SRD_T0 if i % 2 == 0 else SRD_T1
        srd(a, q, 1 + i, 512 * 128 * 2)
        a(f"""
        buffer_load_dword v{KP+i}, v62, s[{q}:{q+3}], s{t} offen
        buffer_load_dword v{KP+6+i}, v62, s[{q}:{q+3}], s{t+1} offen
        """)
        n += 2
    srd(a, SRD_T0, 7, 1024)
    a(f"buffer_load_dword v60, v63, s[{SRD_T0}:{SRD_T0+3}], s{t+2} offen")
    srd(a, SRD_T1, 8, 1024)
    a(f"buffer_load_dword v61, v63, s[{SRD_T1}:{SRD_T1+3}], s{t+2} offen")
    n += 2
    return n


def cmul(a, R, X, Y, T):
    a(f"""
    v_pk_mul_f32 v[{T}:{T+1}], v[{X}:{X+1}], v[{Y}:{Y+1}] op_sel:[0,0] op_sel_hi:[1,0]
    v_pk_fma_f32 v[{R}:{R+1}], v[{X}:{X+1}], v[{Y}:{Y+1}], v[{T}:{T+1}] op_sel:[1,1,0] op_sel_hi:[0,1,1] neg_lo:[1,0,0]
    """)


def direct(a, R, s_l, A2, WV, t0):
    a(f"""
    v_mul_f32 v{t0}, s{s_l}, v{A2}
    v_mul_f32 v{t0+1}, s{s_l}, v{WV}
    v_exp_f32 v{t0}, v{t0}
    v_fract_f32 v{t0+1}, v{t0+1}
    v_cos_f32 v{t0+2}, v{t0+1}
    v_sin_f32 v{t0+3}, v{t0+1}
    v_mul_f32 v{R}, v{t0}, v{t0+2}
    v_mul_f32 v{R+1}, v{t0}, v{t0+3}
    """)


def kgen_setup(a):
    a(f"""
    s_and_b32 s76, s3, 1                 ; nh
    s_lshl_b32 s77, s76, 4
    s_lshr_b32 s78, s3, 1                ; part p
    s_mov_b32 s79, 0                     ; base_f
    s_mov_b32 s80, {F32(16.0)}           ; stride_f
    s_mov_b32 s81, 0                     ; r0_f
    s_mov_b32 s82, 1.0                   ; dr_f
    s_cmp_eq_u32 s78, 1
    s_cselect_b32 s79, {F32(256.0)}, s79
    s_cselect_b32 s81, {F32(8.0)}, s81
    s_cmp_eq_u32 s78, 2
    s_cselect_b32 s79, {F32(512.0)}, s79
    s_cselect_b32 s80, {F32(32.0)}, s80
    s_cselect_b32 s81, {F32(16.0)}, s81
    s_cselect_b32 s82, 4.0, s82
    s_cmp_eq_u32 s78, 3
    s_cselect_b32 s79, {F32(1024.0)}, s79
    s_cselect_b32 s80, {F32(64.0)}, s80
    s_cselect_b32 s81, {F32(32.0)}, s81
    s_cselect_b32 s82, {F32(8.0)}, s82
    s_cmp_eq_u32 s76, 1
    s_cselect_b64 s[84:85], -1, 0
    s_lshl_b32 s86, s76, 8               ; nh*64*4
    s_mul_i32 s87, s78, {8*TROW}
    s_add_u32 s86, s86, {TAB}
    s_add_u32 s87, s87, s86              ; V base
    s_mul_i32 s88, s78, {16*TROW}
    s_add_u32 s88, s88, s86
    s_add_u32 s88, s88, {32*TROW}        ; U base
    v_lshl_add_u32 v64, v1, 2, s87       ; v_tabV
    v_lshl_add_u32 v65, v1, 2, s88       ; v_tabU
    s_mov_b32 s92, 0                     ; seg
    s_cmp_ge_u32 s3, 1
    s_cselect_b32 s92, 1, s92
    s_cmp_ge_u32 s3, 2
    s_cselect_b32 s92, 2, s92
    s_cmp_ge_u32 s3, 4
    s_cselect_b32 s92, 3, s92
    s_lshl_b32 s93, 128, s92             ; base
    s_cmp_eq_u32 s92, 0
    s_cselect_b32 s93, 0, s93
    s_lshl_b32 s94, 8, s92               ; stride
    s_max_u32 s94, s94, 16
    s_lshl_b32 s95, 1, s92
    s_lshr_b32 s95, s95, 1
    s_sub_u32 s95, s3, s95               ; sub
    s_lshl_b32 s95, s95, 4               ; 16*sub
    s_add_u32 s96, s93, s95
    v_add_u32 v66, s96, v2               ; L
    v_cvt_f32_u32 v66, v66
    v_cvt_pk_bf16_f32 v66, v66, v66
    v_lshlrev_b32 v66, 16, v66
    v_cvt_u32_f32 v66, v66
    v_subrev_u32 v66, s93, v66           ; r
    v_lshrrev_b32 v67, 2, v66
    v_add_u32 v67, 12, v67
    v_lshrrev_b32 v68, 3, v66
    v_add_u32 v68, 20, v68
    v_cmp_lt_u32 vcc, 32, v66
    v_cndmask_b32 v67, v67, v68, vcc
    v_cmp_gt_u32 vcc, 16, v66
    v_cndmask_b32 v66, v67, v66, vcc     ; idx
    v_mul_u32_u24 v66, {TROW}, v66
    v_lshl_add_u32 v66, v3, 4, v66
    v_add_u32 v66, {TAB}, v66            ; v_va
    s_lshl_b32 s97, s92, 4
    s_add_u32 s97, s97, 32
    v_add_u32 v67, s97, v2
    v_mul_u32_u24 v67, {TROW}, v67
    v_lshl_add_u32 v67, v3, 4, v67
    v_add_u32 v67, {TAB}, v67            ; v_ua
    v_mul_lo_u32 v68, v2, s94
    v_lshl_add_u32 v68, v3, 2, v68
    v_add_u32 v68, s96, v68
    v_lshlrev_b32 v68, 1, v68
    v_add_u32 v68, {KCP + 32}, v68
    v_lshrrev_b32 v69, 4, v1             ; cp
    v_mul_u32_u24 v69, {KCOPY}, v69
    v_lshl_add_u32 v69, v2, 2, v69
    s_mul_i32 s98, s3, {KCH}
    s_add_u32 s98, s98, {KCP}
    v_add_u32 v69, s98, v69
    v_mov_b32 v70, 0
    s_cmp_ge_u32 s3, 2
    s_cbranch_scc1 Lkz_skip
    ds_write_b32 v69, v70
Lkz_skip:
    """)


def kgen_channel(a, c):
    pb = KP + 6 * c
    AR, AI, BR, BI, CR, CI = range(pb, pb + 6)
    a(f"""
    ; dt
    {"v_lshlrev_b32 v72, 16, v60" if c == 0 else "v_and_b32 v72, 0xffff0000, v60"}
    v_mul_f32 v72, {LOG2E}, v72
    v_exp_f32 v72, v72
    s_nop 0
    v_cvt_pk_bf16_f32 v72, v72, v72
    v_lshlrev_b32 v72, 16, v72            ; dt
    v_lshlrev_b32 v74, 16, v{BR}
    v_and_b32 v75, 0xffff0000, v{BR}
    v_lshlrev_b32 v76, 16, v{BI}
    v_and_b32 v77, 0xffff0000, v{BI}
    v_lshlrev_b32 v78, 16, v{CR}
    v_and_b32 v79, 0xffff0000, v{CR}
    v_lshlrev_b32 v80, 16, v{CI}
    v_and_b32 v81, 0xffff0000, v{CI}
    v_mul_f32 v74, v72, v74
    v_mul_f32 v75, v72, v75
    v_mul_f32 v76, v72, v76
    v_mul_f32 v77, v72, v77
    ; W0 = (v82,v83)  W1 = (v84,v85)
    v_mul_f32 v82, v78, v74
    v_mul_f32 v83, v78, v76
    v_mul_f32 v84, v79, v75
    v_mul_f32 v85, v79, v77
    v_fma_f32 v82, -v80, v76, v82
    v_fma_f32 v83, v80, v74, v83
    v_fma_f32 v84, -v81, v77, v84
    v_fma_f32 v85, v81, v75, v85
    v_max3_f32 v86, abs(v82), abs(v83), abs(v84)
    v_max_f32 v86, abs(v85), v86
    """)
    allreduce(a, 86, 87, "v_max_f32")
    a(f"""
    v_lshrrev_b32 v86, 23, v86
    v_max_u32 v86, 8, v86
    v_min_u32 v86, 250, v86
    v_sub_u32 v87, 261, v86
    v_lshlrev_b32 v87, 23, v87            ; scale
    v_subrev_u32 v86, 7, v86
    v_lshlrev_b32 v86, 23, v86
    v_readfirstlane_b32 s{S_ISC+c}, v86
    v_cndmask_b32 v82, v82, v84, s[84:85]
    v_cndmask_b32 v83, v83, v85, s[84:85]
    v_mul_f32 v82, v82, v87
    v_mul_f32 v83, v83, v87               ; W' = v[82:83]
    v_lshrrev_b32 v74, s77, v{AR}
    v_lshlrev_b32 v74, 16, v74
    v_lshrrev_b32 v75, s77, v{AI}
    v_lshlrev_b32 v75, 16, v75
    v_mul_f32 v74, v72, v74
    v_mul_f32 v75, v72, v75
    v_mul_f32 v74, {LOG2E}, v74           ; a2
    v_mul_f32 v75, {INV2PI}, v75          ; wv
    """)
    A2, WV = 74, 75
    direct(a, 88, 81, A2, WV, 100)
    direct(a, 90, 82, A2, WV, 104)
    direct(a, 92, 79, A2, WV, 108)
    direct(a, 94, 80, A2, WV, 112)
    cmul(a, 96, 82, 92, 116)
    cmul(a, 98, 96, 94, 118)
    cmul(a, 92, 94, 94, 120)
    a(f"""
    v_cvt_pk_f16_f32 v122, v88, v89
    ds_write_b32 v64, v122 offset:0
    v_cvt_pk_f16_f32 v123, v96, -v97
    ds_write_b32 v65, v123 offset:0
    v_cvt_pk_f16_f32 v124, v98, -v99
    ds_write_b32 v65, v124 offset:{TROW}
    """)
    for j in range(1, 8):
        cmul(a, 88, 88, 90, 116)
        cmul(a, 96, 96, 92, 118)
        cmul(a, 98, 98, 92, 120)
        a(f"""
        v_cvt_pk_f16_f32 v122, v88, v89
        ds_write_b32 v64, v122 offset:{j*TROW}
        v_cvt_pk_f16_f32 v123, v96, -v97
        ds_write_b32 v65, v123 offset:{2*j*TROW}
        v_cvt_pk_f16_f32 v124, v98, -v99
        ds_write_b32 v65, v124 offset:{(2*j+1)*TROW}
        """)
    a("s_waitcnt lgkmcnt(0)\n s_barrier")
    for s in range(8):
        a(f"""
        ds_read_b128 v[{128+8*s}:{131+8*s}], v66 offset:{64*s}
        ds_read_b128 v[{132+8*s}:{135+8*s}], v67 offset:{64*s}
        """)
    for s in range(8):
        a(f"s_waitcnt lgkmcnt({14-2*s})")
        cc = "0" if s == 0 else "v[124:127]"
        a(f"v_mfma_f32_16x16x32_f16 v[124:127], v[{128+8*s}:{131+8*s}], v[{132+8*s}:{135+8*s}], {cc}")
    o = c * KCH
    a(f"""
    v_cvt_pk_f16_f32 v116, v124, v125
    v_cvt_pk_f16_f32 v117, v126, v127
    v_alignbit_b32 v118, v117, v116, 16
    ds_write_b64 v68, v[116:117] offset:{o}
    ds_write_b16 v68, v116 offset:{o + KCOPY + 2}
    ds_write_b32 v68, v118 offset:{o + KCOPY + 4}
    ds_write_b16_d16_hi v68, v117 offset:{o + KCOPY + 8}
    ds_write_b32 v68, v116 offset:{o + 2*KCOPY + 4}
    ds_write_b32 v68, v117 offset:{o + 2*KCOPY + 8}
    ds_write_b16 v68, v116 offset:{o + 3*KCOPY + 6}
    ds_write_b32 v68, v118 offset:{o + 3*KCOPY + 8}
    ds_write_b16_d16_hi v68, v117 offset:{o + 3*KCOPY + 12}
    s_waitcnt lgkmcnt(0)
    s_barrier
    """)


def kgen(a, vm_after):
    kgen_setup(a)
    a(f"s_waitcnt vmcnt({vm_after})")
    a("v_readfirstlane_b32 s89, v61")
    kgen_channel(a, 0)
    kgen_channel(a, 1)


def kdump(a):
    a(f"""
    v_lshlrev_b32 v10, 3, v0
    v_add_u32 v11, {KCP + 32}, v10
    ds_read_b64 v[12:13], v11
    ds_read_b64 v[14:15], v11 offset:{KCH}
    s_lshl_b32 s76, s2, 13
    s_add_u32 s76, s76, {DBG_OFF}
    s_add_u32 s77, s76, 4096
    s_waitcnt lgkmcnt(0)
    buffer_store_dwordx2 v[12:13], v10, s[{SRD_WS}:{SRD_WS+3}], s76 offen
    buffer_store_dwordx2 v[14:15], v10, s[{SRD_WS}:{SRD_WS+3}], s77 offen
    v_mov_b32 v16, s{S_ISC}
    v_mov_b32 v17, s{S_ISC+1}
    v_mov_b32 v18, 0
    s_lshl_b32 s76, s2, 3
    s_add_u32 s76, s76, {DBG_OFF + (4 << 20)}
    buffer_store_dwordx2 v[16:17], v18, s[{SRD_WS}:{SRD_WS+3}], s76 offen
    """)


def conv(a, signal=None):
    a(f"""
    s_sub_u32 s76, s3, 4                  ; cw
    s_and_b32 s77, s76, 1                 ; c
    s_lshr_b32 s78, s76, 1                ; rh
    s_lshl_b32 s79, s2, 1
    s_add_u32 s79, s79, s77               ; d
    s_lshl_b32 s80, s79, 12
    s_add_u32 s81, s80, {XT_OFF}
    v_lshlrev_b32 v5, 4, v1
    buffer_load_dwordx4 v[10:13], v5, s[{SRD_WS}:{SRD_WS+3}], s81 offen sc1
    buffer_load_dwordx4 v[14:17], v5, s[{SRD_WS}:{SRD_WS+3}], s81 offen offset:1024 sc1
    buffer_load_dwordx4 v[18:21], v5, s[{SRD_WS}:{SRD_WS+3}], s81 offen offset:2048 sc1
    buffer_load_dwordx4 v[22:25], v5, s[{SRD_WS}:{SRD_WS+3}], s81 offen offset:3072 sc1
    s_mul_i32 s82, s76, {XRW}
    s_add_u32 s82, s82, {XR}
    v_add_u32 v6, s82, v5
    v_mov_b32 v26, 0
    v_mov_b32 v27, 0
    v_mov_b32 v28, 0
    v_mov_b32 v29, 0
    ds_write_b128 v6, v[26:29] offset:4096
    v_sub_u32 v7, 3, v2
    v_and_b32 v7, 3, v7                   ; cp
    v_mul_u32_u24 v8, {KCOPY}, v7
    v_add_u32 v7, v7, v2                  ; cp+b
    v_lshlrev_b32 v9, 3, v3
    v_sub_u32 v7, v7, v9                  ; cp+b-8kg
    v_lshl_add_u32 v8, v7, 1, v8
    s_mul_i32 s83, s77, {KCH}
    s_lshl_b32 s84, s78, 8
    s_add_u32 s83, s83, s84
    s_add_u32 s83, s83, {KCP + 50}
    v_add_u32 v8, s83, v8                 ; v_ka
    v_lshlrev_b32 v9, 5, v2
    v_lshl_add_u32 v9, v3, 4, v9
    s_add_u32 s85, s82, s84
    s_add_u32 s85, s85, 528
    v_sub_u32 v9, s85, v9                 ; v_xb
    s_waitcnt vmcnt(0)
    ds_write_b128 v6, v[10:13]
    ds_write_b128 v6, v[14:17] offset:1024
    ds_write_b128 v6, v[18:21] offset:2048
    ds_write_b128 v6, v[22:25] offset:3072
    s_waitcnt lgkmcnt(0)
    """)
    ACC = 32
    FR = [64, 128]
    def loads(rr, fb):
        L = []
        for q in range(8):
            s = 8 * q + rr
            L.append(f"ds_read_b64 v[{fb+4*q}:{fb+4*q+1}], v8 offset:{64*s}")
            L.append(f"ds_read_b64 v[{fb+4*q+2}:{fb+4*q+3}], v8 offset:{64*s+8}")
            m = 8 * q - rr
            L.append(f"ds_read_b128 v[{fb+32+4*q}:{fb+32+4*q+3}], v9 offset:{64*(56-m)}")
        return L
    for l in loads(0, FR[0]):
        a(l)
    for rr in range(4):
        fb = FR[rr & 1]
        nxt = loads(rr + 1, FR[(rr + 1) & 1]) if rr < 3 else []
        a("s_waitcnt lgkmcnt(0)")
        for i in range(8):
            for q in range(i + 1):
                p = i - q
                cc = "0" if rr == 0 and q == 0 else f"v[{ACC+4*i}:{ACC+4*i+3}]"
                a(f"v_mfma_f32_16x16x32_f16 v[{ACC+4*i}:{ACC+4*i+3}], v[{fb+4*q}:{fb+4*q+3}], v[{fb+32+4*p}:{fb+32+4*p+3}], {cc}")
                if nxt:
                    a(nxt.pop(0))
    a(f"""
    s_lshl_b32 s84, s76, 12
    s_add_u32 s84, s84, {CEX}
    v_add_u32 v6, s84, v5
    s_xor_b32 s85, s76, 2
    s_lshl_b32 s86, s85, 12
    s_add_u32 s86, s86, {CEX}
    v_add_u32 v7, s86, v5
    s_lshl_b32 s86, s76, 2
    s_add_u32 s86, s86, {MISC}
    v_mov_b32 v10, s86
    s_lshl_b32 s86, s85, 2
    s_add_u32 s86, s86, {MISC}
    v_mov_b32 v11, s86
    v_mov_b32 v12, 1
    s_nop 7
    s_cmp_eq_u32 s78, 0
    s_cbranch_scc0 Lcx_rh1
    """)
    for i in range(4):
        a(f"ds_write_b128 v6, v[{ACC+16+4*i}:{ACC+19+4*i}] offset:{1024*i}")
    for i in range(16):
        a(f"v_mov_b32 v{64+i}, v{ACC+i}")
    a("s_branch Lcx_join\nLcx_rh1:")
    for i in range(4):
        a(f"ds_write_b128 v6, v[{ACC+4*i}:{ACC+3+4*i}] offset:{1024*i}")
    for i in range(16):
        a(f"v_mov_b32 v{64+i}, v{ACC+16+i}")
    a(f"""
Lcx_join:
    s_waitcnt lgkmcnt(0)
    ds_write_b32 v10, v12
Lcx_poll:
    ds_read_b32 v13, v11
    s_waitcnt lgkmcnt(0)
    v_readfirstlane_b32 s86, v13
    s_cmp_eq_u32 s86, 0
    s_cbranch_scc1 Lcx_poll
    """)
    for i in range(4):
        a(f"ds_read_b128 v[{80+4*i}:{83+4*i}], v7 offset:{1024*i}")
    a(f"""
    v_lshlrev_b32 v14, 4, v2
    v_lshl_add_u32 v14, v3, 2, v14        ; 16a'+4q
    s_lshl_b32 s86, s78, 10               ; 1024*rh
    v_add_u32 v14, s86, v14               ; t0 for j=0
    v_lshlrev_b32 v15, 1, v14
    s_sub_u32 s87, 0, 0
    s_add_u32 s87, s82, {4088 - 1536}
    v_sub_u32 v16, s87, v15
    """)
    for j in range(4):
        a(f"ds_read_b64 v[{96+2*j}:{97+2*j}], v16 offset:{(3-j)*512}")
    a(f"""
    s_lshl_b32 s86, s77, 4
    s_lshr_b32 s86, s89, s86
    s_lshl_b32 s86, s86, 16               ; Dskip f32
    s_cmp_eq_u32 s77, 0
    s_cselect_b32 s87, s{S_ISC}, s{S_ISC+1}
    s_add_u32 s88, s80, {S_OFF}
    s_waitcnt lgkmcnt(0)
    """)
    for j in range(4):
        for e in range(4):
            r = 64 + 4 * j + e
            a(f"v_add_f32 v{r}, v{r}, v{80+4*j+e}\n v_mul_f32 v{r}, s87, v{r}")
        x0, x1 = 96 + 2 * j, 97 + 2 * j
        r = 64 + 4 * j
        a(f"""
        v_cvt_f32_f16 v20, v{x1}
        v_lshrrev_b32 v21, 16, v{x1}
        v_cvt_f32_f16 v21, v21            ; x(t0)
        v_cvt_f32_f16 v22, v{x0}          ; x(t0+3)
        v_lshrrev_b32 v23, 16, v{x0}
        v_cvt_f32_f16 v23, v23            ; x(t0+2)
        v_mul_f32 v21, s86, v21
        v_mul_f32 v20, s86, v20           ; x(t0+1)
        v_mul_f32 v23, s86, v23
        v_mul_f32 v22, s86, v22
        v_cvt_pk_bf16_f32 v24, v21, v20
        v_cvt_pk_bf16_f32 v25, v23, v22
        v_cvt_pk_bf16_f32 v26, v{r}, v{r+1}
        v_cvt_pk_bf16_f32 v27, v{r+2}, v{r+3}
        v_lshlrev_b32 v20, 16, v24
        v_and_b32 v21, 0xffff0000, v24
        v_lshlrev_b32 v22, 16, v25
        v_and_b32 v23, 0xffff0000, v25
        v_lshlrev_b32 v28, 16, v26
        v_and_b32 v29, 0xffff0000, v26
        v_lshlrev_b32 v30, 16, v27
        v_and_b32 v31, 0xffff0000, v27
        v_add_f32 v20, v20, v28
        v_add_f32 v21, v21, v29
        v_add_f32 v22, v22, v30
        v_add_f32 v23, v23, v31
        v_cvt_pk_bf16_f32 v{104+2*j}, v20, v21
        v_cvt_pk_bf16_f32 v{105+2*j}, v22, v23
        buffer_store_dwordx2 v[{104+2*j}:{105+2*j}], v15, s[{SRD_WS}:{SRD_WS+3}], s88 offen offset:{512*j} sc1
        """)
    if signal:
        signal(a)


def k2(a, stage):
    n = kgen_issue(a)
    a(f"""
    v_mov_b32 v10, {MISC}
    v_mov_b32 v11, 0
    v_lshl_add_u32 v10, v2, 2, v10
    ds_write_b32 v10, v11
    """)
    if stage >= 3:
        import gemm
        nd = gemm.gemm1_prefetch(a, 2)
    else:
        nd = 0
    kgen(a, nd)
    kdump(a)
    if stage >= 3:
        gemm.gemm1(a, wait=None)
    a("s_barrier")
    a("s_cmp_lt_u32 s3, 4\n s_cbranch_scc1 Lk2_done")
    conv(a)
    a("Lk2_done:\n s_waitcnt vmcnt(0)")


def k3(a):
    import gemm
    gemm.k3(a)
```

```python
import sys
import dsl
from dsl import Asm

KNAME = "recurrent_scan__ssm_conv_s4__glu_gated_glu__prompt_kernel"

CNT_OFF = 0
CNT_A, CNT_B, CNT_C = 0, 16, 32
XN_OFF = 1 << 20
XT_OFF = 4 << 20
WDT_OFF = 8 << 20
H_OFF = 16 << 20
S_OFF = 32 << 20
DBG_OFF = 64 << 20

SLOT = 28672
RING = 0
TAB = 2 * SLOT
TROW = 528
TAB_ROWS = 96
XTS = TAB
KCP = TAB + TAB_ROWS * TROW
KCOPY = 4160
KCH = 4 * KCOPY
MISC = KCP + 2 * KCH
LDS_BYTES = MISC + 256
XR = 0
XRW = 5120
CEX = 4 * XRW
G2P = CEX + 4 * 4096
STILE = G2P + 65536
SROW = 144

S_WG, S_WAVE = 2, 3
SRD_X, SRD_WS, SRD_WG, SRD_WU, SRD_OUT, SRD_DBG, SRD_WD, SRD_T0, SRD_T1 = 8, 12, 16, 20, 24, 28, 32, 36, 40
PTR = 44
def P(i): return PTR + 2 * i
ST = 76

LOG2E = 0x3fb8aa3b
NLOG2E = 0xbfb8aa3b
INV2PI = 0x3e22f983


def srd(a, q, ptr_idx, nbytes):
    a(f"""
    s_mov_b32 s{q}, s{P(ptr_idx)}
    s_and_b32 s{q+1}, s{P(ptr_idx)+1}, 0xffff
    s_mov_b32 s{q+2}, {nbytes}
    s_mov_b32 s{q+3}, 0x00020000
    """)


def prologue(a, name):
    a(f"""
{name}:
    s_cmp_ge_u32 s2, 256
    s_cbranch_scc1 {name}_exit
    s_load_dwordx16 s[44:59], s[0:1], 0
    s_load_dwordx16 s[60:75], s[0:1], 64
    v_and_b32 v1, 63, v0
    v_lshrrev_b32 v4, 6, v0
    v_and_b32 v2, 15, v1
    v_lshrrev_b32 v3, 4, v1
    v_readfirstlane_b32 s3, v4
    s_waitcnt lgkmcnt(0)
    """)
    srd(a, SRD_X, 0, 2048 * 512 * 2)
    srd(a, SRD_WS, 15, 256 << 20)
    srd(a, SRD_WG, 10, 512 * 1792 * 2)
    srd(a, SRD_WU, 11, 512 * 1792 * 2)
    srd(a, SRD_OUT, 13, 2048 * 512 * 2)
    srd(a, SRD_DBG, 14, 256)
    srd(a, SRD_WD, 12, 1792 * 512 * 2)


def allreduce(a, v, tmp, op="v_add_f32"):
    a(f"""
    {op}_dpp v{v}, v{v}, v{v} quad_perm:[1,0,3,2] row_mask:0xf bank_mask:0xf
    {op}_dpp v{v}, v{v}, v{v} quad_perm:[2,3,0,1] row_mask:0xf bank_mask:0xf
    {op}_dpp v{v}, v{v}, v{v} row_half_mirror row_mask:0xf bank_mask:0xf
    {op}_dpp v{v}, v{v}, v{v} row_mirror row_mask:0xf bank_mask:0xf
    v_mov_b32 v{tmp}, v{v}
    v_permlane16_swap_b32 v{v}, v{tmp}
    {op} v{v}, v{v}, v{tmp}
    v_mov_b32 v{tmp}, v{v}
    v_permlane32_swap_b32 v{v}, v{tmp}
    {op} v{v}, v{v}, v{tmp}
    """)


def bf16r(a, dst, src):
    a(f"""
    v_cvt_pk_bf16_f32 v{dst}, v{src}, v{src}
    v_lshlrev_b32 v{dst}, 16, v{dst}
    """)


def ln_issue(a):
    t = ST
    a(f"""
    s_lshl_b32 s{t}, s2, 3
    s_add_u32 s{t}, s{t}, s3
    s_lshl_b32 s{t+1}, s{t}, 10
    v_lshlrev_b32 v5, 4, v1                ; lane*16
    buffer_load_dwordx4 v[10:13], v5, s[{SRD_X}:{SRD_X+3}], s{t+1} offen
    s_min_u32 s{t+2}, s3, 6
    s_mul_i32 s{t+3}, s2, 7
    s_add_u32 s{t+2}, s{t+2}, s{t+3}       ; id
    s_lshr_b32 s{t+3}, s{t+2}, 5           ; J
    s_and_b32 s{t+4}, s{t+2}, 31           ; Dt
    s_lshl_b32 s{t+3}, s{t+3}, 15          ; J*32 rows*1024B
    s_lshl_b32 s{t+4}, s{t+4}, 5           ; Dt*32B
    s_add_u32 s{t+3}, s{t+3}, s{t+4}
    s_add_u32 s{t+4}, s{t+3}, 16384
    v_lshlrev_b32 v6, 12, v3               ; 4*kg*1024
    v_lshl_add_u32 v6, v2, 1, v6           ; + d*2
    buffer_load_ushort v40, v6, s[{SRD_WD}:{SRD_WD+3}], s{t+3} offen
    buffer_load_ushort v41, v6, s[{SRD_WD}:{SRD_WD+3}], s{t+3} offen offset:1024
    buffer_load_ushort v42, v6, s[{SRD_WD}:{SRD_WD+3}], s{t+3} offen offset:2048
    buffer_load_ushort v43, v6, s[{SRD_WD}:{SRD_WD+3}], s{t+3} offen offset:3072
    buffer_load_ushort v44, v6, s[{SRD_WD}:{SRD_WD+3}], s{t+4} offen
    buffer_load_ushort v45, v6, s[{SRD_WD}:{SRD_WD+3}], s{t+4} offen offset:1024
    buffer_load_ushort v46, v6, s[{SRD_WD}:{SRD_WD+3}], s{t+4} offen offset:2048
    buffer_load_ushort v47, v6, s[{SRD_WD}:{SRD_WD+3}], s{t+4} offen offset:3072
    """)
    return 9


def ln_compute(a, vm_after):
    t = ST
    f = 20
    a(f"s_waitcnt vmcnt({8 + vm_after})")
    for i in range(4):
        a(f"""
        v_lshlrev_b32 v{f+2*i}, 16, v{10+i}
        v_and_b32 v{f+2*i+1}, 0xffff0000, v{10+i}
        """)
    a(f"""
    v_add_f32 v28, v{f}, v{f+1}
    v_add_f32 v29, v{f+2}, v{f+3}
    v_add_f32 v30, v{f+4}, v{f+5}
    v_add_f32 v31, v{f+6}, v{f+7}
    v_add_f32 v28, v28, v29
    v_add_f32 v30, v30, v31
    v_add_f32 v28, v28, v30
    """)
    allreduce(a, 28, 29)
    a("v_mul_f32 v28, 0x3b000000, v28")
    a(f"v_sub_f32 v30, v{f}, v28\n v_mul_f32 v31, v30, v30")
    for i in range(1, 8):
        a(f"v_sub_f32 v30, v{f+i}, v28\n v_fmac_f32 v31, v30, v30")
    allreduce(a, 31, 29)
    a("v_mul_f32 v31, 0x3b000000, v31")
    bf16r(a, 28, 28)
    bf16r(a, 31, 31)
    a("v_add_f32 v31, 0x3727c5ac, v31")
    bf16r(a, 31, 31)
    a("v_sqrt_f32 v31, v31")
    bf16r(a, 31, 31)
    a("v_rcp_f32 v32, v31")
    for i in range(8):
        a(f"v_sub_f32 v{f+i}, v{f+i}, v28")
    for i in range(4):
        a(f"""
        v_cvt_pk_bf16_f32 v33, v{f+2*i}, v{f+2*i+1}
        v_lshlrev_b32 v{f+2*i}, 16, v33
        v_and_b32 v{f+2*i+1}, 0xffff0000, v33
        """)
    for i in range(8):
        a(f"""
        v_mul_f32 v33, v{f+i}, v32
        v_fma_f32 v34, -v33, v31, v{f+i}
        v_fma_f32 v{f+i}, v34, v32, v33
        """)
    for i in range(4):
        a(f"v_cvt_pk_bf16_f32 v{10+i}, v{f+2*i}, v{f+2*i+1}")
    a(f"""
    s_add_u32 s{t+5}, s{t+1}, {XN_OFF}
    buffer_store_dwordx4 v[10:13], v5, s[{SRD_WS}:{SRD_WS+3}], s{t+5} offen sc1
    """)
    a(f"""
    s_sub_u32 s{t+6}, 7, s3
    s_lshl_b32 s{t+6}, s{t+6}, 1
    s_add_u32 s{t+6}, s{t+6}, {XTS}
    v_add_u32 v7, s{t+6}, v5
    """)
    for i in range(4):
        a(f"""
        v_lshlrev_b32 v33, 16, v{10+i}
        v_and_b32 v34, 0xffff0000, v{10+i}
        v_cvt_pk_f16_f32 v{36+i}, v33, v34
        ds_write_b16 v7, v{36+i} offset:{(2*i)*1024}
        ds_write_b16_d16_hi v7, v{36+i} offset:{(2*i+1)*1024}
        """)
    a(f"""
    s_waitcnt vmcnt({1 + vm_after})
    v_lshl_or_b32 v14, v41, 16, v40
    v_lshl_or_b32 v15, v43, 16, v42
    v_lshl_or_b32 v16, v45, 16, v44
    v_lshl_or_b32 v17, v47, 16, v46
    s_lshl_b32 s{t+7}, s{t+2}, 10
    s_add_u32 s{t+7}, s{t+7}, {WDT_OFF}
    buffer_store_dwordx4 v[14:17], v5, s[{SRD_WS}:{SRD_WS+3}], s{t+7} offen sc1
    s_waitcnt lgkmcnt(0)
    s_barrier
    v_lshlrev_b32 v8, 4, v0
    v_add_u32 v8, {XTS}, v8
    ds_read_b128 v[36:39], v8
    v_lshlrev_b32 v9, 15, v1
    s_lshl_b32 s{t+8}, s3, 12
    s_lshl_b32 s{t+9}, s2, 4
    s_sub_u32 s{t+9}, {XT_OFF + 4080}, s{t+9}
    s_add_u32 s{t+8}, s{t+8}, s{t+9}
    s_waitcnt lgkmcnt(0)
    buffer_store_dwordx4 v[36:39], v9, s[{SRD_WS}:{SRD_WS+3}], s{t+8} offen sc1
    """)
    return 3


def kd(name, lds=0):
    return f"""
.p2align 6
.amdhsa_kernel {name}
  .amdhsa_next_free_vgpr 256
  .amdhsa_next_free_sgpr 102
  .amdhsa_accum_offset 256
  .amdhsa_group_segment_fixed_size 0
  .amdhsa_kernarg_size 128
  .amdhsa_user_sgpr_count 2
  .amdhsa_user_sgpr_kernarg_segment_ptr 1
  .amdhsa_system_sgpr_workgroup_id_x 1
.end_amdhsa_kernel
"""


def header(launches):
    h = []
    for l in launches:
        h.append(l)
    h.append('.amdgcn_target "amdgcn-amd-amdhsa--gfx950"')
    h.append(".text")
    return "\n".join(h) + "\n"


def kernel_text(name, body_fn):
    a = Asm()
    prologue(a, name)
    body_fn(a)
    a(f"{name}_exit:\n s_endpgm")
    a.finalize()
    return f".globl {name}\n.p2align 8\n.type {name},@function\n" + a.text()


def build_multi(stage):
    import phases
    ks = []
    def k1(a):
        ln_issue(a)
        ln_compute(a, 0)
        a("s_waitcnt vmcnt(0)")
    ks.append(("k1_kernel", k1))
    if stage >= 2:
        ks.append(("k2_kernel", lambda a: phases.k2(a, stage)))
    if stage >= 4:
        ks.append(("k3_kernel", lambda a: phases.k3(a)))
    txt = header([f"; @launch kernel={n} grid=(256,1,1) block=(512,1,1) lds={LDS_BYTES}" for n, _ in ks])
    for n, fn in ks:
        txt += kernel_text(n, fn)
    txt += '.section .rodata,"a"\n'
    for n, _ in ks:
        txt += kd(n)
    return txt


if __name__ == "__main__":
    mode = sys.argv[1]
    out = sys.argv[2]
    if mode.startswith("multi"):
        open(out, "w").write(build_multi(int(mode[5:])))
    else:
        import phases
        open(out, "w").write(phases.build_fused())
```

```python
from gen import *


class VM:
    def __init__(self):
        self.ops = []

    def issue(self, tag, n=1):
        self.ops += [tag] * n

    def wait(self, a, tag):
        idx = max(i for i, t in enumerate(self.ops) if t == tag)
        n = len(self.ops) - 1 - idx
        a(f"s_waitcnt vmcnt({min(n, 63)})")


def gemm1_setup(a):
    a(f"""
    s_and_b32 s76, s2, 7                 ; xcd
    s_lshr_b32 s77, s2, 3                ; idx
    s_and_b32 s78, s76, 1
    s_lshl_b32 s78, s78, 3
    s_and_b32 s79, s77, 7
    s_add_u32 s4, s78, s79               ; mt
    s_lshr_b32 s78, s76, 1
    s_lshl_b32 s78, s78, 2
    s_lshr_b32 s79, s77, 3
    s_add_u32 s5, s78, s79               ; nt
    s_mul_i32 s6, s5, 224
    s_mul_i32 s7, s3, 896
    ; k_hi = (i&4) | ((i&1)<<1) | ((i>>1)&1)
    s_and_b32 s78, s3, 4
    s_and_b32 s79, s3, 1
    s_lshl_b32 s79, s79, 1
    s_or_b32 s78, s78, s79
    s_lshr_b32 s79, s3, 1
    s_and_b32 s79, s79, 1
    s_or_b32 s78, s78, s79
    s_lshl_b32 s78, s78, 2               ; 4*k_hi
    v_mul_u32_u24 v18, 147, v1
    v_lshrrev_b32 v18, 11, v18           ; L/14
    v_mul_u32_u24 v19, 14, v18
    v_sub_u32 v19, v1, v19               ; c
    v_add_u32 v18, s78, v18              ; k
    v_mul_u32_u24 v18, 3584, v18
    v_lshl_add_u32 v18, v19, 4, v18
    """)


def dma_block(a, b):
    slot = (b % 3) * SLOT
    a("s_mov_b32 exec_hi, 0x00ffffff")
    for hf in range(2):
        for img in range(2):
            q = SRD_WG if img == 0 else SRD_WU
            a(f"""
            s_add_u32 s76, s6, {(64*b + 32*hf) * 3584}
            s_add_u32 m0, s7, {slot + hf*14336 + img*7168}
            buffer_load_dwordx4 v18, s[{q}:{q+3}], s76 offen lds
            """)
    a("s_mov_b32 exec_hi, -1")
    return 4


def gemm1_prefetch(a, nblk):
    gemm1_setup(a)
    n = 0
    for b in range(nblk):
        n += dma_block(a, b)
    return n


XF = 64
ACC1 = 192
WF = 32


def gemm1(a, wait, vm=None, signal=None):
    if vm is None:
        vm = VM()
        vm.issue("D0", 4)
        vm.issue("D1", 4)
    if wait:
        wait(a)
    a(f"""
    s_and_b32 s77, s3, 3                 ; tg
    s_lshl_b32 s78, s4, 7
    s_lshl_b32 s79, s77, 5
    s_add_u32 s78, s78, s79
    s_lshl_b32 s78, s78, 10
    s_add_u32 s78, s78, {XN_OFF}
    s_add_u32 s79, s78, 16384
    v_lshlrev_b32 v28, 10, v2
    v_lshl_add_u32 v28, v3, 4, v28
    """)
    for s in range(16):
        for tt in range(2):
            r = XF + (tt * 16 + s) * 4
            a(f"buffer_load_dwordx4 v[{r}:{r+3}], v28, s[{SRD_WS}:{SRD_WS+3}], s{78+tt} offen offset:{64*s} sc1")
            vm.issue(f"X{s}")
    a(f"""
    v_lshrrev_b32 v24, 1, v3             ; kg>>1
    v_lshlrev_b32 v24, 4, v24
    v_and_b32 v25, 1, v3
    v_lshl_add_u32 v24, v25, 2, v24
    v_lshrrev_b32 v25, 2, v2             ; r
    v_add_u32 v24, v24, v25
    v_mul_u32_u24 v24, 224, v24
    v_and_b32 v25, 3, v2
    v_lshl_add_u32 v24, v25, 3, v24      ; slot0
    v_add_u32 v25, {SLOT}, v24
    v_add_u32 v26, {2*SLOT}, v24
    s_cmp_ge_u32 s3, 4
    s_cbranch_scc1 Lg1_part1
    """)
    import copy
    vms = [vm, copy.deepcopy(vm)]
    for part in range(2):
        vm = vms[part]
        tiles = list(range(4)) if part == 0 else list(range(4, 7))
        def acc(img, jj, tt):
            r = ACC1 + ((img * 4 + jj) * 2 + tt) * 4
            return f"v[{r}:{r+3}]"
        for b in range(8):
            vm.wait(a, f"D{b}")
            a("s_barrier")
            stamp(a, 8 + b)
            if b + 2 < 8:
                vm.issue(f"D{b+2}", dma_block(a, b + 2))
            va = 24 + (b % 3)
            frs = [(hf, jj, img) for hf in range(2) for jj in range(len(tiles)) for img in range(2)]
            def rd(i):
                hf, jj, img = frs[i]
                w = WF + (i % 8) * 4
                off = hf * 14336 + img * 7168 + 32 * tiles[jj]
                a(f"ds_read_b64_tr_b16 v[{w}:{w+1}], v{va} offset:{off}")
                a(f"ds_read_b64_tr_b16 v[{w+2}:{w+3}], v{va} offset:{off+1792}")
            PD = 3
            for i in range(PD):
                rd(i)
            for i, (hf, jj, img) in enumerate(frs):
                s = 2 * b + hf
                if jj == 0 and img == 0:
                    vm.wait(a, f"X{s}")
                out = min(PD - 1, len(frs) - 1 - i)
                a(f"s_waitcnt lgkmcnt({2*out})")
                w = WF + (i % 8) * 4
                for tt in range(2):
                    xr = XF + (tt * 16 + s) * 4
                    cc = "0" if s == 0 else acc(img, jj, tt)
                    a(f"v_mfma_f32_16x16x32_bf16 {acc(img, jj, tt)}, v[{w}:{w+3}], v[{xr}:{xr+3}], {cc}")
                if i + PD < len(frs):
                    rd(i + PD)
        stamp(a, 16)
        a(f"""
        v_lshlrev_b32 v5, 4, v1
        s_and_b32 s77, s3, 3
        s_lshl_b32 s78, s4, 3
        s_lshl_b32 s79, s77, 1
        s_add_u32 s78, s78, s79
        s_mul_i32 s78, s78, {56*1024}
        s_add_u32 s78, s78, {H_OFF}
        s_mul_i32 s79, s5, 7                 ; tau0
        s_mov_b32 s82, {NLOG2E}
        """)
        for jj, j in enumerate(tiles):
            a(f"""
            s_add_u32 s80, s79, {j}
            s_lshr_b32 s81, s80, 1
            s_lshl_b32 s81, s81, 10
            s_and_b32 s80, s80, 1
            s_lshl_b32 s80, s80, 3
            s_add_u32 s80, s80, s81
            s_add_u32 s80, s80, s78
            s_add_u32 s81, s80, {56*1024}
            """)
            for tt in range(2):
                g = ACC1 + ((0 * 4 + jj) * 2 + tt) * 4
                u = ACC1 + ((1 * 4 + jj) * 2 + tt) * 4
                o = 8 + 2 * ((jj * 2 + tt) % 8)
                for pr in range(2):
                    g0, g1, u0, u1 = g + 2 * pr, g + 2 * pr + 1, u + 2 * pr, u + 2 * pr + 1
                    a(f"""
                    v_cvt_pk_bf16_f32 v32, v{g0}, v{g1}
                    v_cvt_pk_bf16_f32 v33, v{u0}, v{u1}
                    v_lshlrev_b32 v34, 16, v32
                    v_and_b32 v35, 0xffff0000, v32
                    v_mul_f32 v34, s82, v34
                    v_mul_f32 v35, s82, v35
                    v_exp_f32 v34, v34
                    v_exp_f32 v35, v35
                    v_lshlrev_b32 v36, 16, v33
                    v_and_b32 v37, 0xffff0000, v33
                    v_add_f32 v34, 1.0, v34
                    v_add_f32 v35, 1.0, v35
                    v_rcp_f32 v34, v34
                    v_rcp_f32 v35, v35
                    s_nop 0
                    v_cvt_pk_bf16_f32 v32, v34, v35
                    v_lshlrev_b32 v34, 16, v32
                    v_and_b32 v35, 0xffff0000, v32
                    v_mul_f32 v34, v34, v36
                    v_mul_f32 v35, v35, v37
                    v_cvt_pk_bf16_f32 v{o+pr}, v34, v35
                    """)
                a(f"buffer_store_dwordx2 v[{o}:{o+1}], v5, s[{SRD_WS}:{SRD_WS+3}], s{80+tt} offen sc1")
        if part == 0:
            a("s_branch Lg1_done\nLg1_part1:")
    a("Lg1_done:")
    if signal:
        signal(a)


def gemm2_map(a):
    a(f"""
    s_and_b32 s76, s2, 7
    s_lshr_b32 s77, s2, 3
    s_lshl_b32 s76, s76, 2
    s_and_b32 s78, s77, 3
    s_add_u32 s4, s76, s78               ; tt
    s_lshr_b32 s5, s77, 2                ; dd
    """)


def gemm2_main(a):
    a(f"""
    v_lshlrev_b32 v5, 4, v1
    s_mul_i32 s76, s3, 14                ; J0
    s_lshl_b32 s77, s4, 2                ; T0 = 4tt
    s_mul_i32 s77, s77, 56
    s_add_u32 s77, s77, s76
    s_lshl_b32 s77, s77, 10
    s_add_u32 s80, s77, {H_OFF}
    s_add_u32 s81, s80, {56*1024}
    s_add_u32 s82, s80, {2*56*1024}
    s_add_u32 s83, s80, {3*56*1024}
    s_lshl_b32 s77, s76, 5
    s_lshl_b32 s78, s5, 2
    s_add_u32 s77, s77, s78
    s_lshl_b32 s77, s77, 10
    s_add_u32 s84, s77, {WDT_OFF}
    """)
    ACC = 32
    ST3 = [96, 128, 160, 192]
    NS = 4
    def issue(jj):
        fb = ST3[jj % NS]
        for b in range(4):
            a(f"buffer_load_dwordx4 v[{fb+4*b}:{fb+4*b+3}], v5, s[{SRD_WS}:{SRD_WS+3}], s{80+b} offen sc1")
        for aa in range(4):
            a(f"buffer_load_dwordx4 v[{fb+16+4*aa}:{fb+16+4*aa+3}], v5, s[{SRD_WS}:{SRD_WS+3}], s84 offen offset:{1024*aa} sc1")
        a(f"""
        s_add_u32 s80, s80, 1024
        s_add_u32 s81, s81, 1024
        s_add_u32 s82, s82, 1024
        s_add_u32 s83, s83, 1024
        s_add_u32 s84, s84, 32768
        """)
    for jj in range(NS - 1):
        issue(jj)
    for jj in range(14):
        if jj + NS - 1 < 14:
            issue(jj + NS - 1)
        outstanding = min(NS - 1, 13 - jj)
        a(f"s_waitcnt vmcnt({8*outstanding})")
        fb = ST3[jj % NS]
        for aa in range(4):
            for b in range(4):
                r = ACC + (aa * 4 + b) * 4
                cc = "0" if jj == 0 else f"v[{r}:{r+3}]"
                a(f"v_mfma_f32_16x16x32_bf16 v[{r}:{r+3}], v[{fb+16+4*aa}:{fb+16+4*aa+3}], v[{fb+4*b}:{fb+4*b+3}], {cc}")
    stamp(a, 24)
    a(f"""
    s_lshl_b32 s76, s3, 14
    s_add_u32 s76, s76, {G2P}
    v_add_u32 v6, s76, v5
    """)
    for i in range(16):
        a(f"ds_write_b128 v6, v[{ACC+4*i}:{ACC+4*i+3}] offset:{1024*i}")
    a("s_waitcnt lgkmcnt(0)")


def final(a, waitC=None):
    a(f"""
    s_lshr_b32 s76, s3, 1                ; aa
    s_lshl_b32 s77, s3, 1
    s_and_b32 s77, s77, 3                ; b0
    s_lshl_b32 s78, s4, 6
    s_lshl_b32 s79, s77, 4
    s_add_u32 s78, s78, s79
    s_lshl_b32 s78, s78, 10
    s_lshl_b32 s79, s5, 7                ; 64dd*2
    s_add_u32 s78, s78, s79
    s_lshl_b32 s79, s76, 5               ; 16aa*2
    s_add_u32 s78, s78, s79
    s_add_u32 s79, s78, 16384            ; b0+1
    v_lshlrev_b32 v7, 10, v2
    v_lshl_add_u32 v7, v3, 3, v7         ; t*1024 + 4q*2
    buffer_load_dwordx2 v[10:11], v7, s[{SRD_X}:{SRD_X+3}], s78 offen
    buffer_load_dwordx2 v[12:13], v7, s[{SRD_X}:{SRD_X+3}], s79 offen
    """)
    if waitC:
        waitC(a)
    a(f"""
    v_lshrrev_b32 v8, 4, v0              ; d local 0..31
    v_and_b32 v9, 15, v0                 ; piece
    v_lshlrev_b32 v14, 12, v8
    v_lshl_add_u32 v14, v9, 3, v14
    s_lshl_b32 s80, s5, 18               ; 64dd*4096
    s_lshl_b32 s81, s4, 7                ; 64tt*2
    s_add_u32 s80, s80, s81
    s_add_u32 s80, s80, {S_OFF}
    s_add_u32 s81, s80, {32*4096}
    buffer_load_dwordx2 v[16:17], v14, s[{SRD_WS}:{SRD_WS+3}], s80 offen sc1
    buffer_load_dwordx2 v[18:19], v14, s[{SRD_WS}:{SRD_WS+3}], s81 offen sc1
    v_mul_u32_u24 v15, {SROW}, v8
    v_lshl_add_u32 v15, v9, 3, v15
    v_add_u32 v15, {STILE}, v15
    s_waitcnt vmcnt(0)
    ds_write_b64 v15, v[16:17]
    ds_write_b64 v15, v[18:19] offset:{32*SROW}
    s_waitcnt lgkmcnt(0)
    s_barrier
    s_lshl_b32 s80, s3, 11
    s_add_u32 s80, s80, {G2P}
    v_lshl_add_u32 v20, v1, 4, s80
    """)
    for i in range(2):
        for kq in range(4):
            r = 32 + (i * 4 + kq) * 4
            a(f"ds_read_b128 v[{r}:{r+3}], v20 offset:{kq*16384 + i*1024}")
    a(f"""
    v_lshlrev_b32 v21, 2, v3
    s_lshl_b32 s80, s76, 4
    v_add_u32 v21, s80, v21
    v_mul_u32_u24 v21, {SROW}, v21
    v_lshl_add_u32 v21, v2, 1, v21
    s_lshl_b32 s80, s77, 5
    s_add_u32 s80, s80, {STILE}
    v_add_u32 v21, s80, v21
    """)
    for i in range(2):
        for e in range(4):
            a(f"ds_read_u16 v{64+4*i+e}, v21 offset:{e*SROW + 32*i}")
    a(f"s_mov_b32 s82, {NLOG2E}\n s_waitcnt lgkmcnt(0)")
    for i in range(2):
        b0 = 32 + i * 16
        for e in range(4):
            a(f"""
            v_add_f32 v{b0+e}, v{b0+e}, v{b0+4+e}
            v_add_f32 v{b0+8+e}, v{b0+8+e}, v{b0+12+e}
            v_add_f32 v{b0+e}, v{b0+e}, v{b0+8+e}
            """)
        for pr in range(2):
            o0, o1 = b0 + 2 * pr, b0 + 2 * pr + 1
            s0, s1 = 64 + 4 * i + 2 * pr, 64 + 4 * i + 2 * pr + 1
            xx = 10 + 2 * i + pr
            a(f"""
            v_cvt_pk_bf16_f32 v22, v{o0}, v{o1}
            v_lshlrev_b32 v23, 16, v22
            v_and_b32 v24, 0xffff0000, v22
            v_mul_f32 v25, s82, v23
            v_mul_f32 v26, s82, v24
            v_exp_f32 v25, v25
            v_exp_f32 v26, v26
            v_lshlrev_b32 v{s0}, 16, v{s0}
            v_lshlrev_b32 v{s1}, 16, v{s1}
            v_add_f32 v25, 1.0, v25
            v_add_f32 v26, 1.0, v26
            v_rcp_f32 v25, v25
            v_rcp_f32 v26, v26
            s_nop 0
            v_mul_f32 v25, v25, v23
            v_mul_f32 v26, v26, v24
            v_cvt_pk_bf16_f32 v22, v25, v26
            v_lshlrev_b32 v23, 16, v22
            v_and_b32 v24, 0xffff0000, v22
            v_mul_f32 v23, v23, v{s0}
            v_mul_f32 v24, v24, v{s1}
            v_cvt_pk_bf16_f32 v22, v23, v24
            v_lshlrev_b32 v23, 16, v22
            v_and_b32 v24, 0xffff0000, v22
            v_lshlrev_b32 v25, 16, v{xx}
            v_and_b32 v26, 0xffff0000, v{xx}
            v_add_f32 v23, v23, v25
            v_add_f32 v24, v24, v26
            v_cvt_pk_bf16_f32 v{28+2*i+pr}, v23, v24
            """)
        a(f"buffer_store_dwordx2 v[{28+2*i}:{29+2*i}], v7, s[{SRD_OUT}:{SRD_OUT+3}], s{78+i} offen")


def k3(a):
    gemm2_map(a)
    a("s_cmp_ge_u32 s3, 4\n s_cbranch_scc1 Lk3_skip")
    gemm2_main(a)
    a("Lk3_skip:")
    stamp(a, 2)
    final(a)
    stamp(a, 3)
    a("s_waitcnt vmcnt(0)")
    stamp(a, 4)
    stamp_flush(a, 2)
```

```python
from gen import *

F32 = lambda x: hex(__import__("struct").unpack("<I", __import__("struct").pack("<f", x))[0])

S_ISC = 90
S_DEBUG = False

KP = 48
def kgen_issue(a):
    t = ST
    n = 0
    a(f"""
    v_lshlrev_b32 v62, 2, v1
    v_mov_b32 v63, 0
    s_lshl_b32 s{t}, s2, 9            ; (2wg)*256
    s_add_u32 s{t+1}, s{t}, 256
    s_lshl_b32 s{t+2}, s2, 2
    """)
    for i in range(6):
        q = SRD_T0 if i % 2 == 0 else SRD_T1
        srd(a, q, 1 + i, 512 * 128 * 2)
        a(f"""
        buffer_load_dword v{KP+i}, v62, s[{q}:{q+3}], s{t} offen
        buffer_load_dword v{KP+6+i}, v62, s[{q}:{q+3}], s{t+1} offen
        """)
        n += 2
    srd(a, SRD_T0, 7, 1024)
    a(f"buffer_load_dword v60, v63, s[{SRD_T0}:{SRD_T0+3}], s{t+2} offen")
    srd(a, SRD_T1, 8, 1024)
    a(f"buffer_load_dword v61, v63, s[{SRD_T1}:{SRD_T1+3}], s{t+2} offen")
    n += 2
    return n


def cmul(a, R, X, Y, T):
    a(f"""
    v_pk_mul_f32 v[{T}:{T+1}], v[{X}:{X+1}], v[{Y}:{Y+1}] op_sel:[0,0] op_sel_hi:[1,0]
    v_pk_fma_f32 v[{R}:{R+1}], v[{X}:{X+1}], v[{Y}:{Y+1}], v[{T}:{T+1}] op_sel:[1,1,0] op_sel_hi:[0,1,1] neg_lo:[1,0,0]
    """)


def direct(a, R, s_l, A2, WV, t0):
    a(f"""
    v_mul_f32 v{t0}, s{s_l}, v{A2}
    v_mul_f32 v{t0+1}, s{s_l}, v{WV}
    v_exp_f32 v{t0}, v{t0}
    v_fract_f32 v{t0+1}, v{t0+1}
    v_cos_f32 v{t0+2}, v{t0+1}
    v_sin_f32 v{t0+3}, v{t0+1}
    v_mul_f32 v{R}, v{t0}, v{t0+2}
    v_mul_f32 v{R+1}, v{t0}, v{t0+3}
    """)


def kgen_setup(a):
    a(f"""
    s_and_b32 s76, s3, 1                 ; nh
    s_lshl_b32 s77, s76, 4
    s_lshr_b32 s78, s3, 1                ; part p
    s_mov_b32 s79, 0                     ; base_f
    s_mov_b32 s80, {F32(16.0)}           ; stride_f
    s_mov_b32 s81, 0                     ; r0_f
    s_mov_b32 s82, 1.0                   ; dr_f
    s_cmp_eq_u32 s78, 1
    s_cselect_b32 s79, {F32(256.0)}, s79
    s_cselect_b32 s81, {F32(8.0)}, s81
    s_cmp_eq_u32 s78, 2
    s_cselect_b32 s79, {F32(512.0)}, s79
    s_cselect_b32 s80, {F32(32.0)}, s80
    s_cselect_b32 s81, {F32(16.0)}, s81
    s_cselect_b32 s82, 4.0, s82
    s_cmp_eq_u32 s78, 3
    s_cselect_b32 s79, {F32(1024.0)}, s79
    s_cselect_b32 s80, {F32(64.0)}, s80
    s_cselect_b32 s81, {F32(32.0)}, s81
    s_cselect_b32 s82, {F32(8.0)}, s82
    s_cmp_eq_u32 s76, 1
    s_cselect_b64 s[84:85], -1, 0
    s_lshl_b32 s86, s76, 8               ; nh*64*4
    s_mul_i32 s87, s78, {8*TROW}
    s_add_u32 s86, s86, {TAB}
    s_add_u32 s87, s87, s86              ; V base
    s_mul_i32 s88, s78, {16*TROW}
    s_add_u32 s88, s88, s86
    s_add_u32 s88, s88, {32*TROW}        ; U base
    v_lshl_add_u32 v64, v1, 2, s87       ; v_tabV
    v_lshl_add_u32 v65, v1, 2, s88       ; v_tabU
    s_mov_b32 s92, 0                     ; seg
    s_cmp_ge_u32 s3, 1
    s_cselect_b32 s92, 1, s92
    s_cmp_ge_u32 s3, 2
    s_cselect_b32 s92, 2, s92
    s_cmp_ge_u32 s3, 4
    s_cselect_b32 s92, 3, s92
    s_lshl_b32 s93, 128, s92             ; base
    s_cmp_eq_u32 s92, 0
    s_cselect_b32 s93, 0, s93
    s_lshl_b32 s94, 8, s92               ; stride
    s_max_u32 s94, s94, 16
    s_lshl_b32 s95, 1, s92
    s_lshr_b32 s95, s95, 1
    s_sub_u32 s95, s3, s95               ; sub
    s_lshl_b32 s95, s95, 4               ; 16*sub
    s_add_u32 s96, s93, s95
    v_add_u32 v66, s96, v2               ; L
    v_cvt_f32_u32 v66, v66
    v_cvt_pk_bf16_f32 v66, v66, v66
    v_lshlrev_b32 v66, 16, v66
    v_cvt_u32_f32 v66, v66
    v_subrev_u32 v66, s93, v66           ; r
    v_lshrrev_b32 v67, 2, v66
    v_add_u32 v67, 12, v67
    v_lshrrev_b32 v68, 3, v66
    v_add_u32 v68, 20, v68
    v_cmp_lt_u32 vcc, 32, v66
    v_cndmask_b32 v67, v67, v68, vcc
    v_cmp_gt_u32 vcc, 16, v66
    v_cndmask_b32 v66, v67, v66, vcc     ; idx
    v_mul_u32_u24 v66, {TROW}, v66
    v_lshl_add_u32 v66, v3, 4, v66
    v_add_u32 v66, {TAB}, v66            ; v_va
    s_lshl_b32 s97, s92, 4
    s_add_u32 s97, s97, 32
    v_add_u32 v67, s97, v2
    v_mul_u32_u24 v67, {TROW}, v67
    v_lshl_add_u32 v67, v3, 4, v67
    v_add_u32 v67, {TAB}, v67            ; v_ua
    v_mul_lo_u32 v68, v2, s94
    v_lshl_add_u32 v68, v3, 2, v68
    v_add_u32 v68, s96, v68
    v_lshlrev_b32 v68, 1, v68
    v_add_u32 v68, {KCP + 32}, v68
    v_lshrrev_b32 v69, 4, v1             ; cp
    v_mul_u32_u24 v69, {KCOPY}, v69
    v_lshl_add_u32 v69, v2, 2, v69
    s_mul_i32 s98, s3, {KCH}
    s_add_u32 s98, s98, {KCP}
    v_add_u32 v69, s98, v69
    v_mov_b32 v70, 0
    s_cmp_ge_u32 s3, 2
    s_cbranch_scc1 Lkz_skip
    ds_write_b32 v69, v70
Lkz_skip:
    """)


def kgen_channel(a, c, pre_barrier=None, post_barrier=None, pre_last_barrier=None):
    pb = KP + 6 * c
    AR, AI, BR, BI, CR, CI = range(pb, pb + 6)
    a(f"""
    ; dt
    {"v_lshlrev_b32 v72, 16, v60" if c == 0 else "v_and_b32 v72, 0xffff0000, v60"}
    v_mul_f32 v72, {LOG2E}, v72
    v_exp_f32 v72, v72
    s_nop 0
    v_cvt_pk_bf16_f32 v72, v72, v72
    v_lshlrev_b32 v72, 16, v72            ; dt
    v_lshlrev_b32 v74, 16, v{BR}
    v_and_b32 v75, 0xffff0000, v{BR}
    v_lshlrev_b32 v76, 16, v{BI}
    v_and_b32 v77, 0xffff0000, v{BI}
    v_lshlrev_b32 v78, 16, v{CR}
    v_and_b32 v79, 0xffff0000, v{CR}
    v_lshlrev_b32 v80, 16, v{CI}
    v_and_b32 v81, 0xffff0000, v{CI}
    v_mul_f32 v74, v72, v74
    v_mul_f32 v75, v72, v75
    v_mul_f32 v76, v72, v76
    v_mul_f32 v77, v72, v77
    ; W0 = (v82,v83)  W1 = (v84,v85)
    v_mul_f32 v82, v78, v74
    v_mul_f32 v83, v78, v76
    v_mul_f32 v84, v79, v75
    v_mul_f32 v85, v79, v77
    v_fma_f32 v82, -v80, v76, v82
    v_fma_f32 v83, v80, v74, v83
    v_fma_f32 v84, -v81, v77, v84
    v_fma_f32 v85, v81, v75, v85
    v_max3_f32 v86, abs(v82), abs(v83), abs(v84)
    v_max_f32 v86, abs(v85), v86
    """)
    allreduce(a, 86, 87, "v_max_f32")
    a(f"""
    v_lshrrev_b32 v86, 23, v86
    v_max_u32 v86, 8, v86
    v_min_u32 v86, 250, v86
    v_sub_u32 v87, 261, v86
    v_lshlrev_b32 v87, 23, v87            ; scale
    v_subrev_u32 v86, 7, v86
    v_lshlrev_b32 v86, 23, v86
    v_readfirstlane_b32 s{S_ISC+c}, v86
    v_cndmask_b32 v82, v82, v84, s[84:85]
    v_cndmask_b32 v83, v83, v85, s[84:85]
    v_mul_f32 v82, v82, v87
    v_mul_f32 v83, v83, v87               ; W' = v[82:83]
    v_lshrrev_b32 v74, s77, v{AR}
    v_lshlrev_b32 v74, 16, v74
    v_lshrrev_b32 v75, s77, v{AI}
    v_lshlrev_b32 v75, 16, v75
    v_mul_f32 v74, v72, v74
    v_mul_f32 v75, v72, v75
    v_mul_f32 v74, {LOG2E}, v74           ; a2
    v_mul_f32 v75, {INV2PI}, v75          ; wv
    """)
    A2, WV = 74, 75
    direct(a, 88, 81, A2, WV, 100)
    direct(a, 90, 82, A2, WV, 104)
    direct(a, 92, 79, A2, WV, 108)
    direct(a, 94, 80, A2, WV, 112)
    cmul(a, 96, 82, 92, 116)
    cmul(a, 98, 96, 94, 118)
    cmul(a, 92, 94, 94, 120)
    a(f"""
    v_cvt_pk_f16_f32 v122, v88, v89
    ds_write_b32 v64, v122 offset:0
    v_cvt_pk_f16_f32 v123, v96, -v97
    ds_write_b32 v65, v123 offset:0
    v_cvt_pk_f16_f32 v124, v98, -v99
    ds_write_b32 v65, v124 offset:{TROW}
    """)
    for j in range(1, 8):
        cmul(a, 88, 88, 90, 116)
        cmul(a, 96, 96, 92, 118)
        cmul(a, 98, 98, 92, 120)
        a(f"""
        v_cvt_pk_f16_f32 v122, v88, v89
        ds_write_b32 v64, v122 offset:{j*TROW}
        v_cvt_pk_f16_f32 v123, v96, -v97
        ds_write_b32 v65, v123 offset:{2*j*TROW}
        v_cvt_pk_f16_f32 v124, v98, -v99
        ds_write_b32 v65, v124 offset:{(2*j+1)*TROW}
        """)
    if pre_barrier:
        a(pre_barrier)
    a("s_waitcnt lgkmcnt(0)\n s_barrier")
    if post_barrier:
        post_barrier(a)
    stamp(a, 3 + 2 * c)
    for s in range(8):
        a(f"""
        ds_read_b128 v[{128+8*s}:{131+8*s}], v66 offset:{64*s}
        ds_read_b128 v[{132+8*s}:{135+8*s}], v67 offset:{64*s}
        """)
    for s in range(8):
        a(f"s_waitcnt lgkmcnt({14-2*s})")
        cc = "0" if s == 0 else "v[124:127]"
        a(f"v_mfma_f32_16x16x32_f16 v[124:127], v[{128+8*s}:{131+8*s}], v[{132+8*s}:{135+8*s}], {cc}")
    o = c * KCH
    a(f"""
    v_cvt_pk_f16_f32 v116, v124, v125
    v_cvt_pk_f16_f32 v117, v126, v127
    v_alignbit_b32 v118, v117, v116, 16
    ds_write_b64 v68, v[116:117] offset:{o}
    ds_write_b16 v68, v116 offset:{o + KCOPY + 2}
    ds_write_b32 v68, v118 offset:{o + KCOPY + 4}
    ds_write_b16_d16_hi v68, v117 offset:{o + KCOPY + 8}
    ds_write_b32 v68, v116 offset:{o + 2*KCOPY + 4}
    ds_write_b32 v68, v117 offset:{o + 2*KCOPY + 8}
    ds_write_b16 v68, v116 offset:{o + 3*KCOPY + 6}
    ds_write_b32 v68, v118 offset:{o + 3*KCOPY + 8}
    ds_write_b16_d16_hi v68, v117 offset:{o + 3*KCOPY + 12}
    s_waitcnt lgkmcnt(0)
    """)
    if pre_last_barrier:
        pre_last_barrier(a)
    a("s_barrier")


def kgen(a, vm_after):
    kgen_setup(a)
    a(f"s_waitcnt vmcnt({vm_after})")
    a("v_readfirstlane_b32 s89, v61")
    stamp(a, 2)
    kgen_channel(a, 0)
    stamp(a, 4)
    kgen_channel(a, 1)


def kdump(a):
    a(f"""
    v_lshlrev_b32 v10, 3, v0
    v_add_u32 v11, {KCP + 32}, v10
    ds_read_b64 v[12:13], v11
    ds_read_b64 v[14:15], v11 offset:{KCH}
    s_lshl_b32 s76, s2, 13
    s_add_u32 s76, s76, {DBG_OFF}
    s_add_u32 s77, s76, 4096
    s_waitcnt lgkmcnt(0)
    buffer_store_dwordx2 v[12:13], v10, s[{SRD_WS}:{SRD_WS+3}], s76 offen
    buffer_store_dwordx2 v[14:15], v10, s[{SRD_WS}:{SRD_WS+3}], s77 offen
    v_mov_b32 v16, s{S_ISC}
    v_mov_b32 v17, s{S_ISC+1}
    v_mov_b32 v18, 0
    s_lshl_b32 s76, s2, 3
    s_add_u32 s76, s76, {DBG_OFF + (4 << 20)}
    buffer_store_dwordx2 v[16:17], v18, s[{SRD_WS}:{SRD_WS+3}], s76 offen
    """)


def conv(a, signal=None):
    a(f"""
    s_sub_u32 s76, s3, 4                  ; cw
    s_and_b32 s77, s76, 1                 ; c
    s_lshr_b32 s78, s76, 1                ; rh
    s_lshl_b32 s79, s2, 1
    s_add_u32 s79, s79, s77               ; d
    s_lshl_b32 s80, s79, 12
    s_add_u32 s81, s80, {XT_OFF}
    v_lshlrev_b32 v5, 4, v1
    buffer_load_dwordx4 v[10:13], v5, s[{SRD_WS}:{SRD_WS+3}], s81 offen sc1
    buffer_load_dwordx4 v[14:17], v5, s[{SRD_WS}:{SRD_WS+3}], s81 offen offset:1024 sc1
    buffer_load_dwordx4 v[18:21], v5, s[{SRD_WS}:{SRD_WS+3}], s81 offen offset:2048 sc1
    buffer_load_dwordx4 v[22:25], v5, s[{SRD_WS}:{SRD_WS+3}], s81 offen offset:3072 sc1
    s_mul_i32 s82, s76, {XRW}
    s_add_u32 s82, s82, {XR}
    v_add_u32 v6, s82, v5
    v_mov_b32 v26, 0
    v_mov_b32 v27, 0
    v_mov_b32 v28, 0
    v_mov_b32 v29, 0
    ds_write_b128 v6, v[26:29] offset:4096
    v_sub_u32 v7, 3, v2
    v_and_b32 v7, 3, v7                   ; cp
    v_mul_u32_u24 v8, {KCOPY}, v7
    v_add_u32 v7, v7, v2                  ; cp+b
    v_lshlrev_b32 v9, 3, v3
    v_sub_u32 v7, v7, v9                  ; cp+b-8kg
    v_lshl_add_u32 v8, v7, 1, v8
    s_mul_i32 s83, s77, {KCH}
    s_lshl_b32 s84, s78, 8
    s_add_u32 s83, s83, s84
    s_add_u32 s83, s83, {KCP + 50}
    v_add_u32 v8, s83, v8                 ; v_ka
    v_lshlrev_b32 v9, 5, v2
    v_lshl_add_u32 v9, v3, 4, v9
    s_add_u32 s85, s82, s84
    s_add_u32 s85, s85, 528
    v_sub_u32 v9, s85, v9                 ; v_xb
    s_waitcnt vmcnt(0)
    ds_write_b128 v6, v[10:13]
    ds_write_b128 v6, v[14:17] offset:1024
    ds_write_b128 v6, v[18:21] offset:2048
    ds_write_b128 v6, v[22:25] offset:3072
    s_waitcnt lgkmcnt(0)
    """)
    stamp(a, 21)
    ACC = 32
    FR = [64, 128]
    def loads(rr, fb):
        L = []
        for q in range(8):
            s = 8 * q + rr
            L.append(f"ds_read_b64 v[{fb+4*q}:{fb+4*q+1}], v8 offset:{64*s}")
            L.append(f"ds_read_b64 v[{fb+4*q+2}:{fb+4*q+3}], v8 offset:{64*s+8}")
            m = 8 * q - rr
            L.append(f"ds_read_b128 v[{fb+32+4*q}:{fb+32+4*q+3}], v9 offset:{64*(56-m)}")
        return L
    for l in loads(0, FR[0]):
        a(l)
    for rr in range(4):
        fb = FR[rr & 1]
        nxt = loads(rr + 1, FR[(rr + 1) & 1]) if rr < 3 else []
        a("s_waitcnt lgkmcnt(0)")
        for i in range(8):
            for q in range(i + 1):
                p = i - q
                cc = "0" if rr == 0 and q == 0 else f"v[{ACC+4*i}:{ACC+4*i+3}]"
                a(f"v_mfma_f32_16x16x32_f16 v[{ACC+4*i}:{ACC+4*i+3}], v[{fb+4*q}:{fb+4*q+3}], v[{fb+32+4*p}:{fb+32+4*p+3}], {cc}")
                if nxt:
                    a(nxt.pop(0))
    stamp(a, 22)
    a(f"""
    s_lshl_b32 s84, s76, 12
    s_add_u32 s84, s84, {CEX}
    v_add_u32 v6, s84, v5
    s_xor_b32 s85, s76, 2
    s_lshl_b32 s86, s85, 12
    s_add_u32 s86, s86, {CEX}
    v_add_u32 v7, s86, v5
    s_lshl_b32 s86, s76, 2
    s_add_u32 s86, s86, {MISC}
    v_mov_b32 v10, s86
    s_lshl_b32 s86, s85, 2
    s_add_u32 s86, s86, {MISC}
    v_mov_b32 v11, s86
    v_mov_b32 v12, 1
    s_nop 7
    s_cmp_eq_u32 s78, 0
    s_cbranch_scc0 Lcx_rh1
    """)
    for i in range(4):
        a(f"ds_write_b128 v6, v[{ACC+16+4*i}:{ACC+19+4*i}] offset:{1024*i}")
    for i in range(16):
        a(f"v_mov_b32 v{64+i}, v{ACC+i}")
    a("s_branch Lcx_join\nLcx_rh1:")
    for i in range(4):
        a(f"ds_write_b128 v6, v[{ACC+4*i}:{ACC+3+4*i}] offset:{1024*i}")
    for i in range(16):
        a(f"v_mov_b32 v{64+i}, v{ACC+16+i}")
    a(f"""
Lcx_join:
    s_waitcnt lgkmcnt(0)
    ds_write_b32 v10, v12
    s_mov_b32 s99, 0
Lcx_poll:
    ds_read_b32 v13, v11
    s_waitcnt lgkmcnt(0)
    v_readfirstlane_b32 s86, v13
    s_add_u32 s99, s99, 1
    s_cmp_gt_u32 s99, 0x100000
    s_cbranch_scc1 Lcx_out
    s_cmp_eq_u32 s86, 0
    s_cbranch_scc1 Lcx_poll
Lcx_out:
    """)
    for i in range(4):
        a(f"ds_read_b128 v[{80+4*i}:{83+4*i}], v7 offset:{1024*i}")
    a(f"""
    v_lshlrev_b32 v14, 4, v2
    v_lshl_add_u32 v14, v3, 2, v14        ; 16a'+4q
    s_lshl_b32 s86, s78, 10               ; 1024*rh
    v_add_u32 v14, s86, v14               ; t0 for j=0
    v_lshlrev_b32 v15, 1, v14
    s_sub_u32 s87, 0, 0
    s_add_u32 s87, s82, {4088 - 1536}
    v_sub_u32 v16, s87, v15
    """)
    for j in range(4):
        a(f"ds_read_b64 v[{96+2*j}:{97+2*j}], v16 offset:{(3-j)*512}")
    stamp(a, 23)
    a(f"""
    s_lshl_b32 s86, s77, 4
    s_lshr_b32 s86, s89, s86
    s_lshl_b32 s86, s86, 16               ; Dskip f32
    s_cmp_eq_u32 s77, 0
    s_cselect_b32 s87, s{S_ISC}, s{S_ISC+1}
    s_add_u32 s88, s80, {S_OFF}
    s_waitcnt lgkmcnt(0)
    """)
    for j in range(4):
        for e in range(4):
            r = 64 + 4 * j + e
            a(f"v_add_f32 v{r}, v{r}, v{80+4*j+e}\n v_mul_f32 v{r}, s87, v{r}")
        x0, x1 = 96 + 2 * j, 97 + 2 * j
        r = 64 + 4 * j
        a(f"""
        v_cvt_f32_f16 v20, v{x1}
        v_lshrrev_b32 v21, 16, v{x1}
        v_cvt_f32_f16 v21, v21            ; x(t0)
        v_cvt_f32_f16 v22, v{x0}          ; x(t0+3)
        v_lshrrev_b32 v23, 16, v{x0}
        v_cvt_f32_f16 v23, v23            ; x(t0+2)
        v_mul_f32 v21, s86, v21
        v_mul_f32 v20, s86, v20           ; x(t0+1)
        v_mul_f32 v23, s86, v23
        v_mul_f32 v22, s86, v22
        v_cvt_pk_bf16_f32 v24, v21, v20
        v_cvt_pk_bf16_f32 v25, v23, v22
        v_cvt_pk_bf16_f32 v26, v{r}, v{r+1}
        v_cvt_pk_bf16_f32 v27, v{r+2}, v{r+3}
        v_lshlrev_b32 v20, 16, v24
        v_and_b32 v21, 0xffff0000, v24
        v_lshlrev_b32 v22, 16, v25
        v_and_b32 v23, 0xffff0000, v25
        v_lshlrev_b32 v28, 16, v26
        v_and_b32 v29, 0xffff0000, v26
        v_lshlrev_b32 v30, 16, v27
        v_and_b32 v31, 0xffff0000, v27
        v_add_f32 v20, v20, v28
        v_add_f32 v21, v21, v29
        v_add_f32 v22, v22, v30
        v_add_f32 v23, v23, v31
        v_cvt_pk_bf16_f32 v{104+2*j}, v20, v21
        v_cvt_pk_bf16_f32 v{105+2*j}, v22, v23
        buffer_store_dwordx2 v[{104+2*j}:{105+2*j}], v15, s[{SRD_WS}:{SRD_WS+3}], s88 offen offset:{512*j} sc1
        """)
    if signal:
        signal(a)


def k2(a, stage):
    n = kgen_issue(a)
    a(f"""
    v_mov_b32 v200, {MISC}
    v_mov_b32 v201, 0
    v_lshl_add_u32 v200, v2, 2, v200
    ds_write_b32 v200, v201
    """)
    if stage >= 3:
        import gemm
        nd = gemm.gemm1_prefetch(a, 2)
    else:
        nd = 0
    stamp(a, 1)
    kgen(a, nd)
    stamp(a, 6)
    kdump(a)
    stamp(a, 7)
    if stage >= 3:
        gemm.gemm1(a, wait=None)
    stamp(a, 20)
    a("s_barrier")
    a("s_cmp_lt_u32 s3, 4\n s_cbranch_scc1 Lk2_done")
    conv(a)
    stamp(a, 25)
    a("Lk2_done:\n s_waitcnt vmcnt(0)")
    stamp(a, 26)
    stamp_flush(a, 1)


def k3(a):
    import gemm
    gemm.k3(a)


def poll(a, lane_off_expr_vreg, target, tmpv, label, nl=1):
    a(f"""
    s_mov_b32 s99, 0
{label}:
    buffer_load_dword v{tmpv}, v{lane_off_expr_vreg}, s[{SRD_WS}:{SRD_WS+3}], 0 offen sc1
    s_waitcnt vmcnt(0)
    v_cmp_gt_u32 vcc, {target}, v{tmpv}
    s_cbranch_vccz {label}_ok
    s_sleep 2
    s_add_u32 s99, s99, 1
    s_cmp_lt_u32 s99, 0x8000
    s_cbranch_scc1 {label}
{label}_ok:
    """)


def atomic_inc(a, s_off, v1, v2):
    a(f"""
    v_mov_b32 v{v1}, s{s_off}
    v_mov_b32 v{v2}, 1
    s_mov_b64 exec, 1
    buffer_atomic_add v{v2}, v{v1}, s[{SRD_WS}:{SRD_WS+3}], 0 offen sc1
    s_mov_b64 exec, -1
    """)


def build_fused():
    import gemm
    a = Asm()
    name = KNAME
    prologue(a, name)
    a(f"""
    s_cmp_lg_u32 s2, 0
    s_cbranch_scc1 Linit_skip
    s_cmp_lg_u32 s3, 0
    s_cbranch_scc1 Linit_skip
    v_lshlrev_b32 v5, 8, v1
    v_mov_b32 v6, 0
    buffer_store_dword v6, v5, s[{SRD_WS}:{SRD_WS+3}], 0 offen sc1
    s_waitcnt vmcnt(0)
    v_mov_b32 v7, 1
    s_mov_b64 exec, 1
    buffer_store_dword v7, v6, s[{SRD_DBG}:{SRD_DBG+3}], 0 offen sc1
    s_mov_b64 exec, -1
Linit_skip:
    """)
    n1 = ln_issue(a)
    n2 = kgen_issue(a)
    a(f"""
    v_mov_b32 v200, {MISC}
    v_mov_b32 v201, 0
    v_lshl_add_u32 v200, v2, 2, v200
    ds_write_b32 v200, v201
    """)
    nd = gemm.gemm1_prefetch(a, 2)
    stamp(a, 1)
    ln_compute(a, n2 + nd)
    stamp(a, 2)
    kgen_setup(a)
    a(f"s_waitcnt vmcnt({nd + 3})")
    a("v_readfirstlane_b32 s89, v61")
    def sigA(a):
        a(f"""
        s_cmp_lg_u32 s3, 0
        s_cbranch_scc1 LsigA_skip
        v_mov_b32 v10, 0
        s_mov_b32 s99, 0
LsigA_poll:
        buffer_load_dword v11, v10, s[{SRD_DBG}:{SRD_DBG+3}], 0 offen sc1
        s_waitcnt vmcnt(0)
        v_readfirstlane_b32 s76, v11
        s_cmp_lg_u32 s76, 0
        s_cbranch_scc1 LsigA_go
        s_sleep 2
        s_add_u32 s99, s99, 1
        s_cmp_lt_u32 s99, 0x8000
        s_cbranch_scc1 LsigA_poll
LsigA_go:
        s_lshr_b32 s76, s2, 4
        s_lshl_b32 s76, s76, 8
        s_add_u32 s76, s76, {CNT_A * 256}
        """)
        atomic_inc(a, 76, 10, 11)
        a("LsigA_skip:")
    kgen_channel(a, 0, pre_barrier="s_waitcnt vmcnt(0)", post_barrier=sigA)
    stamp(a, 4)
    def waitA(a):
        a(f"""
        s_cmp_lg_u32 s3, 0
        s_cbranch_scc1 LwaitA_skip
        s_lshl_b32 s76, s4, 8
        s_add_u32 s76, s76, {CNT_A * 256}
        v_mov_b32 v10, s76
        """)
        poll(a, 10, 16, 11, "LwaitA")
        a("LwaitA_skip:")
    kgen_channel(a, 1, pre_last_barrier=waitA)
    stamp(a, 7)
    vm = gemm.VM()
    gemm.gemm1(a, wait=None, vm=None)
    stamp(a, 20)
    a(f"""
    s_waitcnt vmcnt(0)
    s_barrier
    s_cmp_lg_u32 s3, 0
    s_cbranch_scc1 LsigB_skip
    s_lshl_b32 s76, s4, 8
    s_add_u32 s76, s76, {CNT_B * 256}
    """)
    atomic_inc(a, 76, 10, 11)
    a("LsigB_skip:")
    stamp(a, 21)
    gemm.gemm2_map(a)
    a(f"""
    v_lshlrev_b32 v10, 8, v2
    v_add_u32 v10, {CNT_A * 256}, v10
    """)
    poll(a, 10, 16, 11, "LwaitAall")
    a("s_cmp_ge_u32 s3, 4\n s_cbranch_scc1 Lrole_conv")
    a(f"""
    s_lshr_b32 s76, s4, 1
    s_lshl_b32 s76, s76, 8
    s_add_u32 s76, s76, {CNT_B * 256}
    v_mov_b32 v10, s76
    """)
    poll(a, 10, 16, 11, "LwaitB")
    stamp(a, 22)
    gemm.gemm2_main(a)
    stamp(a, 23)
    a("s_branch Lrole_join\nLrole_conv:")
    def sigC(a):
        a(f"""
        s_waitcnt vmcnt(0)
        v_mov_b32 v10, {MISC + 32}
        v_mov_b32 v11, 1
        s_mov_b64 exec, 1
        ds_add_rtn_u32 v12, v10, v11
        s_waitcnt lgkmcnt(0)
        v_readfirstlane_b32 s76, v12
        s_mov_b64 exec, -1
        s_cmp_lg_u32 s76, 3
        s_cbranch_scc1 LsigC_skip
        s_lshr_b32 s76, s2, 5
        s_lshl_b32 s76, s76, 8
        s_add_u32 s76, s76, {CNT_C * 256}
        """)
        atomic_inc(a, 76, 10, 11)
        a("LsigC_skip:")
    conv(a, signal=sigC)
    stamp(a, 26)
    a("Lrole_join:")
    gemm.gemm2_map(a)
    def waitC(a):
        a(f"""
        s_lshl_b32 s86, s5, 8
        s_add_u32 s86, s86, {CNT_C * 256}
        v_mov_b32 v20, s86
        """)
        poll(a, 20, 32, 21, "LwaitC")
    gemm.final(a, waitC=waitC)
    stamp(a, 30)
    a("s_waitcnt vmcnt(0)")
    stamp(a, 31)
    stamp_flush(a, 0)
    a(f"{name}_exit:\n s_endpgm")
    a.finalize()
    txt = header([f"; @launch grid=(256,1,1) block=(512,1,1) lds={LDS_BYTES}"])
    txt += f".globl {name}\n.p2align 8\n.type {name},@function\n" + a.text()
    txt += '.section .rodata,"a"\n' + kd(name)
    return txt
```

```python
import sys
import dsl
from dsl import Asm

KNAME = "recurrent_scan__ssm_conv_s4__glu_gated_glu__prompt_kernel"

CNT_OFF = 0
CNT_A, CNT_B, CNT_C = 0, 16, 32
XN_OFF = 1 << 20
XT_OFF = 4 << 20
WDT_OFF = 8 << 20
H_OFF = 16 << 20
S_OFF = 32 << 20
DBG_OFF = 64 << 20

SLOT = 28672
RING = 0
TAB = 2 * SLOT
TROW = 528
TAB_ROWS = 96
KCP = TAB + TAB_ROWS * TROW
KCOPY = 4160
KCH = 4 * KCOPY
MISC = KCP + 2 * KCH
XTS = MISC + 256
LDS_BYTES = XTS + 8192
XR = 0
XRW = 5120
CEX = 4 * XRW
G2P = CEX + 4 * 4096
STILE = G2P + 65536
SROW = 144

S_WG, S_WAVE = 2, 3
SRD_X, SRD_WS, SRD_WG, SRD_WU, SRD_OUT, SRD_DBG, SRD_WD, SRD_T0, SRD_T1 = 8, 12, 16, 20, 24, 28, 32, 36, 40
PTR = 44
def P(i): return PTR + 2 * i
ST = 76

LOG2E = 0x3fb8aa3b
NLOG2E = 0xbfb8aa3b
INV2PI = 0x3e22f983


def srd(a, q, ptr_idx, nbytes):
    a(f"""
    s_mov_b32 s{q}, s{P(ptr_idx)}
    s_and_b32 s{q+1}, s{P(ptr_idx)+1}, 0xffff
    s_mov_b32 s{q+2}, {nbytes}
    s_mov_b32 s{q+3}, 0x00020000
    """)


def prologue(a, name):
    a(f"""
{name}:
    s_cmp_ge_u32 s2, 256
    s_cbranch_scc1 {name}_exit
    s_load_dwordx16 s[44:59], s[0:1], 0
    s_load_dwordx16 s[60:75], s[0:1], 64
    v_and_b32 v1, 63, v0
    v_lshrrev_b32 v4, 6, v0
    v_and_b32 v2, 15, v1
    v_lshrrev_b32 v3, 4, v1
    v_readfirstlane_b32 s3, v4
    s_waitcnt lgkmcnt(0)
    """)
    srd(a, SRD_X, 0, 2048 * 512 * 2)
    srd(a, SRD_WS, 15, 256 << 20)
    srd(a, SRD_WG, 10, 512 * 1792 * 2)
    srd(a, SRD_WU, 11, 512 * 1792 * 2)
    srd(a, SRD_OUT, 13, 2048 * 512 * 2)
    srd(a, SRD_DBG, 14, 256)
    srd(a, SRD_WD, 12, 1792 * 512 * 2)
    a("v_mov_b32 v4, 0")
    stamp(a, 0)


STAMPS = False
STAMP_OFF = DBG_OFF + (8 << 20)
def stamp(a, idx):
    if not STAMPS:
        return
    a(f"""
    s_memtime s[100:101]
    s_waitcnt lgkmcnt(0)
    v_writelane_b32 v4, s100, {idx}
    """)

def stamp_flush(a, kidx=0):
    if not STAMPS:
        return
    a(f"""
    s_lshl_b32 s76, s2, 3
    s_add_u32 s76, s76, s3
    s_lshl_b32 s76, s76, 8
    s_add_u32 s76, s76, {STAMP_OFF + kidx * (1 << 20)}
    v_lshlrev_b32 v5, 2, v1
    buffer_store_dword v4, v5, s[{SRD_WS}:{SRD_WS+3}], s76 offen
    """)

def allreduce(a, v, tmp, op="v_add_f32"):
    a(f"""
    {op}_dpp v{v}, v{v}, v{v} quad_perm:[1,0,3,2] row_mask:0xf bank_mask:0xf
    {op}_dpp v{v}, v{v}, v{v} quad_perm:[2,3,0,1] row_mask:0xf bank_mask:0xf
    {op}_dpp v{v}, v{v}, v{v} row_half_mirror row_mask:0xf bank_mask:0xf
    {op}_dpp v{v}, v{v}, v{v} row_mirror row_mask:0xf bank_mask:0xf
    v_mov_b32 v{tmp}, v{v}
    v_permlane16_swap_b32 v{v}, v{tmp}
    {op} v{v}, v{v}, v{tmp}
    v_mov_b32 v{tmp}, v{v}
    v_permlane32_swap_b32 v{v}, v{tmp}
    {op} v{v}, v{v}, v{tmp}
    """)


def bf16r(a, dst, src):
    a(f"""
    v_cvt_pk_bf16_f32 v{dst}, v{src}, v{src}
    v_lshlrev_b32 v{dst}, 16, v{dst}
    """)


def ln_issue(a):
    t = 86
    a(f"""
    s_lshl_b32 s{t}, s2, 3
    s_add_u32 s{t}, s{t}, s3
    s_lshl_b32 s{t+1}, s{t}, 10
    v_lshlrev_b32 v5, 4, v1                ; lane*16
    buffer_load_dwordx4 v[10:13], v5, s[{SRD_X}:{SRD_X+3}], s{t+1} offen
    s_min_u32 s{t+2}, s3, 6
    s_mul_i32 s{t+3}, s2, 7
    s_add_u32 s{t+2}, s{t+2}, s{t+3}       ; id
    s_lshr_b32 s{t+3}, s{t+2}, 5           ; J
    s_and_b32 s{t+4}, s{t+2}, 31           ; Dt
    s_lshl_b32 s{t+3}, s{t+3}, 15          ; J*32 rows*1024B
    s_lshl_b32 s{t+4}, s{t+4}, 5           ; Dt*32B
    s_add_u32 s{t+3}, s{t+3}, s{t+4}
    s_add_u32 s{t+4}, s{t+3}, 16384
    v_lshlrev_b32 v6, 12, v3               ; 4*kg*1024
    v_lshl_add_u32 v6, v2, 1, v6           ; + d*2
    buffer_load_ushort v40, v6, s[{SRD_WD}:{SRD_WD+3}], s{t+3} offen
    buffer_load_ushort v41, v6, s[{SRD_WD}:{SRD_WD+3}], s{t+3} offen offset:1024
    buffer_load_ushort v42, v6, s[{SRD_WD}:{SRD_WD+3}], s{t+3} offen offset:2048
    buffer_load_ushort v43, v6, s[{SRD_WD}:{SRD_WD+3}], s{t+3} offen offset:3072
    buffer_load_ushort v44, v6, s[{SRD_WD}:{SRD_WD+3}], s{t+4} offen
    buffer_load_ushort v45, v6, s[{SRD_WD}:{SRD_WD+3}], s{t+4} offen offset:1024
    buffer_load_ushort v46, v6, s[{SRD_WD}:{SRD_WD+3}], s{t+4} offen offset:2048
    buffer_load_ushort v47, v6, s[{SRD_WD}:{SRD_WD+3}], s{t+4} offen offset:3072
    """)
    return 9


def ln_compute(a, vm_after):
    t = 86
    f = 20
    a(f"s_waitcnt vmcnt({8 + vm_after})")
    for i in range(4):
        a(f"""
        v_lshlrev_b32 v{f+2*i}, 16, v{10+i}
        v_and_b32 v{f+2*i+1}, 0xffff0000, v{10+i}
        """)
    a(f"""
    v_add_f32 v28, v{f}, v{f+1}
    v_add_f32 v29, v{f+2}, v{f+3}
    v_add_f32 v30, v{f+4}, v{f+5}
    v_add_f32 v31, v{f+6}, v{f+7}
    v_add_f32 v28, v28, v29
    v_add_f32 v30, v30, v31
    v_add_f32 v28, v28, v30
    """)
    allreduce(a, 28, 29)
    a("v_mul_f32 v28, 0x3b000000, v28")
    a(f"v_sub_f32 v30, v{f}, v28\n v_mul_f32 v31, v30, v30")
    for i in range(1, 8):
        a(f"v_sub_f32 v30, v{f+i}, v28\n v_fmac_f32 v31, v30, v30")
    allreduce(a, 31, 29)
    a("v_mul_f32 v31, 0x3b000000, v31")
    bf16r(a, 28, 28)
    bf16r(a, 31, 31)
    a("v_add_f32 v31, 0x3727c5ac, v31")
    bf16r(a, 31, 31)
    a("v_sqrt_f32 v31, v31")
    bf16r(a, 31, 31)
    a("v_rcp_f32 v32, v31")
    for i in range(8):
        a(f"v_sub_f32 v{f+i}, v{f+i}, v28")
    for i in range(4):
        a(f"""
        v_cvt_pk_bf16_f32 v33, v{f+2*i}, v{f+2*i+1}
        v_lshlrev_b32 v{f+2*i}, 16, v33
        v_and_b32 v{f+2*i+1}, 0xffff0000, v33
        """)
    for i in range(8):
        a(f"""
        v_mul_f32 v33, v{f+i}, v32
        v_fma_f32 v34, -v33, v31, v{f+i}
        v_fma_f32 v{f+i}, v34, v32, v33
        """)
    for i in range(4):
        a(f"v_cvt_pk_bf16_f32 v{10+i}, v{f+2*i}, v{f+2*i+1}")
    a(f"""
    s_add_u32 s{t+5}, s{t+1}, {XN_OFF}
    buffer_store_dwordx4 v[10:13], v5, s[{SRD_WS}:{SRD_WS+3}], s{t+5} offen sc1
    """)
    a(f"""
    s_sub_u32 s{t+6}, 7, s3
    s_lshl_b32 s{t+6}, s{t+6}, 1
    s_add_u32 s{t+6}, s{t+6}, {XTS}
    v_add_u32 v7, s{t+6}, v5
    """)
    for i in range(4):
        a(f"""
        v_lshlrev_b32 v33, 16, v{10+i}
        v_and_b32 v34, 0xffff0000, v{10+i}
        v_cvt_pk_f16_f32 v{36+i}, v33, v34
        ds_write_b16 v7, v{36+i} offset:{(2*i)*1024}
        ds_write_b16_d16_hi v7, v{36+i} offset:{(2*i+1)*1024}
        """)
    a(f"""
    s_waitcnt vmcnt({1 + vm_after})
    v_lshl_or_b32 v14, v41, 16, v40
    v_lshl_or_b32 v15, v43, 16, v42
    v_lshl_or_b32 v16, v45, 16, v44
    v_lshl_or_b32 v17, v47, 16, v46
    s_lshl_b32 s{t+7}, s{t+2}, 10
    s_add_u32 s{t+7}, s{t+7}, {WDT_OFF}
    buffer_store_dwordx4 v[14:17], v5, s[{SRD_WS}:{SRD_WS+3}], s{t+7} offen sc1
    s_waitcnt lgkmcnt(0)
    s_barrier
    v_lshlrev_b32 v8, 4, v0
    v_add_u32 v8, {XTS}, v8
    ds_read_b128 v[36:39], v8
    v_lshlrev_b32 v9, 15, v1
    s_lshl_b32 s{t+8}, s3, 12
    s_lshl_b32 s{t+9}, s2, 4
    s_sub_u32 s{t+9}, {XT_OFF + 4080}, s{t+9}
    s_add_u32 s{t+8}, s{t+8}, s{t+9}
    s_waitcnt lgkmcnt(0)
    buffer_store_dwordx4 v[36:39], v9, s[{SRD_WS}:{SRD_WS+3}], s{t+8} offen sc1
    """)
    return 3


def kd(name, lds=0):
    return f"""
.p2align 6
.amdhsa_kernel {name}
  .amdhsa_next_free_vgpr 256
  .amdhsa_next_free_sgpr 102
  .amdhsa_accum_offset 256
  .amdhsa_group_segment_fixed_size 0
  .amdhsa_kernarg_size 128
  .amdhsa_user_sgpr_count 2
  .amdhsa_user_sgpr_kernarg_segment_ptr 1
  .amdhsa_system_sgpr_workgroup_id_x 1
.end_amdhsa_kernel
"""


def header(launches):
    h = []
    for l in launches:
        h.append(l)
    h.append('.amdgcn_target "amdgcn-amd-amdhsa--gfx950"')
    h.append(".text")
    return "\n".join(h) + "\n"


def kernel_text(name, body_fn):
    a = Asm()
    prologue(a, name)
    body_fn(a)
    a(f"{name}_exit:\n s_endpgm")
    a.finalize()
    return f".globl {name}\n.p2align 8\n.type {name},@function\n" + a.text()


def build_multi(stage):
    import phases
    ks = []
    def k1(a):
        ln_issue(a)
        stamp(a, 1)
        ln_compute(a, 0)
        stamp(a, 2)
        a("s_waitcnt vmcnt(0)")
        stamp(a, 3)
        stamp_flush(a, 0)
    ks.append(("k1_kernel", k1))
    if stage >= 2:
        ks.append(("k2_kernel", lambda a: phases.k2(a, stage)))
    if stage >= 4:
        ks.append(("k3_kernel", lambda a: phases.k3(a)))
    txt = header([f"; @launch kernel={n} grid=(256,1,1) block=(512,1,1) lds={LDS_BYTES}" for n, _ in ks])
    for n, fn in ks:
        txt += kernel_text(n, fn)
    txt += '.section .rodata,"a"\n'
    for n, _ in ks:
        txt += kd(n)
    return txt


if __name__ == "__main__":
    mode = sys.argv[1]
    out = sys.argv[2]
    if mode.startswith("multi"):
        open(out, "w").write(build_multi(int(mode[5:])))
    else:
        import phases
        open(out, "w").write(phases.build_fused())
```

```python
import sys, struct
from dsl import Asm

KNAME = "recurrent_scan__ssm_conv_s4__glu_gated_glu__prompt_kernel"
STAMPS = True
XSC = " sc1"
GSC = " sc1"

CNT_A, CNT_B, CNT_C, CNT_W = 0, 16, 32, 40
XN_OFF = 1 << 20
XT_OFF = 4 << 20
WDT_OFF = 8 << 20
H_OFF = 16 << 20
S_OFF = 32 << 20
DBG_OFF = 64 << 20
STAMP_OFF = DBG_OFF + (8 << 20)

SLOT = 28672
NSLOT = 4
TAB = 2 * SLOT
TROW = 528
TAB_ROWS = 96
KCP = NSLOT * SLOT
KCOPY = 4416
KCH = 4 * KCOPY
MISC = KCP + 2 * KCH
XTS = KCP
XNS = KCP + 8192
XR = MISC + 256
LDS_BYTES = XR + 10240
XRW = 5120
CEX = 0
G2P = 0
STILE = 131072
SROW = 144

SRD_X, SRD_WS, SRD_WG, SRD_WU, SRD_OUT, SRD_DBG, SRD_WD, SRD_T0, SRD_T1 = 8, 12, 16, 20, 24, 28, 32, 36, 40
PTR = 44
def P(i): return PTR + 2 * i
S_ISC = 90
S_TT, S_DD = 92, 93

LOG2E = 0x3fb8aa3b
NLOG2E = 0xbfb8aa3b
INV2PI = 0x3e22f983
F32 = lambda x: hex(struct.unpack("<I", struct.pack("<f", x))[0])
WS = f"s[{SRD_WS}:{SRD_WS+3}]"


class VM:
    def __init__(self):
        self.ops = []
    def issue(self, tag, n=1):
        self.ops += [tag] * n
    def wait(self, a, tag):
        idx = max(i for i, t in enumerate(self.ops) if t == tag)
        n = len(self.ops) - 1 - idx
        a(f"s_waitcnt vmcnt({min(n, 63)})")
    def copy(self):
        v = VM(); v.ops = list(self.ops); return v


def merged(a, main_fn, side_fn, every, start=0):
    m = Asm(); main_fn(m)
    sd = Asm(); side_fn(sd)
    groups, cur = [], []
    for it in sd.items:
        if isinstance(it, str) and it == "; GROUP":
            groups.append(cur); cur = []
        else:
            cur.append(it)
    if cur:
        groups.append(cur)
    n = 0
    for it in m.items:
        a.items.append(it)
        if isinstance(it, str):
            continue
        n += 1
        if n >= start and (n - start) % every == 0 and groups:
            a.items += groups.pop(0)
    for g in groups:
        a.items += g


def srd(a, q, ptr_idx, nbytes):
    a(f"""
    s_mov_b32 s{q}, s{P(ptr_idx)}
    s_and_b32 s{q+1}, s{P(ptr_idx)+1}, 0xffff
    s_mov_b32 s{q+2}, {nbytes}
    s_mov_b32 s{q+3}, 0x00020000
    """)


def stamp(a, idx):
    if not STAMPS:
        return
    a(f"""
    s_memtime s[100:101]
    s_waitcnt lgkmcnt(0)
    v_writelane_b32 v4, s100, {idx}
    """)


def stamp_flush(a):
    if not STAMPS:
        return
    a(f"""
    s_lshl_b32 s76, s2, 3
    s_add_u32 s76, s76, s3
    s_lshl_b32 s76, s76, 8
    s_add_u32 s76, s76, {STAMP_OFF}
    v_lshlrev_b32 v6, 2, v1
    buffer_store_dword v4, v6, {WS}, s76 offen
    """)


def allreduce(a, v, tmp, op="v_add_f32"):
    a(f"""
    {op}_dpp v{v}, v{v}, v{v} quad_perm:[1,0,3,2] row_mask:0xf bank_mask:0xf
    {op}_dpp v{v}, v{v}, v{v} quad_perm:[2,3,0,1] row_mask:0xf bank_mask:0xf
    {op}_dpp v{v}, v{v}, v{v} row_half_mirror row_mask:0xf bank_mask:0xf
    {op}_dpp v{v}, v{v}, v{v} row_mirror row_mask:0xf bank_mask:0xf
    v_mov_b32 v{tmp}, v{v}
    v_permlane16_swap_b32 v{v}, v{tmp}
    {op} v{v}, v{v}, v{tmp}
    v_mov_b32 v{tmp}, v{v}
    v_permlane32_swap_b32 v{v}, v{tmp}
    {op} v{v}, v{v}, v{tmp}
    """)


def bf16r(a, dst, src):
    a(f"v_cvt_pk_bf16_f32 v{dst}, v{src}, v{src}\n v_lshlrev_b32 v{dst}, 16, v{dst}")


def poll(a, vreg, target, tmpv, label, srdq=SRD_WS):
    a(f"""
    s_mov_b32 s99, 0
{label}:
    buffer_load_dword v{tmpv}, v{vreg}, s[{srdq}:{srdq+3}], 0 offen sc1
    s_waitcnt vmcnt(0)
    v_cmp_gt_u32 vcc, {target}, v{tmpv}
    s_cbranch_vccz {label}_ok
    s_sleep 1
    s_add_u32 s99, s99, 1
    s_cmp_lt_u32 s99, 0x8000
    s_cbranch_scc1 {label}
{label}_ok:
    """)


def atomic_inc(a, s_off, v1, v2):
    a(f"""
    v_mov_b32 v{v1}, s{s_off}
    v_mov_b32 v{v2}, 1
    s_mov_b64 exec, 1
    buffer_atomic_add v{v2}, v{v1}, {WS}, 0 offen sc1
    s_mov_b64 exec, -1
    """)


def wave0(a, label, fn):
    a(f"s_cmp_lg_u32 s3, 0\n s_cbranch_scc1 {label}")
    fn(a)
    a(f"{label}:")


def prologue(a, vm):
    a(f"""
{KNAME}:
    s_cmp_ge_u32 s2, 256
    s_cbranch_scc1 Lexit
    s_load_dwordx16 s[44:59], s[0:1], 0
    s_load_dwordx16 s[60:75], s[0:1], 64
    v_and_b32 v1, 63, v0
    v_lshrrev_b32 v4, 6, v0
    v_and_b32 v2, 15, v1
    v_lshrrev_b32 v3, 4, v1
    v_readfirstlane_b32 s3, v4
    v_lshlrev_b32 v5, 4, v1
    s_lshl_b32 s86, s2, 3
    s_add_u32 s86, s86, s3
    s_lshl_b32 s87, s86, 10
    s_waitcnt lgkmcnt(0)
    """)
    srd(a, SRD_X, 0, 2048 * 512 * 2)
    a(f"buffer_load_dwordx4 v[10:13], v5, s[{SRD_X}:{SRD_X+3}], s87 offen")
    vm.issue("x")
    srd(a, SRD_WS, 15, 256 << 20)
    srd(a, SRD_DBG, 14, 256)
    a("v_mov_b32 v4, 0")
    stamp(a, 0)
    a(f"""
    s_cmp_lg_u32 s2, 0
    s_cbranch_scc1 Linit_skip
    s_cmp_lg_u32 s3, 0
    s_cbranch_scc1 Linit_skip
    v_lshlrev_b32 v6, 8, v1
    v_mov_b32 v7, 0
    buffer_store_dword v7, v6, {WS}, 0 offen sc1
    s_waitcnt vmcnt(0)
    v_mov_b32 v6, 1
    s_mov_b64 exec, 1
    buffer_store_dword v6, v7, s[{SRD_DBG}:{SRD_DBG+3}], 0 offen sc1
    s_mov_b64 exec, -1
Linit_skip:
    """)
    srd(a, SRD_WG, 10, 512 * 1792 * 2)
    srd(a, SRD_WU, 11, 512 * 1792 * 2)
    srd(a, SRD_OUT, 13, 2048 * 512 * 2)
    srd(a, SRD_WD, 12, 1792 * 512 * 2)
    a(f"""
    v_mov_b32 v63, 0
    s_lshl_b32 s76, s2, 12
    s_cmp_eq_u32 s3, 0
    s_cbranch_scc1 Lt0
    s_cmp_eq_u32 s3, 1
    s_cbranch_scc1 Lt1
    s_cmp_eq_u32 s3, 2
    s_cbranch_scc1 Lt2
    s_cmp_eq_u32 s3, 3
    s_cbranch_scc1 Lt3
    s_cmp_eq_u32 s3, 4
    s_cbranch_scc1 Lt4
    s_cmp_eq_u32 s3, 5
    s_cbranch_scc1 Lt5
    s_cmp_eq_u32 s3, 6
    s_cbranch_scc1 Lt6
    buffer_load_dword v250, v63, s[{SRD_OUT}:{SRD_OUT+3}], s76 offen
    s_branch Ltj
Lt0:
    buffer_load_dword v250, v63, s[{SRD_WG}:{SRD_WG+3}], s76 offen
    s_branch Ltj
Lt1:
    buffer_load_dword v250, v63, s[{SRD_WU}:{SRD_WU+3}], s76 offen
    s_branch Ltj
Lt2:
    buffer_load_dword v250, v63, s[{SRD_WD}:{SRD_WD+3}], s76 offen
    s_branch Ltj
Lt3:
    s_mov_b32 s77, {(3 << 20) + (1 << 19)}
    buffer_load_dword v250, v63, {WS}, s77 offen
    s_branch Ltj
Lt4:
    s_mov_b32 s77, {1 << 19}
    buffer_load_dword v250, v63, {WS}, s77 offen
    s_branch Ltj
Lt5:
    s_mov_b32 s77, {WDT_OFF + 1900000}
    buffer_load_dword v250, v63, {WS}, s77 offen
    s_branch Ltj
Lt6:
    s_mov_b32 s77, {H_OFF + (15 << 19)}
    buffer_load_dword v250, v63, {WS}, s77 offen
Ltj:
    """)
    vm.issue("tlb")
    a(f"""
    v_lshlrev_b32 v62, 2, v1
    v_mov_b32 v63, 0
    s_lshl_b32 s76, s2, 9
    s_add_u32 s77, s76, 256
    s_lshl_b32 s78, s2, 2
    """)
    for i in range(6):
        q = SRD_T0 if i % 2 == 0 else SRD_T1
        srd(a, q, 1 + i, 512 * 128 * 2)
        a(f"""
        buffer_load_dword v{48+i}, v62, s[{q}:{q+3}], s76 offen
        buffer_load_dword v{54+i}, v62, s[{q}:{q+3}], s77 offen
        """)
    srd(a, SRD_T0, 7, 1024)
    a(f"buffer_load_dword v60, v63, s[{SRD_T0}:{SRD_T0+3}], s78 offen")
    srd(a, SRD_T1, 8, 1024)
    a(f"buffer_load_dword v61, v63, s[{SRD_T1}:{SRD_T1+3}], s78 offen")
    vm.issue("par", 14)
    a(f"""
    v_mov_b32 v200, {MISC}
    v_mov_b32 v201, 0
    v_lshl_add_u32 v200, v2, 2, v200
    ds_write_b32 v200, v201
    """)


def ln(a, vm):
    f = 20
    vm.wait(a, "x")
    for i in range(4):
        a(f"v_lshlrev_b32 v{f+2*i}, 16, v{10+i}\n v_and_b32 v{f+2*i+1}, 0xffff0000, v{10+i}")
    a(f"""
    v_add_f32 v28, v{f}, v{f+1}
    v_add_f32 v29, v{f+2}, v{f+3}
    v_add_f32 v30, v{f+4}, v{f+5}
    v_add_f32 v31, v{f+6}, v{f+7}
    v_add_f32 v28, v28, v29
    v_add_f32 v30, v30, v31
    v_add_f32 v28, v28, v30
    """)
    allreduce(a, 28, 29)
    a("v_mul_f32 v28, 0x3b000000, v28")
    a(f"v_sub_f32 v30, v{f}, v28\n v_mul_f32 v31, v30, v30")
    for i in range(1, 8):
        a(f"v_sub_f32 v30, v{f+i}, v28\n v_fmac_f32 v31, v30, v30")
    allreduce(a, 31, 29)
    a("v_mul_f32 v31, 0x3b000000, v31")
    bf16r(a, 28, 28)
    bf16r(a, 31, 31)
    a("v_add_f32 v31, 0x3727c5ac, v31")
    bf16r(a, 31, 31)
    a("v_sqrt_f32 v31, v31")
    bf16r(a, 31, 31)
    a("v_rcp_f32 v32, v31")
    for i in range(8):
        a(f"v_sub_f32 v{f+i}, v{f+i}, v28")
    for i in range(4):
        a(f"""
        v_cvt_pk_bf16_f32 v33, v{f+2*i}, v{f+2*i+1}
        v_lshlrev_b32 v{f+2*i}, 16, v33
        v_and_b32 v{f+2*i+1}, 0xffff0000, v33
        """)
    for i in range(8):
        a(f"""
        v_mul_f32 v33, v{f+i}, v32
        v_fma_f32 v34, -v33, v31, v{f+i}
        v_fma_f32 v{f+i}, v34, v32, v33
        """)
    for i in range(4):
        a(f"v_cvt_pk_bf16_f32 v{10+i}, v{f+2*i}, v{f+2*i+1}")
    a(f"""
    s_mul_i32 s91, s3, 1040
    s_add_u32 s91, s91, {XNS}
    v_add_u32 v9, s91, v5
    ds_write_b128 v9, v[10:13]
    v_and_b32 v6, 7, v0
    v_lshrrev_b32 v9, 3, v0
    v_mul_u32_u24 v33, 1040, v6
    v_lshl_add_u32 v33, v9, 4, v33
    v_add_u32 v33, {XNS}, v33
    v_lshlrev_b32 v34, 8, v9
    v_lshl_add_u32 v34, v6, 4, v34
    s_lshr_b32 s91, s2, 1
    s_lshl_b32 s91, s91, 14
    s_and_b32 s92, s2, 1
    s_lshl_b32 s92, s92, 7
    s_add_u32 s91, s91, s92
    s_add_u32 s91, s91, {XN_OFF}
    s_waitcnt lgkmcnt(0)
    s_barrier
    ds_read_b128 v[40:43], v33
    s_waitcnt lgkmcnt(0)
    buffer_store_dwordx4 v[40:43], v34, {WS}, s91 offen sc1
    v_mov_b32 v7, 0
    buffer_load_dword v8, v7, s[{SRD_DBG}:{SRD_DBG+3}], 0 offen sc1
    """)
    vm.issue("lnst", 2)


def wdt_issue(a, vm):
    t = 86
    a(f"""
    s_min_u32 s88, s3, 6
    s_mul_i32 s{t+3}, s2, 7
    s_add_u32 s88, s88, s{t+3}
    s_lshr_b32 s{t+3}, s88, 5              ; J
    s_and_b32 s{t+4}, s88, 31              ; Dt
    s_mul_i32 s{t+5}, s{t+3}, 37
    s_lshr_b32 s{t+5}, s{t+5}, 8
    s_mul_i32 s{t+6}, s{t+5}, 7
    s_sub_u32 s{t+6}, s{t+3}, s{t+6}
    s_mul_i32 s{t+5}, s{t+5}, 224
    s_lshl_b32 s{t+7}, s{t+6}, 5
    s_add_u32 s{t+5}, s{t+5}, s{t+7}
    s_cmp_ge_u32 s{t+6}, 3
    s_cselect_b32 s{t+7}, 16, 0
    s_add_u32 s{t+3}, s{t+5}, s{t+7}
    s_add_u32 s{t+7}, s{t+3}, 16
    s_sub_u32 s{t+8}, s{t+5}, 96
    s_add_u32 s{t+9}, s{t+5}, 16
    s_cmp_eq_u32 s{t+6}, 6
    s_cselect_b32 s{t+3}, s{t+8}, s{t+3}
    s_cselect_b32 s{t+7}, s{t+9}, s{t+7}
    s_lshl_b32 s{t+4}, s{t+4}, 5
    s_lshl_b32 s{t+3}, s{t+3}, 10
    s_lshl_b32 s{t+7}, s{t+7}, 10
    s_add_u32 s{t+3}, s{t+3}, s{t+4}
    s_add_u32 s{t+4}, s{t+7}, s{t+4}
    v_lshlrev_b32 v6, 12, v3
    v_lshl_add_u32 v6, v2, 1, v6
    """)
    a("s_mov_b32 s83, s88\n s_mov_b32 s72, s89\n s_mov_b32 s73, s90")


def wdt_loads(a, vm):
    for j in range(8):
        a(f"buffer_load_ushort v{40+j}, v6, s[{SRD_WD}:{SRD_WD+3}], s{72+(j//4)} offen offset:{1024*(j%4)}")
        a.comment("GROUP")
    vm.issue("wg", 8)


def wdt_store(a, vm):
    vm.wait(a, "wg")
    a(f"""
    v_lshl_or_b32 v14, v41, 16, v40
    v_lshl_or_b32 v15, v43, 16, v42
    v_lshl_or_b32 v16, v45, 16, v44
    v_lshl_or_b32 v17, v47, 16, v46
    s_lshl_b32 s83, s83, 10
    s_add_u32 s83, s83, {WDT_OFF}
    buffer_store_dwordx4 v[14:17], v5, {WS}, s83 offen sc1
    """)
    vm.issue("wst")


def gemm1_setup(a):
    a(f"""
    s_and_b32 s76, s2, 7
    s_lshr_b32 s77, s2, 3
    s_and_b32 s78, s76, 1
    s_lshl_b32 s78, s78, 3
    s_and_b32 s79, s77, 7
    s_add_u32 s4, s78, s79               ; mt
    s_lshr_b32 s78, s76, 1
    s_lshl_b32 s78, s78, 2
    s_lshr_b32 s79, s77, 3
    s_add_u32 s5, s78, s79               ; nt
    s_mul_i32 s6, s5, 224
    s_mul_i32 s7, s3, 896
    s_and_b32 s78, s3, 4
    s_and_b32 s79, s3, 1
    s_lshl_b32 s79, s79, 1
    s_or_b32 s78, s78, s79
    s_lshr_b32 s79, s3, 1
    s_and_b32 s79, s79, 1
    s_or_b32 s78, s78, s79
    s_lshl_b32 s78, s78, 2
    v_mul_u32_u24 v18, 147, v1
    v_lshrrev_b32 v18, 11, v18
    v_mul_u32_u24 v19, 14, v18
    v_sub_u32 v19, v1, v19
    v_add_u32 v18, s78, v18
    v_mul_u32_u24 v18, 3584, v18
    v_lshl_add_u32 v18, v19, 4, v18
    """)


def dma_block(a, vm, b):
    slot = (b % NSLOT) * SLOT
    for hf in range(2):
        for img in range(2):
            q = SRD_WG if img == 0 else SRD_WU
            a(f"""
            s_add_u32 s75, s6, {(64*b + 32*hf) * 3584}
            s_add_u32 m0, s7, {slot + hf*14336 + img*7168}
            s_mov_b32 exec_hi, 0x00ffffff
            buffer_load_dwordx4 v18, s[{q}:{q+3}], s75 offen lds
            s_mov_b32 exec_hi, -1
            """)
            a.comment("GROUP")
    vm.issue(f"D{b}", 4)


def T(x): return x + 120


def cmul(a, R, X, Y, Tm):
    a(f"""
    v_pk_mul_f32 v[{Tm}:{Tm+1}], v[{X}:{X+1}], v[{Y}:{Y+1}] op_sel:[0,0] op_sel_hi:[1,0]
    v_pk_fma_f32 v[{R}:{R+1}], v[{X}:{X+1}], v[{Y}:{Y+1}], v[{Tm}:{Tm+1}] op_sel:[1,1,0] op_sel_hi:[0,1,1] neg_lo:[1,0,0]
    """)


def direct(a, R, s_l, A2, WV, t0):
    a(f"""
    v_mul_f32 v{t0}, s{s_l}, v{A2}
    v_mul_f32 v{t0+1}, s{s_l}, v{WV}
    v_exp_f32 v{t0}, v{t0}
    v_fract_f32 v{t0+1}, v{t0+1}
    v_cos_f32 v{t0+2}, v{t0+1}
    v_sin_f32 v{t0+3}, v{t0+1}
    v_mul_f32 v{R}, v{t0}, v{t0+2}
    v_mul_f32 v{R+1}, v{t0}, v{t0+3}
    """)


def kgen_setup(a):
    a(f"""
    s_and_b32 s76, s3, 1
    s_lshl_b32 s77, s76, 4
    s_lshr_b32 s78, s3, 1
    s_mov_b32 s79, 0
    s_mov_b32 s80, {F32(16.0)}
    s_mov_b32 s81, 0
    s_mov_b32 s82, 1.0
    s_cmp_eq_u32 s78, 1
    s_cselect_b32 s79, {F32(256.0)}, s79
    s_cselect_b32 s81, {F32(8.0)}, s81
    s_cmp_eq_u32 s78, 2
    s_cselect_b32 s79, {F32(512.0)}, s79
    s_cselect_b32 s80, {F32(32.0)}, s80
    s_cselect_b32 s81, {F32(16.0)}, s81
    s_cselect_b32 s82, 4.0, s82
    s_cmp_eq_u32 s78, 3
    s_cselect_b32 s79, {F32(1024.0)}, s79
    s_cselect_b32 s80, {F32(64.0)}, s80
    s_cselect_b32 s81, {F32(32.0)}, s81
    s_cselect_b32 s82, {F32(8.0)}, s82
    s_cmp_eq_u32 s76, 1
    s_cselect_b64 s[84:85], -1, 0
    s_lshl_b32 s86, s76, 8
    s_mul_i32 s87, s78, {8*TROW}
    s_add_u32 s86, s86, {TAB}
    s_add_u32 s87, s87, s86
    s_mul_i32 s88, s78, {16*TROW}
    s_add_u32 s88, s88, s86
    s_add_u32 s88, s88, {32*TROW}
    v_lshl_add_u32 v30, v1, 2, s87
    v_lshl_add_u32 v31, v1, 2, s88
    s_mov_b32 s92, 0
    s_cmp_ge_u32 s3, 1
    s_cselect_b32 s92, 1, s92
    s_cmp_ge_u32 s3, 2
    s_cselect_b32 s92, 2, s92
    s_cmp_ge_u32 s3, 4
    s_cselect_b32 s92, 3, s92
    s_lshl_b32 s93, 128, s92
    s_cmp_eq_u32 s92, 0
    s_cselect_b32 s93, 0, s93
    s_lshl_b32 s94, 8, s92
    s_max_u32 s94, s94, 16
    s_lshl_b32 s95, 1, s92
    s_lshr_b32 s95, s95, 1
    s_sub_u32 s95, s3, s95
    s_lshl_b32 s95, s95, 4
    s_add_u32 s96, s93, s95
    v_add_u32 v32, s96, v2
    v_cvt_f32_u32 v32, v32
    v_cvt_pk_bf16_f32 v32, v32, v32
    v_lshlrev_b32 v32, 16, v32
    v_cvt_u32_f32 v32, v32
    v_subrev_u32 v32, s93, v32
    v_lshrrev_b32 v36, 2, v32
    v_add_u32 v36, 12, v36
    v_lshrrev_b32 v37, 3, v32
    v_add_u32 v37, 20, v37
    v_cmp_lt_u32 vcc, 32, v32
    v_cndmask_b32 v36, v36, v37, vcc
    v_cmp_gt_u32 vcc, 16, v32
    v_cndmask_b32 v32, v36, v32, vcc
    v_mul_u32_u24 v32, {TROW}, v32
    v_lshl_add_u32 v32, v3, 4, v32
    v_add_u32 v32, {TAB}, v32
    s_lshl_b32 s97, s92, 4
    s_add_u32 s97, s97, 32
    v_add_u32 v33, s97, v2
    v_mul_u32_u24 v33, {TROW}, v33
    v_lshl_add_u32 v33, v3, 4, v33
    v_add_u32 v33, {TAB}, v33
    v_mul_lo_u32 v34, v2, s94
    v_lshl_add_u32 v34, v3, 2, v34
    v_add_u32 v34, s96, v34
    v_add_u32 v34, 16, v34
    v_add_u32 v35, 4, v34
    v_lshrrev_b32 v35, 6, v35
    v_lshlrev_b32 v35, 3, v35
    v_lshl_add_u32 v35, v34, 1, v35
    v_add_u32 v35, {KCP}, v35
    v_lshrrev_b32 v36, 6, v34
    v_lshlrev_b32 v36, 3, v36
    v_lshl_add_u32 v34, v34, 1, v36
    v_add_u32 v34, {KCP}, v34
    """)


def kpads(a):
    a(f"""
    s_cmp_ge_u32 s3, 2
    s_cbranch_scc1 Lkz_skip
    v_mul_u32_u24 v36, {KCOPY}, v3
    v_lshl_add_u32 v36, v2, 1, v36
    s_mul_i32 s98, s3, {KCH}
    s_add_u32 s98, s98, {KCP}
    v_add_u32 v36, s98, v36
    v_mov_b32 v37, 0
    ds_write_b16 v36, v37
    v_cmp_gt_u32 vcc, v3, v2
    s_and_saveexec_b64 s[96:97], vcc
    ds_write_b16 v36, v37 offset:32
    s_mov_b64 exec, s[96:97]
Lkz_skip:
    """)


def kgen_tables(a, c):
    pb = 48 + 6 * c
    AR, AI, BR, BI, CR, CI = range(pb, pb + 6)
    t = T
    a(f"""
    {"v_lshlrev_b32 v%d, 16, v60" % t(72) if c == 0 else "v_and_b32 v%d, 0xffff0000, v60" % t(72)}
    v_mul_f32 v{t(72)}, {LOG2E}, v{t(72)}
    v_exp_f32 v{t(72)}, v{t(72)}
    s_nop 0
    v_cvt_pk_bf16_f32 v{t(72)}, v{t(72)}, v{t(72)}
    v_lshlrev_b32 v{t(72)}, 16, v{t(72)}
    v_lshlrev_b32 v{t(74)}, 16, v{BR}
    v_and_b32 v{t(75)}, 0xffff0000, v{BR}
    v_lshlrev_b32 v{t(76)}, 16, v{BI}
    v_and_b32 v{t(77)}, 0xffff0000, v{BI}
    v_lshlrev_b32 v{t(78)}, 16, v{CR}
    v_and_b32 v{t(79)}, 0xffff0000, v{CR}
    v_lshlrev_b32 v{t(80)}, 16, v{CI}
    v_and_b32 v{t(81)}, 0xffff0000, v{CI}
    v_mul_f32 v{t(74)}, v{t(72)}, v{t(74)}
    v_mul_f32 v{t(75)}, v{t(72)}, v{t(75)}
    v_mul_f32 v{t(76)}, v{t(72)}, v{t(76)}
    v_mul_f32 v{t(77)}, v{t(72)}, v{t(77)}
    v_mul_f32 v{t(82)}, v{t(78)}, v{t(74)}
    v_mul_f32 v{t(83)}, v{t(78)}, v{t(76)}
    v_mul_f32 v{t(84)}, v{t(79)}, v{t(75)}
    v_mul_f32 v{t(85)}, v{t(79)}, v{t(77)}
    v_fma_f32 v{t(82)}, -v{t(80)}, v{t(76)}, v{t(82)}
    v_fma_f32 v{t(83)}, v{t(80)}, v{t(74)}, v{t(83)}
    v_fma_f32 v{t(84)}, -v{t(81)}, v{t(77)}, v{t(84)}
    v_fma_f32 v{t(85)}, v{t(81)}, v{t(75)}, v{t(85)}
    v_max3_f32 v{t(86)}, abs(v{t(82)}), abs(v{t(83)}), abs(v{t(84)})
    v_max_f32 v{t(86)}, abs(v{t(85)}), v{t(86)}
    """)
    allreduce(a, t(86), t(87), "v_max_f32")
    a(f"""
    v_lshrrev_b32 v{t(86)}, 23, v{t(86)}
    v_max_u32 v{t(86)}, 8, v{t(86)}
    v_min_u32 v{t(86)}, 250, v{t(86)}
    v_sub_u32 v{t(87)}, 261, v{t(86)}
    v_lshlrev_b32 v{t(87)}, 23, v{t(87)}
    v_subrev_u32 v{t(86)}, 7, v{t(86)}
    v_lshlrev_b32 v{t(86)}, 23, v{t(86)}
    v_readfirstlane_b32 s{S_ISC+c}, v{t(86)}
    v_cndmask_b32 v{t(82)}, v{t(82)}, v{t(84)}, s[84:85]
    v_cndmask_b32 v{t(83)}, v{t(83)}, v{t(85)}, s[84:85]
    v_mul_f32 v{t(82)}, v{t(82)}, v{t(87)}
    v_mul_f32 v{t(83)}, v{t(83)}, v{t(87)}
    v_lshrrev_b32 v{t(74)}, s77, v{AR}
    v_lshlrev_b32 v{t(74)}, 16, v{t(74)}
    v_lshrrev_b32 v{t(75)}, s77, v{AI}
    v_lshlrev_b32 v{t(75)}, 16, v{t(75)}
    v_mul_f32 v{t(74)}, v{t(72)}, v{t(74)}
    v_mul_f32 v{t(75)}, v{t(72)}, v{t(75)}
    v_mul_f32 v{t(74)}, {LOG2E}, v{t(74)}
    v_mul_f32 v{t(75)}, {INV2PI}, v{t(75)}
    """)
    A2, WV = t(74), t(75)
    direct(a, t(88), 81, A2, WV, t(100))
    direct(a, t(90), 82, A2, WV, t(104))
    direct(a, t(92), 79, A2, WV, t(108))
    direct(a, t(94), 80, A2, WV, t(112))
    cmul(a, t(96), t(82), t(92), t(116))
    cmul(a, t(98), t(96), t(94), t(118))
    cmul(a, t(92), t(94), t(94), t(120))
    def wr(j):
        a(f"""
        v_cvt_pk_f16_f32 v{t(122)}, v{t(88)}, v{t(89)}
        ds_write_b32 v30, v{t(122)} offset:{j*TROW}
        v_cvt_pk_f16_f32 v{t(123)}, v{t(96)}, -v{t(97)}
        ds_write_b32 v31, v{t(123)} offset:{2*j*TROW}
        v_cvt_pk_f16_f32 v{t(124)}, v{t(98)}, -v{t(99)}
        ds_write_b32 v31, v{t(124)} offset:{(2*j+1)*TROW}
        """)
    wr(0)
    for j in range(1, 8):
        cmul(a, t(88), t(88), t(90), t(116))
        cmul(a, t(96), t(96), t(92), t(118))
        cmul(a, t(98), t(98), t(92), t(120))
        wr(j)


def kgen_mfma(a, c):
    acc = T(124)
    for half in range(2):
        for s4 in range(4):
            s = 4 * half + s4
            r = 192 + 8 * s4
            a(f"ds_read_b128 v[{r}:{r+3}], v32 offset:{64*s}")
            a(f"ds_read_b128 v[{r+4}:{r+7}], v33 offset:{64*s}")
        for s4 in range(4):
            s = 4 * half + s4
            r = 192 + 8 * s4
            a(f"s_waitcnt lgkmcnt({6-2*s4})")
            cc = "0" if s == 0 else f"v[{acc}:{acc+3}]"
            a(f"v_mfma_f32_16x16x32_f16 v[{acc}:{acc+3}], v[{r}:{r+3}], v[{r+4}:{r+7}], {cc}")
    o = c * KCH
    p0, p1, p2 = T(116), T(117), T(118)
    a(f"""
    v_cvt_pk_f16_f32 v{p0}, v{acc}, v{acc+1}
    v_cvt_pk_f16_f32 v{p1}, v{acc+2}, v{acc+3}
    v_alignbit_b32 v{p2}, v{p1}, v{p0}, 16
    ds_write_b64 v34, v[{p0}:{p1}] offset:{o}
    ds_write_b16 v34, v{p0} offset:{o + KCOPY + 2}
    ds_write_b32 v34, v{p2} offset:{o + KCOPY + 4}
    ds_write_b16_d16_hi v35, v{p1} offset:{o + KCOPY + 8}
    ds_write_b32 v34, v{p0} offset:{o + 2*KCOPY + 4}
    ds_write_b32 v35, v{p1} offset:{o + 2*KCOPY + 8}
    ds_write_b16 v34, v{p0} offset:{o + 3*KCOPY + 6}
    ds_write_b32 v35, v{p2} offset:{o + 3*KCOPY + 8}
    ds_write_b16_d16_hi v35, v{p1} offset:{o + 3*KCOPY + 12}
    """)


XF, ACC1, WF = 64, 192, 32


def x_addr(a):
    a(f"""
    s_and_b32 s70, s3, 3
    s_lshl_b32 s69, s4, 3
    s_lshl_b32 s70, s70, 1
    s_add_u32 s69, s69, s70
    s_lshl_b32 s69, s69, 14
    s_add_u32 s69, s69, {XN_OFF}
    """)


def x_issue(a, vm, s0, s1):
    for s in range(s0, s1):
        for tt in range(2):
            r = XF + (tt * 16 + s) * 4
            if s % 4 == 0 or s == s0:
                a(f"s_add_u32 s{70+tt}, s69, {tt*16384 + (s//4)*4096}")
            a(f"buffer_load_dwordx4 v[{r}:{r+3}], v5, {WS}, s{70+tt} offen offset:{1024*(s%4)}{XSC}")
            a.comment("GROUP")
            vm.issue(f"X{s}")


XS0 = 10


def epi1(a, tiles):
    a(f"""
    s_and_b32 s77, s3, 3
    s_lshl_b32 s78, s4, 3
    s_lshl_b32 s79, s77, 1
    s_add_u32 s78, s78, s79
    s_mul_i32 s78, s78, {56*1024}
    s_add_u32 s78, s78, {H_OFF}
    s_lshr_b32 s79, s5, 1
    s_mul_i32 s79, s79, 7
    s_and_b32 s80, s5, 1
    s_mul_i32 s81, s80, 3
    s_add_u32 s81, s81, s79
    s_lshl_b32 s81, s81, 10
    s_add_u32 s81, s81, s78
    s_add_u32 s83, s79, 6
    s_lshl_b32 s83, s83, 10
    s_add_u32 s83, s83, s78
    s_lshl_b32 s80, s80, 3
    s_add_u32 s83, s83, s80
    v_mov_b32 v38, {NLOG2E}
    """)
    for jj, j in enumerate(tiles):
        for tt in range(2):
            g_ = ACC1 + ((0 * 4 + jj) * 2 + tt) * 4
            u = ACC1 + ((1 * 4 + jj) * 2 + tt) * 4
            ob = 8 + 8 * ((j // 2) % 2) + 4 * tt + 2 * (j & 1)
            for pr in range(2):
                g0, g1, u0, u1 = g_ + 2 * pr, g_ + 2 * pr + 1, u + 2 * pr, u + 2 * pr + 1
                a(f"""
                v_cvt_pk_bf16_f32 v32, v{g0}, v{g1}
                v_cvt_pk_bf16_f32 v33, v{u0}, v{u1}
                v_lshlrev_b32 v34, 16, v32
                v_and_b32 v35, 0xffff0000, v32
                v_mul_f32 v34, v38, v34
                v_mul_f32 v35, v38, v35
                v_exp_f32 v34, v34
                v_exp_f32 v35, v35
                v_lshlrev_b32 v36, 16, v33
                v_and_b32 v37, 0xffff0000, v33
                v_add_f32 v34, 1.0, v34
                v_add_f32 v35, 1.0, v35
                v_rcp_f32 v34, v34
                v_rcp_f32 v35, v35
                s_nop 0
                v_cvt_pk_bf16_f32 v32, v34, v35
                v_lshlrev_b32 v34, 16, v32
                v_and_b32 v35, 0xffff0000, v32
                v_mul_f32 v34, v34, v36
                v_mul_f32 v35, v35, v37
                v_cvt_pk_bf16_f32 v{ob+pr}, v34, v35
                """)
            sb = 8 + 8 * ((j // 2) % 2) + 4 * tt
            if j == 6:
                a(f"s_add_u32 s84, s83, {tt*56*1024}")
                a(f"buffer_store_dwordx2 v[{ob}:{ob+1}], v5, {WS}, s84 offen sc1")
            elif j & 1:
                a(f"s_add_u32 s84, s81, {tt*56*1024 + (j//2)*1024}")
                a(f"buffer_store_dwordx4 v[{sb}:{sb+3}], v5, {WS}, s84 offen sc1")


def gemm1(a, vm0):
    a(f"""
    v_lshrrev_b32 v24, 1, v3
    v_lshlrev_b32 v24, 4, v24
    v_and_b32 v25, 1, v3
    v_lshl_add_u32 v24, v25, 2, v24
    v_lshrrev_b32 v25, 2, v2
    v_add_u32 v24, v24, v25
    v_mul_u32_u24 v24, 224, v24
    v_and_b32 v25, 3, v2
    v_lshl_add_u32 v24, v25, 3, v24
    v_add_u32 v25, {SLOT}, v24
    v_add_u32 v26, {2*SLOT}, v24
    v_add_u32 v27, {3*SLOT}, v24
    s_cmp_ge_u32 s3, 4
    s_cbranch_scc1 Lg1_part1
    """)
    vms = [vm0, vm0.copy()]
    for part in range(2):
        vm = vms[part]
        tiles = list(range(4)) if part == 0 else list(range(4, 7))
        def acc(img, jj, tt):
            r = ACC1 + ((img * 4 + jj) * 2 + tt) * 4
            return f"v[{r}:{r+3}]"
        frs = [(b, hf, jj, img) for b in range(8) for hf in range(2) for jj in range(len(tiles)) for img in range(2)]
        per_blk = 4 * len(tiles)
        def rd(i):
            b, hf, jj, img = frs[i]
            w = WF + (i % 8) * 4
            va = 24 + (b % NSLOT)
            off = hf * 14336 + img * 7168 + 32 * tiles[jj]
            a(f"ds_read_b64_tr_b16 v[{w}:{w+1}], v{va} offset:{off}")
            a(f"ds_read_b64_tr_b16 v[{w+2}:{w+3}], v{va} offset:{off+1792}")
        PD = 4
        xl = Asm();
        late = []
        for s in range(XS0, 16):
            for tt in range(2):
                late.append((s, tt))
        for i, (b, hf, jj, img) in enumerate(frs):
            s = 2 * b + hf
            if i % per_blk == 0:
                vm.wait(a, f"D{min(b + 1, 7)}")
                a("s_barrier")
                stamp(a, 8 + b)
                if b == 2 and part == 0:
                    def sigW(a):
                        cnt_addr(a, 76, 2, 4, CNT_W)
                        atomic_inc(a, 76, 10, 11)
                    wave0(a, "LsigW_skip", sigW)
                if b == 5:
                    a(f"v_lshlrev_b32 v10, 8, v2\n v_add_u32 v10, {CNT_W * 256}, v10")
                    poll(a, 10, 16, 11, f"LwaitW{part}")
                if b == 0:
                    dma_block(a, vm, 2)
                if b + 3 < 8:
                    dma_block(a, vm, b + 3)
                if b == 0:
                    for k in range(PD):
                        rd(k)
            if jj == 0 and img == 0:
                vm.wait(a, f"X{s}")
            out = min(PD - 1, len(frs) - 1 - i)
            a(f"s_waitcnt lgkmcnt({2*out})")
            w = WF + (i % 8) * 4
            for tt in range(2):
                xr = XF + (tt * 16 + s) * 4
                cc = "0" if s == 0 else acc(img, jj, tt)
                a(f"v_mfma_f32_16x16x32_bf16 {acc(img, jj, tt)}, v[{w}:{w+3}], v[{xr}:{xr+3}], {cc}")
            if i + PD < len(frs):
                rd(i + PD)
            if late and i >= 1 and i % 2 == 1:
                ls, ltt = late.pop(0)
                r = XF + (ltt * 16 + ls) * 4
                a(f"s_add_u32 s70, s69, {ltt*16384 + (ls//4)*4096}")
                a(f"buffer_load_dwordx4 v[{r}:{r+3}], v5, {WS}, s70 offen offset:{1024*(ls%4)}{XSC}")
                vm.issue(f"X{ls}")
            if b == 5 and i % per_blk == per_blk - 1:
                a(f"""
                s_lshl_b32 s77, s2, 1
                s_lshr_b32 s78, s77, 5
                s_lshl_b32 s78, s78, 10
                s_lshr_b32 s79, s77, 3
                s_and_b32 s79, s79, 3
                s_lshl_b32 s79, s79, 8
                s_add_u32 s78, s78, s79
                s_and_b32 s79, s77, 7
                s_lshl_b32 s79, s79, 1
                s_add_u32 s78, s78, s79
                s_lshl_b32 s79, s3, 18
                s_add_u32 s78, s78, s79
                s_add_u32 s78, s78, {XN_OFF}
                v_lshlrev_b32 v6, 14, v3
                v_lshl_add_u32 v6, v2, 4, v6
                s_add_u32 s79, s78, 65536
                s_add_u32 s80, s78, 131072
                s_add_u32 s81, s78, 196608
                buffer_load_dword v28, v6, {WS}, s78 offen sc1
                buffer_load_dword v29, v6, {WS}, s79 offen sc1
                buffer_load_dword v30, v6, {WS}, s80 offen sc1
                buffer_load_dword v31, v6, {WS}, s81 offen sc1
                """)
                vm.issue("XT", 4)
            if b == 6 and i % per_blk == per_blk - 1:
                vm.wait(a, "XT")
                a(f"""
                s_lshl_b32 s77, s3, 9
                s_sub_u32 s77, {XR + 4094}, s77
                v_lshlrev_b32 v6, 1, v1
                v_sub_u32 v6, s77, v6
                v_subrev_u32 v6, 384, v6
                """)
                for k in range(4):
                    a(f"""
                    v_lshlrev_b32 v7, 16, v{28+k}
                    v_and_b32 v8, 0xffff0000, v{28+k}
                    v_cvt_pk_f16_f32 v7, v7, v8
                    ds_write_b16 v6, v7 offset:{384 - 128*k}
                    ds_write_b16_d16_hi v6, v7 offset:{384 - 128*k + XRW}
                    """)
                a(f"""
                v_lshlrev_b32 v6, 2, v1
                v_add_u32 v6, {XR + 4096}, v6
                v_mov_b32 v7, 0
                ds_write_b32 v6, v7
                ds_write_b32 v6, v7 offset:256
                ds_write_b32 v6, v7 offset:{XRW}
                ds_write_b32 v6, v7 offset:{XRW + 256}
                """)
                a("s_waitcnt lgkmcnt(0)")
        stamp(a, 16)
        conv_setup(a)
        merged(a, lambda x: epi1(x, tiles), conv_mfma, 4 if part == 0 else 3, start=4)
        if part == 0:
            a("s_branch Lg1_done\nLg1_part1:")
    a("Lg1_done:")


CACC, CFR = 128, 64


def conv_setup(a):
    a(f"""
    s_and_b32 s85, s3, 1
    s_lshr_b32 s86, s3, 1
    v_sub_u32 v164, 3, v2
    v_and_b32 v164, 3, v164
    v_mul_u32_u24 v160, {KCOPY}, v164
    v_add_u32 v164, v164, v2
    v_lshlrev_b32 v165, 3, v3
    v_sub_u32 v164, v164, v165
    v_add_u32 v164, 25, v164
    v_lshl_add_u32 v160, v164, 1, v160
    s_mul_i32 s87, s85, {KCH}
    s_mul_i32 s88, s86, 136
    s_add_u32 s87, s87, s88
    s_add_u32 s87, s87, {KCP}
    v_add_u32 v160, s87, v160
    v_add_u32 v161, 32, v164
    v_lshrrev_b32 v161, 6, v161
    v_lshl_add_u32 v161, v161, 3, v160
    v_add_u32 v162, 36, v164
    v_lshrrev_b32 v162, 6, v162
    v_lshl_add_u32 v162, v162, 3, v160
    v_add_u32 v162, 8, v162
    v_lshlrev_b32 v163, 5, v2
    v_lshl_add_u32 v163, v3, 4, v163
    s_mul_i32 s87, s85, {XRW}
    s_lshl_b32 s88, s86, 7
    s_add_u32 s87, s87, s88
    s_add_u32 s87, s87, {XR + 528}
    v_sub_u32 v163, s87, v163
    """)


def conv_mfma(a):
    fb = CFR
    for rr in range(2):
        for q in range(8):
            sg = 8 * q + rr
            imm = 64 * sg + 8 * (sg >> 1)
            if sg % 2 == 0:
                a(f"ds_read_b64 v[{fb+4*q}:{fb+4*q+1}], v160 offset:{imm}")
                a(f"ds_read_b64 v[{fb+4*q+2}:{fb+4*q+3}], v160 offset:{imm+8}")
            else:
                a(f"ds_read_b64 v[{fb+4*q}:{fb+4*q+1}], v161 offset:{imm}")
                a(f"ds_read_b64 v[{fb+4*q+2}:{fb+4*q+3}], v162 offset:{imm}")
            m = 8 * q - rr
            a(f"ds_read_b128 v[{fb+32+4*q}:{fb+32+4*q+3}], v163 offset:{64*(56-m)}")
            a.comment("GROUP")
        for _ in range(6):
            a.comment("GROUP")
        a("s_waitcnt lgkmcnt(0)")
        for i in range(8):
            for q in range(i + 1):
                p = i - q
                cc = "0" if rr == 0 and q == 0 else f"v[{CACC+4*i}:{CACC+4*i+3}]"
                a(f"v_mfma_f32_16x16x32_f16 v[{CACC+4*i}:{CACC+4*i+3}], v[{fb+4*q}:{fb+4*q+3}], v[{fb+32+4*p}:{fb+32+4*p+3}], {cc}")
                a.comment("GROUP")


def conv_finish(a, mid):
    a(f"""
    s_and_b32 s77, s3, 1
    s_lshr_b32 s78, s3, 1
    s_lshl_b32 s79, s2, 1
    s_add_u32 s79, s79, s77
    s_lshl_b32 s80, s79, 12
    s_mul_i32 s82, s77, {XRW}
    s_add_u32 s82, s82, {XR}
    s_lshl_b32 s84, s3, 13
    s_add_u32 s84, s84, {CEX}
    v_add_u32 v6, s84, v5
    s_barrier
    """)
    for i in range(8):
        a(f"ds_write_b128 v6, v[{CACC+4*i}:{CACC+3+4*i}] offset:{1024*i}")
    a(f"""
    s_lshl_b32 s84, s77, 13
    s_lshl_b32 s85, s78, 11
    s_add_u32 s84, s84, s85
    s_add_u32 s84, s84, {CEX}
    v_add_u32 v7, s84, v5
    v_lshlrev_b32 v14, 4, v2
    v_lshl_add_u32 v14, v3, 2, v14
    s_lshl_b32 s86, s78, 9
    v_add_u32 v14, s86, v14
    v_lshlrev_b32 v15, 1, v14
    s_add_u32 s87, s82, {4088 - 512}
    v_sub_u32 v16, s87, v15
    ds_read_b64 v[96:97], v16 offset:512
    ds_read_b64 v[98:99], v16
    s_lshl_b32 s86, s77, 4
    s_lshr_b32 s86, s89, s86
    s_lshl_b32 s86, s86, 16
    s_cmp_eq_u32 s77, 0
    s_cselect_b32 s87, s{S_ISC}, s{S_ISC+1}
    s_add_u32 s88, s80, {S_OFF}
    s_waitcnt vmcnt(0) lgkmcnt(0)
    s_barrier
    """)
    mid(a)
    for j in range(2):
        for k in range(4):
            r = 64 + (j * 4 + k) * 4
            a(f"ds_read_b128 v[{r}:{r+3}], v7 offset:{k*16384 + j*1024}")
    a("s_waitcnt lgkmcnt(0)")
    for j in range(2):
        r = 64 + 16 * j
        for e in range(4):
            a(f"""
            v_add_f32 v{r+e}, v{r+e}, v{r+4+e}
            v_add_f32 v{r+8+e}, v{r+8+e}, v{r+12+e}
            v_add_f32 v{r+e}, v{r+e}, v{r+8+e}
            v_mul_f32 v{r+e}, s87, v{r+e}
            """)
        x0, x1 = 96 + 2 * j, 97 + 2 * j
        a(f"""
        v_cvt_f32_f16 v20, v{x1}
        v_lshrrev_b32 v21, 16, v{x1}
        v_cvt_f32_f16 v21, v21
        v_cvt_f32_f16 v22, v{x0}
        v_lshrrev_b32 v23, 16, v{x0}
        v_cvt_f32_f16 v23, v23
        v_mul_f32 v21, s86, v21
        v_mul_f32 v20, s86, v20
        v_mul_f32 v23, s86, v23
        v_mul_f32 v22, s86, v22
        v_cvt_pk_bf16_f32 v24, v21, v20
        v_cvt_pk_bf16_f32 v25, v23, v22
        v_cvt_pk_bf16_f32 v26, v{r}, v{r+1}
        v_cvt_pk_bf16_f32 v27, v{r+2}, v{r+3}
        v_lshlrev_b32 v20, 16, v24
        v_and_b32 v21, 0xffff0000, v24
        v_lshlrev_b32 v22, 16, v25
        v_and_b32 v23, 0xffff0000, v25
        v_lshlrev_b32 v28, 16, v26
        v_and_b32 v29, 0xffff0000, v26
        v_lshlrev_b32 v30, 16, v27
        v_and_b32 v31, 0xffff0000, v27
        v_add_f32 v20, v20, v28
        v_add_f32 v21, v21, v29
        v_add_f32 v22, v22, v30
        v_add_f32 v23, v23, v31
        v_cvt_pk_bf16_f32 v{104+2*j}, v20, v21
        v_cvt_pk_bf16_f32 v{105+2*j}, v22, v23
        buffer_store_dwordx2 v[{104+2*j}:{105+2*j}], v15, {WS}, s88 offen offset:{512*j} sc1
        """)


WPRE = 192
HB = [96, 112, 128, 144]
ACC2 = 32


def gemm2_map(a):
    a(f"""
    s_and_b32 s76, s2, 7
    s_lshr_b32 s77, s2, 3
    s_lshl_b32 s76, s76, 2
    s_and_b32 s78, s77, 3
    s_add_u32 s{S_TT}, s76, s78
    s_lshr_b32 s{S_DD}, s77, 2
    """)


def w_issue(a, step, sreg):
    r = WPRE + 16 * (step % 4)
    for aa in range(4):
        a(f"buffer_load_dwordx4 v[{r+4*aa}:{r+4*aa+3}], v5, {WS}, s{sreg} offen offset:{1024*aa}{GSC}")


def w_base(a, sreg):
    a(f"""
    s_mul_i32 s76, s3, 7
    s_lshl_b32 s77, s76, 5
    s_lshl_b32 s78, s{S_DD}, 2
    s_add_u32 s77, s77, s78
    s_lshl_b32 s77, s77, 10
    s_add_u32 s{sreg}, s77, {WDT_OFF}
    """)


def gemm2(a):
    vm = VM()
    w_base(a, 84)
    a(f"""
    s_add_u32 s84, s84, {4*32768}
    s_mul_i32 s76, s3, 7
    s_lshl_b32 s77, s{S_TT}, 2
    s_mul_i32 s77, s77, 56
    s_add_u32 s77, s77, s76
    s_lshl_b32 s77, s77, 10
    s_add_u32 s80, s77, {H_OFF}
    s_add_u32 s81, s80, {56*1024}
    s_add_u32 s82, s80, {2*56*1024}
    s_add_u32 s83, s80, {3*56*1024}
    """)
    def h_issue(j):
        fb = HB[j % 4]
        for b in range(4):
            a(f"buffer_load_dwordx4 v[{fb+4*b}:{fb+4*b+3}], v5, {WS}, s{80+b} offen offset:{1024*(j%4)}{GSC}")
            if j % 4 == 3:
                a(f"s_add_u32 s{80+b}, s{80+b}, 4096")
        vm.issue(f"H{j}", 4)
    for j in range(4):
        h_issue(j)
    for j in range(7):
        vm.wait(a, f"H{j}")
        if j >= 4:
            vm.wait(a, f"W{j}")
        fb = HB[j % 4]
        wb = WPRE + 16 * (j % 4)
        for aa in range(4):
            for b in range(4):
                r = ACC2 + (aa * 4 + b) * 4
                cc = "0" if j == 0 else f"v[{r}:{r+3}]"
                a(f"v_mfma_f32_16x16x32_bf16 v[{r}:{r+3}], v[{wb+4*aa}:{wb+4*aa+3}], v[{fb+4*b}:{fb+4*b+3}], {cc}")
        if j + 4 < 7:
            h_issue(j + 4)
            w_issue(a, j + 4, 84)
            a("s_add_u32 s84, s84, 32768")
            vm.issue(f"W{j+4}", 4)
    a(f"""
    s_lshl_b32 s76, s3, 14
    s_add_u32 s76, s76, {G2P}
    v_add_u32 v6, s76, v5
    """)
    for i in range(16):
        a(f"ds_write_b128 v6, v[{ACC2+4*i}:{ACC2+4*i+3}] offset:{1024*i}")


def final(a, waitC):
    a(f"""
    s_lshr_b32 s76, s3, 1
    s_lshl_b32 s77, s3, 1
    s_and_b32 s77, s77, 3
    s_lshl_b32 s78, s{S_TT}, 6
    s_lshl_b32 s79, s77, 4
    s_add_u32 s78, s78, s79
    s_lshl_b32 s78, s78, 10
    s_lshl_b32 s79, s{S_DD}, 7
    s_add_u32 s78, s78, s79
    s_lshl_b32 s79, s76, 5
    s_add_u32 s78, s78, s79
    s_add_u32 s79, s78, 16384
    v_lshlrev_b32 v7, 10, v2
    v_lshl_add_u32 v7, v3, 3, v7
    buffer_load_dwordx2 v[10:11], v7, s[{SRD_X}:{SRD_X+3}], s78 offen
    buffer_load_dwordx2 v[12:13], v7, s[{SRD_X}:{SRD_X+3}], s79 offen
    """)
    waitC(a)
    a(f"""
    v_lshrrev_b32 v8, 4, v0
    v_and_b32 v9, 15, v0
    v_lshlrev_b32 v14, 12, v8
    v_lshl_add_u32 v14, v9, 3, v14
    s_lshl_b32 s80, s{S_DD}, 18
    s_lshl_b32 s81, s{S_TT}, 7
    s_add_u32 s80, s80, s81
    s_add_u32 s80, s80, {S_OFF}
    s_add_u32 s81, s80, {32*4096}
    buffer_load_dwordx2 v[16:17], v14, {WS}, s80 offen sc1
    buffer_load_dwordx2 v[18:19], v14, {WS}, s81 offen sc1
    v_mul_u32_u24 v15, {SROW}, v8
    v_lshl_add_u32 v15, v9, 3, v15
    v_add_u32 v15, {STILE}, v15
    s_waitcnt vmcnt(0)
    ds_write_b64 v15, v[16:17]
    ds_write_b64 v15, v[18:19] offset:{32*SROW}
    s_waitcnt lgkmcnt(0)
    s_barrier
    s_lshl_b32 s80, s3, 11
    s_add_u32 s80, s80, {G2P}
    v_add_u32 v20, s80, v5
    v_add_u32 v19, 65536, v20
    """)
    for i in range(2):
        for kq in range(8):
            r = 96 + (i * 8 + kq) * 4
            a(f"ds_read_b128 v[{r}:{r+3}], v{20 if kq < 4 else 19} offset:{(kq%4)*16384 + i*1024}")
    a(f"""
    v_lshlrev_b32 v21, 2, v3
    s_lshl_b32 s80, s76, 4
    v_add_u32 v21, s80, v21
    v_mul_u32_u24 v21, {SROW}, v21
    v_lshl_add_u32 v21, v2, 1, v21
    s_lshl_b32 s80, s77, 5
    s_add_u32 s80, s80, {STILE}
    v_add_u32 v21, s80, v21
    """)
    for i in range(2):
        for e in range(4):
            a(f"ds_read_u16 v{64+4*i+e}, v21 offset:{e*SROW + 32*i}")
    a(f"s_mov_b32 s82, {NLOG2E}\n s_waitcnt lgkmcnt(0)")
    for i in range(2):
        b0 = 96 + i * 32
        for e in range(4):
            a(f"""
            v_add_f32 v{b0+e}, v{b0+e}, v{b0+4+e}
            v_add_f32 v{b0+8+e}, v{b0+8+e}, v{b0+12+e}
            v_add_f32 v{b0+16+e}, v{b0+16+e}, v{b0+20+e}
            v_add_f32 v{b0+24+e}, v{b0+24+e}, v{b0+28+e}
            v_add_f32 v{b0+e}, v{b0+e}, v{b0+8+e}
            v_add_f32 v{b0+16+e}, v{b0+16+e}, v{b0+24+e}
            v_add_f32 v{b0+e}, v{b0+e}, v{b0+16+e}
            """)
        for pr in range(2):
            o0, o1 = b0 + 2 * pr, b0 + 2 * pr + 1
            s0, s1 = 64 + 4 * i + 2 * pr, 64 + 4 * i + 2 * pr + 1
            xx = 10 + 2 * i + pr
            a(f"""
            v_cvt_pk_bf16_f32 v22, v{o0}, v{o1}
            v_lshlrev_b32 v23, 16, v22
            v_and_b32 v24, 0xffff0000, v22
            v_mul_f32 v25, s82, v23
            v_mul_f32 v26, s82, v24
            v_exp_f32 v25, v25
            v_exp_f32 v26, v26
            v_lshlrev_b32 v{s0}, 16, v{s0}
            v_lshlrev_b32 v{s1}, 16, v{s1}
            v_add_f32 v25, 1.0, v25
            v_add_f32 v26, 1.0, v26
            v_rcp_f32 v25, v25
            v_rcp_f32 v26, v26
            s_nop 0
            v_mul_f32 v25, v25, v23
            v_mul_f32 v26, v26, v24
            v_cvt_pk_bf16_f32 v22, v25, v26
            v_lshlrev_b32 v23, 16, v22
            v_and_b32 v24, 0xffff0000, v22
            v_mul_f32 v23, v23, v{s0}
            v_mul_f32 v24, v24, v{s1}
            v_cvt_pk_bf16_f32 v22, v23, v24
            v_lshlrev_b32 v23, 16, v22
            v_and_b32 v24, 0xffff0000, v22
            v_lshlrev_b32 v25, 16, v{xx}
            v_and_b32 v26, 0xffff0000, v{xx}
            v_add_f32 v23, v23, v25
            v_add_f32 v24, v24, v26
            v_cvt_pk_bf16_f32 v{28+2*i+pr}, v23, v24
            """)
        a(f"buffer_store_dwordx2 v[{28+2*i}:{29+2*i}], v7, s[{SRD_OUT}:{SRD_OUT+3}], s{78+i} offen")


def cnt_addr(a, sreg, idx_expr_sreg, shift, base):
    a(f"""
    s_lshr_b32 s{sreg}, s{idx_expr_sreg}, {shift}
    s_lshl_b32 s{sreg}, s{sreg}, 8
    s_add_u32 s{sreg}, s{sreg}, {base * 256}
    """)


def build():
    a = Asm()
    vm = VM()
    prologue(a, vm)
    stamp(a, 1)
    ln(a, vm)
    stamp(a, 2)
    wdt_issue(a, vm)
    gemm1_setup(a)
    kgen_setup(a)
    a("s_waitcnt vmcnt(0)")
    a("v_readfirstlane_b32 s89, v61")
    a("s_barrier")
    stamp(a, 3)
    def sigA(a):
        a(f"""
        v_readfirstlane_b32 s76, v8
        s_cmp_lg_u32 s76, 0
        s_cbranch_scc1 LsigA_go
        v_mov_b32 v10, 0
        """)
        poll(a, 10, 1, 11, "LsigA_poll", SRD_DBG)
        a("LsigA_go:")
        cnt_addr(a, 76, 2, 4, CNT_A)
        atomic_inc(a, 76, 10, 11)
    wave0(a, "LsigA_skip", sigA)
    def side0(x):
        dma_block(x, vm, 0)
        dma_block(x, vm, 1)
        wdt_loads(x, vm)
    merged(a, lambda x: kgen_tables(x, 0), side0, 8, start=2)
    a("s_waitcnt lgkmcnt(0)\n s_barrier")
    stamp(a, 4)
    kpads(a)
    kgen_mfma(a, 0)
    def waitA(a):
        a(f"v_lshlrev_b32 v10, 8, v2\n v_add_u32 v10, {CNT_A * 256}, v10")
        a(f"""
        s_mov_b32 s99, 0
LwaitA:
        buffer_load_dword v11, v10, {WS}, 0 offen sc1
        s_waitcnt vmcnt(0)
        v_cmp_gt_u32 vcc, 16, v11
        s_cbranch_vccz LwaitA_ok
        s_sleep 1
        s_add_u32 s99, s99, 1
        s_cmp_lt_u32 s99, 0x8000
        s_cbranch_scc1 LwaitA
LwaitA_ok:
        """)
    a("s_waitcnt lgkmcnt(0)")
    wave0(a, "LwaitA_skip", waitA)
    a("s_barrier")
    stamp(a, 5)
    x_addr(a)
    merged(a, lambda x: kgen_tables(x, 1), lambda x: x_issue(x, vm, 0, 7), 12)
    a("s_waitcnt lgkmcnt(0)\n s_barrier")
    stamp(a, 6)
    wdt_store(a, vm)
    merged(a, lambda x: kgen_mfma(x, 1), lambda x: x_issue(x, vm, 7, XS0), 5)
    a("s_waitcnt lgkmcnt(0)\n s_barrier")
    stamp(a, 7)
    gemm2_map(a)
    gemm1(a, vm)
    stamp(a, 20)
    w_base(a, 84)
    for st in range(4):
        w_issue(a, st, 84)
        a("s_add_u32 s84, s84, 32768")
    stamp(a, 21)
    def sigB(a):
        def f(a):
            cnt_addr(a, 76, 4, 0, CNT_B)
            atomic_inc(a, 76, 10, 11)
        wave0(a, "LsigB_skip", f)
    conv_finish(a, sigB)
    stamp(a, 24)
    cnt_addr(a, 76, S_TT, 1, CNT_B)
    a("v_mov_b32 v10, s76")
    poll(a, 10, 16, 11, "LwaitB")
    a(f"""
    v_mov_b32 v10, {MISC + 32}
    v_mov_b32 v11, 1
    s_mov_b64 exec, 1
    ds_add_rtn_u32 v12, v10, v11
    s_waitcnt lgkmcnt(0)
    v_readfirstlane_b32 s76, v12
    s_mov_b64 exec, -1
    s_cmp_lg_u32 s76, 7
    s_cbranch_scc1 LsigC_skip
    """)
    cnt_addr(a, 76, 2, 5, CNT_C)
    atomic_inc(a, 76, 10, 11)
    a("LsigC_skip:\n s_barrier")
    stamp(a, 25)
    gemm2(a)
    stamp(a, 27)
    def waitC(a):
        cnt_addr(a, 86, S_DD, 0, CNT_C)
        a("v_mov_b32 v20, s86")
        poll(a, 20, 32, 21, "LwaitC")
    final(a, waitC)
    stamp(a, 30)
    a("s_waitcnt vmcnt(0)")
    stamp(a, 31)
    stamp_flush(a)
    a("Lexit:\n s_endpgm")
    a.finalize()
    txt = f"; @launch grid=(256,1,1) block=(512,1,1) lds={LDS_BYTES}\n"
    txt += '.amdgcn_target "amdgcn-amd-amdhsa--gfx950"\n.text\n'
    txt += f".globl {KNAME}\n.p2align 8\n.type {KNAME},@function\n" + a.text()
    txt += f""".section .rodata,"a"
.p2align 6
.amdhsa_kernel {KNAME}
  .amdhsa_next_free_vgpr 256
  .amdhsa_next_free_sgpr 102
  .amdhsa_accum_offset 256
  .amdhsa_group_segment_fixed_size 0
  .amdhsa_kernarg_size 128
  .amdhsa_user_sgpr_count 2
  .amdhsa_user_sgpr_kernarg_segment_ptr 1
  .amdhsa_system_sgpr_workgroup_id_x 1
.end_amdhsa_kernel
"""
    return txt


if __name__ == "__main__":
    for o in sys.argv[2:]:
        if o == "nostamp": STAMPS = False
        if o == "xplain": XSC = ""
        if o == "gplain": GSC = ""
    open(sys.argv[1], "w").write(build())
```

```python
import sys, struct
from dsl import Asm

KNAME = "recurrent_scan__ssm_conv_s4__glu_gated_glu__prompt_kernel"
STAMPS = True
DEBUG = False
XSC = " sc1"
GSC = " sc1"

CNT_A, CNT_B, CNT_C, CNT_W = 0, 16, 32, 40
XN_OFF = 1 << 20
XT_OFF = 4 << 20
WDT_OFF = 8 << 20
H_OFF = 16 << 20
S_OFF = 32 << 20
DBG_OFF = 64 << 20
STAMP_OFF = DBG_OFF + (8 << 20)

SLOT = 28672
NSLOT = 4
TAB = 2 * SLOT
TROW = 528
TAB_ROWS = 96
KCP = NSLOT * SLOT
KCOPY = 4416
KCH = 4 * KCOPY
MISC = KCP + 2 * KCH
XTS = KCP
XNS = KCP + 8192
XR = MISC + 256
LDS_BYTES = XR + 10240
XRW = 5120
CEX = 0
G2P = 0
STILE = 131072
SROW = 144

SRD_X, SRD_WS, SRD_WG, SRD_WU, SRD_OUT, SRD_DBG, SRD_WD, SRD_T0, SRD_T1 = 8, 12, 16, 20, 24, 28, 32, 36, 40
PTR = 44
def P(i): return PTR + 2 * i
S_ISC = 90
S_TT, S_DD = 92, 93

LOG2E = 0x3fb8aa3b
NLOG2E = 0xbfb8aa3b
INV2PI = 0x3e22f983
F32 = lambda x: hex(struct.unpack("<I", struct.pack("<f", x))[0])
WS = f"s[{SRD_WS}:{SRD_WS+3}]"


class VM:
    def __init__(self):
        self.ops = []
    def issue(self, tag, n=1):
        self.ops += [tag] * n
    def wait(self, a, tag):
        idx = max(i for i, t in enumerate(self.ops) if t == tag)
        n = len(self.ops) - 1 - idx
        a(f"s_waitcnt vmcnt({min(n, 63)})")
    def copy(self):
        v = VM(); v.ops = list(self.ops); return v


def merged(a, main_fn, side_fn, every, start=0):
    m = Asm(); main_fn(m)
    sd = Asm(); side_fn(sd)
    groups, cur = [], []
    for it in sd.items:
        if isinstance(it, str) and it == "; GROUP":
            groups.append(cur); cur = []
        else:
            cur.append(it)
    if cur:
        groups.append(cur)
    n = 0
    for it in m.items:
        a.items.append(it)
        if isinstance(it, str):
            continue
        n += 1
        if n >= start and (n - start) % every == 0 and groups:
            a.items += groups.pop(0)
    for g in groups:
        a.items += g


def srd(a, q, ptr_idx, nbytes):
    a(f"""
    s_mov_b32 s{q}, s{P(ptr_idx)}
    s_and_b32 s{q+1}, s{P(ptr_idx)+1}, 0xffff
    s_mov_b32 s{q+2}, {nbytes}
    s_mov_b32 s{q+3}, 0x00020000
    """)


def stamp(a, idx):
    if not STAMPS:
        return
    a(f"""
    s_memtime s[100:101]
    s_waitcnt lgkmcnt(0)
    v_writelane_b32 v4, s100, {idx}
    """)


def stamp_flush(a):
    if not STAMPS:
        return
    a(f"""
    s_lshl_b32 s76, s2, 3
    s_add_u32 s76, s76, s3
    s_lshl_b32 s76, s76, 8
    s_add_u32 s76, s76, {STAMP_OFF}
    v_lshlrev_b32 v6, 2, v1
    buffer_store_dword v4, v6, {WS}, s76 offen
    """)


def allreduce(a, v, tmp, op="v_add_f32"):
    a(f"""
    {op}_dpp v{v}, v{v}, v{v} quad_perm:[1,0,3,2] row_mask:0xf bank_mask:0xf
    {op}_dpp v{v}, v{v}, v{v} quad_perm:[2,3,0,1] row_mask:0xf bank_mask:0xf
    {op}_dpp v{v}, v{v}, v{v} row_half_mirror row_mask:0xf bank_mask:0xf
    {op}_dpp v{v}, v{v}, v{v} row_mirror row_mask:0xf bank_mask:0xf
    v_mov_b32 v{tmp}, v{v}
    v_permlane16_swap_b32 v{v}, v{tmp}
    {op} v{v}, v{v}, v{tmp}
    v_mov_b32 v{tmp}, v{v}
    v_permlane32_swap_b32 v{v}, v{tmp}
    {op} v{v}, v{v}, v{tmp}
    """)


def bf16r(a, dst, src):
    a(f"v_cvt_pk_bf16_f32 v{dst}, v{src}, v{src}\n v_lshlrev_b32 v{dst}, 16, v{dst}")


def poll(a, vreg, target, tmpv, label, srdq=SRD_WS):
    a(f"""
    s_mov_b32 s99, 0
{label}:
    buffer_load_dword v{tmpv}, v{vreg}, s[{srdq}:{srdq+3}], 0 offen sc1
    s_waitcnt vmcnt(0)
    v_cmp_gt_u32 vcc, {target}, v{tmpv}
    s_cbranch_vccz {label}_ok
    s_sleep 1
    s_add_u32 s99, s99, 1
    s_cmp_lt_u32 s99, 0x8000
    s_cbranch_scc1 {label}
{label}_ok:
    """)


def atomic_inc(a, s_off, v1, v2):
    a(f"""
    v_mov_b32 v{v1}, s{s_off}
    v_mov_b32 v{v2}, 1
    s_mov_b64 exec, 1
    buffer_atomic_add v{v2}, v{v1}, {WS}, 0 offen sc1
    s_mov_b64 exec, -1
    """)


def wave0(a, label, fn):
    a(f"s_cmp_lg_u32 s3, 0\n s_cbranch_scc1 {label}")
    fn(a)
    a(f"{label}:")


def par_loads(a, vm, c):
    a(f"""
    v_lshlrev_b32 v62, 2, v1
    v_mov_b32 v63, 0
    s_lshl_b32 s76, s2, 9
    s_add_u32 s76, s76, {256*c}
    s_lshl_b32 s78, s2, 2
    """)
    for i in range(6):
        q = SRD_T0 if i % 2 == 0 else SRD_T1
        srd(a, q, 1 + i, 512 * 128 * 2)
        a(f"buffer_load_dword v{48+i}, v62, s[{q}:{q+3}], s76 offen")
    vm.issue("par", 6)


def prologue(a, vm):
    a(f"""
{KNAME}:
    s_cmp_ge_u32 s2, 256
    s_cbranch_scc1 Lexit
    s_load_dwordx16 s[44:59], s[0:1], 0
    s_load_dwordx16 s[60:75], s[0:1], 64
    v_and_b32 v1, 63, v0
    v_lshrrev_b32 v4, 6, v0
    v_and_b32 v2, 15, v1
    v_lshrrev_b32 v3, 4, v1
    v_readfirstlane_b32 s3, v4
    v_lshlrev_b32 v5, 4, v1
    s_lshl_b32 s86, s2, 3
    s_add_u32 s86, s86, s3
    s_lshl_b32 s87, s86, 10
    s_waitcnt lgkmcnt(0)
    """)
    srd(a, SRD_X, 0, 2048 * 512 * 2)
    a(f"buffer_load_dwordx4 v[10:13], v5, s[{SRD_X}:{SRD_X+3}], s87 offen")
    vm.issue("x")
    srd(a, SRD_WS, 15, 256 << 20)
    srd(a, SRD_DBG, 14, 256)
    a("v_mov_b32 v4, 0")
    stamp(a, 0)
    a(f"""
    s_cmp_lg_u32 s2, 0
    s_cbranch_scc1 Linit_skip
    s_cmp_lg_u32 s3, 0
    s_cbranch_scc1 Linit_skip
    v_lshlrev_b32 v6, 8, v1
    v_mov_b32 v7, 0
    buffer_store_dword v7, v6, {WS}, 0 offen sc1
    s_waitcnt vmcnt(0)
    v_mov_b32 v6, 1
    s_mov_b64 exec, 1
    buffer_store_dword v6, v7, s[{SRD_DBG}:{SRD_DBG+3}], 0 offen sc1
    s_mov_b64 exec, -1
Linit_skip:
    """)
    srd(a, SRD_WG, 10, 512 * 1792 * 2)
    srd(a, SRD_WU, 11, 512 * 1792 * 2)
    srd(a, SRD_OUT, 13, 2048 * 512 * 2)
    srd(a, SRD_WD, 12, 1792 * 512 * 2)
    a(f"""
    v_mov_b32 v63, 0
    s_lshl_b32 s76, s2, 12
    s_cmp_eq_u32 s3, 0
    s_cbranch_scc1 Lt0
    s_cmp_eq_u32 s3, 1
    s_cbranch_scc1 Lt1
    s_cmp_eq_u32 s3, 2
    s_cbranch_scc1 Lt2
    s_cmp_eq_u32 s3, 3
    s_cbranch_scc1 Lt3
    s_cmp_eq_u32 s3, 4
    s_cbranch_scc1 Lt4
    s_cmp_eq_u32 s3, 5
    s_cbranch_scc1 Lt5
    s_cmp_eq_u32 s3, 6
    s_cbranch_scc1 Lt6
    buffer_load_dword v250, v63, s[{SRD_OUT}:{SRD_OUT+3}], s76 offen
    s_branch Ltj
Lt0:
    buffer_load_dword v250, v63, s[{SRD_WG}:{SRD_WG+3}], s76 offen
    s_branch Ltj
Lt1:
    buffer_load_dword v250, v63, s[{SRD_WU}:{SRD_WU+3}], s76 offen
    s_branch Ltj
Lt2:
    buffer_load_dword v250, v63, s[{SRD_WD}:{SRD_WD+3}], s76 offen
    s_branch Ltj
Lt3:
    s_mov_b32 s77, {(3 << 20) + (1 << 19)}
    buffer_load_dword v250, v63, {WS}, s77 offen
    s_branch Ltj
Lt4:
    s_mov_b32 s77, {1 << 19}
    buffer_load_dword v250, v63, {WS}, s77 offen
    s_branch Ltj
Lt5:
    s_mov_b32 s77, {WDT_OFF + 1900000}
    buffer_load_dword v250, v63, {WS}, s77 offen
    s_branch Ltj
Lt6:
    s_mov_b32 s77, {H_OFF + (15 << 19)}
    buffer_load_dword v250, v63, {WS}, s77 offen
Ltj:
    """)
    vm.issue("tlb")
    par_loads(a, vm, 0)
    srd(a, SRD_T0, 7, 1024)
    a(f"buffer_load_dword v60, v63, s[{SRD_T0}:{SRD_T0+3}], s78 offen")
    srd(a, SRD_T1, 8, 1024)
    a(f"buffer_load_dword v61, v63, s[{SRD_T1}:{SRD_T1+3}], s78 offen")
    vm.issue("par", 2)
    a("s_waitcnt vmcnt(63)")
    a(f"""
    v_mov_b32 v200, {MISC}
    v_mov_b32 v201, 0
    v_lshl_add_u32 v200, v2, 2, v200
    ds_write_b32 v200, v201
    """)


def ln(a, vm):
    f = 20
    vm.wait(a, "x")
    for i in range(4):
        a(f"v_lshlrev_b32 v{f+2*i}, 16, v{10+i}\n v_and_b32 v{f+2*i+1}, 0xffff0000, v{10+i}")
    a(f"""
    v_add_f32 v28, v{f}, v{f+1}
    v_add_f32 v29, v{f+2}, v{f+3}
    v_add_f32 v30, v{f+4}, v{f+5}
    v_add_f32 v31, v{f+6}, v{f+7}
    v_add_f32 v28, v28, v29
    v_add_f32 v30, v30, v31
    v_add_f32 v28, v28, v30
    """)
    allreduce(a, 28, 29)
    a("v_mul_f32 v28, 0x3b000000, v28")
    a(f"v_sub_f32 v30, v{f}, v28\n v_mul_f32 v31, v30, v30")
    for i in range(1, 8):
        a(f"v_sub_f32 v30, v{f+i}, v28\n v_fmac_f32 v31, v30, v30")
    allreduce(a, 31, 29)
    a("v_mul_f32 v31, 0x3b000000, v31")
    bf16r(a, 28, 28)
    bf16r(a, 31, 31)
    a("v_add_f32 v31, 0x3727c5ac, v31")
    bf16r(a, 31, 31)
    a("v_sqrt_f32 v31, v31")
    bf16r(a, 31, 31)
    a("v_rcp_f32 v32, v31")
    for i in range(8):
        a(f"v_sub_f32 v{f+i}, v{f+i}, v28")
    for i in range(4):
        a(f"""
        v_cvt_pk_bf16_f32 v33, v{f+2*i}, v{f+2*i+1}
        v_lshlrev_b32 v{f+2*i}, 16, v33
        v_and_b32 v{f+2*i+1}, 0xffff0000, v33
        """)
    for i in range(8):
        a(f"""
        v_mul_f32 v33, v{f+i}, v32
        v_fma_f32 v34, -v33, v31, v{f+i}
        v_fma_f32 v{f+i}, v34, v32, v33
        """)
    for i in range(4):
        a(f"v_cvt_pk_bf16_f32 v{10+i}, v{f+2*i}, v{f+2*i+1}")
    a(f"""
    s_mul_i32 s91, s3, 1040
    s_add_u32 s91, s91, {XNS}
    v_add_u32 v9, s91, v5
    ds_write_b128 v9, v[10:13]
    v_and_b32 v6, 7, v0
    v_lshrrev_b32 v9, 3, v0
    v_mul_u32_u24 v33, 1040, v6
    v_lshl_add_u32 v33, v9, 4, v33
    v_add_u32 v33, {XNS}, v33
    v_lshlrev_b32 v34, 8, v9
    v_lshl_add_u32 v34, v6, 4, v34
    s_lshr_b32 s91, s2, 1
    s_lshl_b32 s91, s91, 14
    s_and_b32 s92, s2, 1
    s_lshl_b32 s92, s92, 7
    s_add_u32 s91, s91, s92
    s_add_u32 s91, s91, {XN_OFF}
    s_waitcnt lgkmcnt(0)
    s_barrier
    ds_read_b128 v[40:43], v33
    s_waitcnt lgkmcnt(0)
    buffer_store_dwordx4 v[40:43], v34, {WS}, s91 offen sc1
    v_mov_b32 v7, 0
    buffer_load_dword v8, v7, s[{SRD_DBG}:{SRD_DBG+3}], 0 offen sc1
    """)
    vm.issue("lnst", 2)


def wdt_issue(a, vm):
    t = 86
    a(f"""
    s_min_u32 s88, s3, 6
    s_mul_i32 s{t+3}, s2, 7
    s_add_u32 s88, s88, s{t+3}
    s_lshr_b32 s{t+3}, s88, 5              ; J
    s_and_b32 s{t+4}, s88, 31              ; Dt
    s_mul_i32 s{t+5}, s{t+3}, 37
    s_lshr_b32 s{t+5}, s{t+5}, 8
    s_mul_i32 s{t+6}, s{t+5}, 7
    s_sub_u32 s{t+6}, s{t+3}, s{t+6}
    s_mul_i32 s{t+5}, s{t+5}, 224
    s_lshl_b32 s{t+7}, s{t+6}, 5
    s_add_u32 s{t+5}, s{t+5}, s{t+7}
    s_cmp_ge_u32 s{t+6}, 3
    s_cselect_b32 s{t+7}, 16, 0
    s_add_u32 s{t+3}, s{t+5}, s{t+7}
    s_add_u32 s{t+7}, s{t+3}, 16
    s_sub_u32 s{t+8}, s{t+5}, 96
    s_add_u32 s{t+9}, s{t+5}, 16
    s_cmp_eq_u32 s{t+6}, 6
    s_cselect_b32 s{t+3}, s{t+8}, s{t+3}
    s_cselect_b32 s{t+7}, s{t+9}, s{t+7}
    s_lshl_b32 s{t+4}, s{t+4}, 5
    s_lshl_b32 s{t+3}, s{t+3}, 10
    s_lshl_b32 s{t+7}, s{t+7}, 10
    s_add_u32 s{t+3}, s{t+3}, s{t+4}
    s_add_u32 s{t+4}, s{t+7}, s{t+4}
    v_lshlrev_b32 v6, 12, v3
    v_lshl_add_u32 v6, v2, 1, v6
    """)
    a("s_mov_b32 s83, s88\n s_mov_b32 s72, s89\n s_mov_b32 s73, s90")


def wdt_loads(a, vm):
    for j in range(8):
        a(f"buffer_load_ushort v{40+j}, v6, s[{SRD_WD}:{SRD_WD+3}], s{72+(j//4)} offen offset:{1024*(j%4)}")
    vm.issue("wg", 8)


def wdt_store(a, vm):
    vm.wait(a, "wg")
    a(f"""
    v_lshl_or_b32 v14, v41, 16, v40
    v_lshl_or_b32 v15, v43, 16, v42
    v_lshl_or_b32 v16, v45, 16, v44
    v_lshl_or_b32 v17, v47, 16, v46
    s_lshl_b32 s83, s83, 10
    s_add_u32 s83, s83, {WDT_OFF}
    buffer_store_dwordx4 v[14:17], v5, {WS}, s83 offen sc1
    """)
    vm.issue("wst")


def gemm1_setup(a):
    a(f"""
    s_and_b32 s76, s2, 7
    s_lshr_b32 s77, s2, 3
    s_and_b32 s78, s76, 1
    s_lshl_b32 s78, s78, 3
    s_and_b32 s79, s77, 7
    s_add_u32 s4, s78, s79               ; mt
    s_lshr_b32 s78, s76, 1
    s_lshl_b32 s78, s78, 2
    s_lshr_b32 s79, s77, 3
    s_add_u32 s5, s78, s79               ; nt
    s_mul_i32 s6, s5, 224
    s_mul_i32 s7, s3, 896
    s_and_b32 s78, s3, 4
    s_and_b32 s79, s3, 1
    s_lshl_b32 s79, s79, 1
    s_or_b32 s78, s78, s79
    s_lshr_b32 s79, s3, 1
    s_and_b32 s79, s79, 1
    s_or_b32 s78, s78, s79
    s_lshl_b32 s78, s78, 2
    v_mul_u32_u24 v18, 147, v1
    v_lshrrev_b32 v18, 11, v18
    v_mul_u32_u24 v19, 14, v18
    v_sub_u32 v19, v1, v19
    v_add_u32 v18, s78, v18
    v_mul_u32_u24 v18, 3584, v18
    v_lshl_add_u32 v18, v19, 4, v18
    """)


def dma_block(a, vm, b):
    slot = (b % NSLOT) * SLOT
    for hf in range(2):
        for img in range(2):
            q = SRD_WG if img == 0 else SRD_WU
            a(f"""
            s_add_u32 s75, s6, {(64*b + 32*hf) * 3584}
            s_add_u32 m0, s7, {slot + hf*14336 + img*7168}
            s_mov_b32 exec_hi, 0x00ffffff
            buffer_load_dwordx4 v18, s[{q}:{q+3}], s75 offen lds
            s_mov_b32 exec_hi, -1
            """)
    vm.issue(f"D{b}", 4)


def T(x): return x + 120


def cmul(a, R, X, Y, Tm):
    a(f"""
    v_pk_mul_f32 v[{Tm}:{Tm+1}], v[{X}:{X+1}], v[{Y}:{Y+1}] op_sel:[0,0] op_sel_hi:[1,0]
    v_pk_fma_f32 v[{R}:{R+1}], v[{X}:{X+1}], v[{Y}:{Y+1}], v[{Tm}:{Tm+1}] op_sel:[1,1,0] op_sel_hi:[0,1,1] neg_lo:[1,0,0]
    """)


def direct(a, R, s_l, A2, WV, t0):
    a(f"""
    v_mul_f32 v{t0}, s{s_l}, v{A2}
    v_mul_f32 v{t0+1}, s{s_l}, v{WV}
    v_exp_f32 v{t0}, v{t0}
    v_fract_f32 v{t0+1}, v{t0+1}
    v_cos_f32 v{t0+2}, v{t0+1}
    v_sin_f32 v{t0+3}, v{t0+1}
    v_mul_f32 v{R}, v{t0}, v{t0+2}
    v_mul_f32 v{R+1}, v{t0}, v{t0+3}
    """)


def kgen_setup(a):
    a(f"""
    s_and_b32 s76, s3, 1
    s_lshl_b32 s77, s76, 4
    s_lshr_b32 s78, s3, 1
    s_mov_b32 s79, 0
    s_mov_b32 s80, {F32(16.0)}
    s_mov_b32 s81, 0
    s_mov_b32 s82, 1.0
    s_cmp_eq_u32 s78, 1
    s_cselect_b32 s79, {F32(256.0)}, s79
    s_cselect_b32 s81, {F32(8.0)}, s81
    s_cmp_eq_u32 s78, 2
    s_cselect_b32 s79, {F32(512.0)}, s79
    s_cselect_b32 s80, {F32(32.0)}, s80
    s_cselect_b32 s81, {F32(16.0)}, s81
    s_cselect_b32 s82, 4.0, s82
    s_cmp_eq_u32 s78, 3
    s_cselect_b32 s79, {F32(1024.0)}, s79
    s_cselect_b32 s80, {F32(64.0)}, s80
    s_cselect_b32 s81, {F32(32.0)}, s81
    s_cselect_b32 s82, {F32(8.0)}, s82
    s_cmp_eq_u32 s76, 1
    s_cselect_b64 s[84:85], -1, 0
    s_lshl_b32 s86, s76, 8
    s_mul_i32 s87, s78, {8*TROW}
    s_add_u32 s86, s86, {TAB}
    s_add_u32 s87, s87, s86
    s_mul_i32 s88, s78, {16*TROW}
    s_add_u32 s88, s88, s86
    s_add_u32 s88, s88, {32*TROW}
    v_lshl_add_u32 v30, v1, 2, s87
    v_lshl_add_u32 v31, v1, 2, s88
    s_mov_b32 s92, 0
    s_cmp_ge_u32 s3, 1
    s_cselect_b32 s92, 1, s92
    s_cmp_ge_u32 s3, 2
    s_cselect_b32 s92, 2, s92
    s_cmp_ge_u32 s3, 4
    s_cselect_b32 s92, 3, s92
    s_lshl_b32 s93, 128, s92
    s_cmp_eq_u32 s92, 0
    s_cselect_b32 s93, 0, s93
    s_lshl_b32 s94, 8, s92
    s_max_u32 s94, s94, 16
    s_lshl_b32 s95, 1, s92
    s_lshr_b32 s95, s95, 1
    s_sub_u32 s95, s3, s95
    s_lshl_b32 s95, s95, 4
    s_add_u32 s96, s93, s95
    v_add_u32 v32, s96, v2
    v_cvt_f32_u32 v32, v32
    v_cvt_pk_bf16_f32 v32, v32, v32
    v_lshlrev_b32 v32, 16, v32
    v_cvt_u32_f32 v32, v32
    v_subrev_u32 v32, s93, v32
    v_lshrrev_b32 v36, 2, v32
    v_add_u32 v36, 12, v36
    v_lshrrev_b32 v37, 3, v32
    v_add_u32 v37, 20, v37
    v_cmp_lt_u32 vcc, 32, v32
    v_cndmask_b32 v36, v36, v37, vcc
    v_cmp_gt_u32 vcc, 16, v32
    v_cndmask_b32 v32, v36, v32, vcc
    v_mul_u32_u24 v32, {TROW}, v32
    v_lshl_add_u32 v32, v3, 4, v32
    v_add_u32 v32, {TAB}, v32
    s_lshl_b32 s97, s92, 4
    s_add_u32 s97, s97, 32
    v_add_u32 v33, s97, v2
    v_mul_u32_u24 v33, {TROW}, v33
    v_lshl_add_u32 v33, v3, 4, v33
    v_add_u32 v33, {TAB}, v33
    v_mul_lo_u32 v34, v2, s94
    v_lshl_add_u32 v34, v3, 2, v34
    v_add_u32 v34, s96, v34
    v_add_u32 v34, 16, v34
    v_add_u32 v35, 4, v34
    v_lshrrev_b32 v35, 6, v35
    v_lshlrev_b32 v35, 3, v35
    v_lshl_add_u32 v35, v34, 1, v35
    v_add_u32 v35, {KCP}, v35
    v_lshrrev_b32 v36, 6, v34
    v_lshlrev_b32 v36, 3, v36
    v_lshl_add_u32 v34, v34, 1, v36
    v_add_u32 v34, {KCP}, v34
    """)


def kpads(a, c):
    a(f"""
    s_cmp_lg_u32 s3, 0
    s_cbranch_scc1 Lkz_skip{c}
    v_mul_u32_u24 v36, {KCOPY}, v3
    v_lshl_add_u32 v36, v2, 1, v36
    v_add_u32 v36, {KCP + c * KCH}, v36
    v_mov_b32 v37, 0
    ds_write_b16 v36, v37
    v_cmp_gt_u32 vcc, v3, v2
    s_and_saveexec_b64 s[96:97], vcc
    ds_write_b16 v36, v37 offset:32
    s_mov_b64 exec, s[96:97]
Lkz_skip{c}:
    """)


def kgen_tables(a, c):
    pb = 48
    AR, AI, BR, BI, CR, CI = range(pb, pb + 6)
    t = T
    a(f"""
    {"s_lshl_b32 s68, s74, 16" if c == 0 else "s_and_b32 s68, s74, 0xffff0000"}
    v_mov_b32 v{t(72)}, s68
    v_mul_f32 v{t(72)}, {LOG2E}, v{t(72)}
    v_exp_f32 v{t(72)}, v{t(72)}
    s_nop 0
    v_cvt_pk_bf16_f32 v{t(72)}, v{t(72)}, v{t(72)}
    v_lshlrev_b32 v{t(72)}, 16, v{t(72)}
    v_lshlrev_b32 v{t(74)}, 16, v{BR}
    v_and_b32 v{t(75)}, 0xffff0000, v{BR}
    v_lshlrev_b32 v{t(76)}, 16, v{BI}
    v_and_b32 v{t(77)}, 0xffff0000, v{BI}
    v_lshlrev_b32 v{t(78)}, 16, v{CR}
    v_and_b32 v{t(79)}, 0xffff0000, v{CR}
    v_lshlrev_b32 v{t(80)}, 16, v{CI}
    v_and_b32 v{t(81)}, 0xffff0000, v{CI}
    v_mul_f32 v{t(74)}, v{t(72)}, v{t(74)}
    v_mul_f32 v{t(75)}, v{t(72)}, v{t(75)}
    v_mul_f32 v{t(76)}, v{t(72)}, v{t(76)}
    v_mul_f32 v{t(77)}, v{t(72)}, v{t(77)}
    v_mul_f32 v{t(82)}, v{t(78)}, v{t(74)}
    v_mul_f32 v{t(83)}, v{t(78)}, v{t(76)}
    v_mul_f32 v{t(84)}, v{t(79)}, v{t(75)}
    v_mul_f32 v{t(85)}, v{t(79)}, v{t(77)}
    v_fma_f32 v{t(82)}, -v{t(80)}, v{t(76)}, v{t(82)}
    v_fma_f32 v{t(83)}, v{t(80)}, v{t(74)}, v{t(83)}
    v_fma_f32 v{t(84)}, -v{t(81)}, v{t(77)}, v{t(84)}
    v_fma_f32 v{t(85)}, v{t(81)}, v{t(75)}, v{t(85)}
    v_max3_f32 v{t(86)}, abs(v{t(82)}), abs(v{t(83)}), abs(v{t(84)})
    v_max_f32 v{t(86)}, abs(v{t(85)}), v{t(86)}
    """)
    allreduce(a, t(86), t(87), "v_max_f32")
    a(f"""
    v_lshrrev_b32 v{t(86)}, 23, v{t(86)}
    v_max_u32 v{t(86)}, 8, v{t(86)}
    v_min_u32 v{t(86)}, 250, v{t(86)}
    v_sub_u32 v{t(87)}, 261, v{t(86)}
    v_lshlrev_b32 v{t(87)}, 23, v{t(87)}
    v_subrev_u32 v{t(86)}, 7, v{t(86)}
    v_lshlrev_b32 v{t(86)}, 23, v{t(86)}
    v_readfirstlane_b32 s{S_ISC+c}, v{t(86)}
    v_cndmask_b32 v{t(82)}, v{t(82)}, v{t(84)}, s[84:85]
    v_cndmask_b32 v{t(83)}, v{t(83)}, v{t(85)}, s[84:85]
    v_mul_f32 v{t(82)}, v{t(82)}, v{t(87)}
    v_mul_f32 v{t(83)}, v{t(83)}, v{t(87)}
    v_lshrrev_b32 v{t(74)}, s77, v{AR}
    v_lshlrev_b32 v{t(74)}, 16, v{t(74)}
    v_lshrrev_b32 v{t(75)}, s77, v{AI}
    v_lshlrev_b32 v{t(75)}, 16, v{t(75)}
    v_mul_f32 v{t(74)}, v{t(72)}, v{t(74)}
    v_mul_f32 v{t(75)}, v{t(72)}, v{t(75)}
    v_mul_f32 v{t(74)}, {LOG2E}, v{t(74)}
    v_mul_f32 v{t(75)}, {INV2PI}, v{t(75)}
    """)
    A2, WV = t(74), t(75)
    direct(a, t(88), 81, A2, WV, t(100))
    direct(a, t(90), 82, A2, WV, t(104))
    direct(a, t(92), 79, A2, WV, t(108))
    direct(a, t(94), 80, A2, WV, t(112))
    cmul(a, t(96), t(82), t(92), t(116))
    cmul(a, t(98), t(96), t(94), t(118))
    cmul(a, t(92), t(94), t(94), t(120))
    def wr(j):
        a(f"""
        v_cvt_pk_f16_f32 v{t(122)}, v{t(88)}, v{t(89)}
        ds_write_b32 v30, v{t(122)} offset:{j*TROW}
        v_cvt_pk_f16_f32 v{t(123)}, v{t(96)}, -v{t(97)}
        ds_write_b32 v31, v{t(123)} offset:{2*j*TROW}
        v_cvt_pk_f16_f32 v{t(124)}, v{t(98)}, -v{t(99)}
        ds_write_b32 v31, v{t(124)} offset:{(2*j+1)*TROW}
        """)
    wr(0)
    for j in range(1, 8):
        cmul(a, t(88), t(88), t(90), t(116))
        cmul(a, t(96), t(96), t(92), t(118))
        cmul(a, t(98), t(98), t(92), t(120))
        wr(j)


def kgen_mfma(a, c):
    acc = T(124)
    for half in range(2):
        for s4 in range(4):
            s = 4 * half + s4
            r = 192 + 8 * s4
            a(f"ds_read_b128 v[{r}:{r+3}], v32 offset:{64*s}")
            a(f"ds_read_b128 v[{r+4}:{r+7}], v33 offset:{64*s}")
        for s4 in range(4):
            s = 4 * half + s4
            r = 192 + 8 * s4
            a(f"s_waitcnt lgkmcnt({6-2*s4})")
            cc = "0" if s == 0 else f"v[{acc}:{acc+3}]"
            a(f"v_mfma_f32_16x16x32_f16 v[{acc}:{acc+3}], v[{r}:{r+3}], v[{r+4}:{r+7}], {cc}")
    o = c * KCH
    p0, p1, p2 = T(116), T(117), T(118)
    a(f"""
    v_cvt_pk_f16_f32 v{p0}, v{acc}, v{acc+1}
    v_cvt_pk_f16_f32 v{p1}, v{acc+2}, v{acc+3}
    v_alignbit_b32 v{p2}, v{p1}, v{p0}, 16
    ds_write_b64 v34, v[{p0}:{p1}] offset:{o}
    ds_write_b16 v34, v{p0} offset:{o + KCOPY + 2}
    ds_write_b32 v34, v{p2} offset:{o + KCOPY + 4}
    ds_write_b16_d16_hi v35, v{p1} offset:{o + KCOPY + 8}
    ds_write_b32 v34, v{p0} offset:{o + 2*KCOPY + 4}
    ds_write_b32 v35, v{p1} offset:{o + 2*KCOPY + 8}
    ds_write_b16 v34, v{p0} offset:{o + 3*KCOPY + 6}
    ds_write_b32 v35, v{p2} offset:{o + 3*KCOPY + 8}
    ds_write_b16_d16_hi v35, v{p1} offset:{o + 3*KCOPY + 12}
    """)


XF, ACC1, WF = 64, 192, 32


def x_addr(a):
    a(f"""
    s_and_b32 s70, s3, 3
    s_lshl_b32 s69, s4, 3
    s_lshl_b32 s70, s70, 1
    s_add_u32 s69, s69, s70
    s_lshl_b32 s69, s69, 14
    s_add_u32 s69, s69, {XN_OFF}
    """)


def x_issue(a, vm, s0, s1):
    for s in range(s0, s1):
        for tt in range(2):
            r = XF + (tt * 16 + s) * 4
            if s % 4 == 0 or s == s0:
                a(f"s_add_u32 s{70+tt}, s69, {tt*16384 + (s//4)*4096}")
            a(f"buffer_load_dwordx4 v[{r}:{r+3}], v5, {WS}, s{70+tt} offen offset:{1024*(s%4)}{XSC}")
            vm.issue(f"X{s}")


XS0 = 10


def epi1(a, tiles):
    a(f"""
    s_and_b32 s77, s3, 3
    s_lshl_b32 s78, s4, 3
    s_lshl_b32 s79, s77, 1
    s_add_u32 s78, s78, s79
    s_mul_i32 s78, s78, {56*1024}
    s_add_u32 s78, s78, {H_OFF}
    s_lshr_b32 s79, s5, 1
    s_mul_i32 s79, s79, 7
    s_and_b32 s80, s5, 1
    s_mul_i32 s81, s80, 3
    s_add_u32 s81, s81, s79
    s_lshl_b32 s81, s81, 10
    s_add_u32 s81, s81, s78
    s_add_u32 s83, s79, 6
    s_lshl_b32 s83, s83, 10
    s_add_u32 s83, s83, s78
    s_lshl_b32 s80, s80, 3
    s_add_u32 s83, s83, s80
    v_mov_b32 v38, {NLOG2E}
    """)
    for jj, j in enumerate(tiles):
        for tt in range(2):
            g_ = ACC1 + ((0 * 4 + jj) * 2 + tt) * 4
            u = ACC1 + ((1 * 4 + jj) * 2 + tt) * 4
            ob = 8 + 8 * ((j // 2) % 2) + 4 * tt + 2 * (j & 1)
            for pr in range(2):
                g0, g1, u0, u1 = g_ + 2 * pr, g_ + 2 * pr + 1, u + 2 * pr, u + 2 * pr + 1
                a(f"""
                v_cvt_pk_bf16_f32 v32, v{g0}, v{g1}
                v_cvt_pk_bf16_f32 v33, v{u0}, v{u1}
                v_lshlrev_b32 v34, 16, v32
                v_and_b32 v35, 0xffff0000, v32
                v_mul_f32 v34, v38, v34
                v_mul_f32 v35, v38, v35
                v_exp_f32 v34, v34
                v_exp_f32 v35, v35
                v_lshlrev_b32 v36, 16, v33
                v_and_b32 v37, 0xffff0000, v33
                v_add_f32 v34, 1.0, v34
                v_add_f32 v35, 1.0, v35
                v_rcp_f32 v34, v34
                v_rcp_f32 v35, v35
                s_nop 0
                v_cvt_pk_bf16_f32 v32, v34, v35
                v_lshlrev_b32 v34, 16, v32
                v_and_b32 v35, 0xffff0000, v32
                v_mul_f32 v34, v34, v36
                v_mul_f32 v35, v35, v37
                v_cvt_pk_bf16_f32 v{ob+pr}, v34, v35
                """)
            sb = 8 + 8 * ((j // 2) % 2) + 4 * tt
            if j == 6:
                a(f"s_add_u32 s84, s83, {tt*56*1024}")
                a(f"buffer_store_dwordx2 v[{ob}:{ob+1}], v5, {WS}, s84 offen sc1")
            elif j & 1:
                a(f"s_add_u32 s84, s81, {tt*56*1024 + (j//2)*1024}")
                a(f"buffer_store_dwordx4 v[{sb}:{sb+3}], v5, {WS}, s84 offen sc1")


def gemm1(a, vm0, pre_epi):
    a(f"""
    v_lshrrev_b32 v24, 1, v3
    v_lshlrev_b32 v24, 4, v24
    v_and_b32 v25, 1, v3
    v_lshl_add_u32 v24, v25, 2, v24
    v_lshrrev_b32 v25, 2, v2
    v_add_u32 v24, v24, v25
    v_mul_u32_u24 v24, 224, v24
    v_and_b32 v25, 3, v2
    v_lshl_add_u32 v24, v25, 3, v24
    v_add_u32 v25, {SLOT}, v24
    v_add_u32 v26, {2*SLOT}, v24
    v_add_u32 v27, {3*SLOT}, v24
    s_cmp_ge_u32 s3, 4
    s_cbranch_scc1 Lg1_part1
    """)
    vms = [vm0, vm0.copy()]
    for part in range(2):
        vm = vms[part]
        tiles = list(range(4)) if part == 0 else list(range(4, 7))
        def acc(img, jj, tt):
            r = ACC1 + ((img * 4 + jj) * 2 + tt) * 4
            return f"v[{r}:{r+3}]"
        frs = [(b, hf, jj, img) for b in range(8) for hf in range(2) for jj in range(len(tiles)) for img in range(2)]
        per_blk = 4 * len(tiles)
        def rd(i):
            b, hf, jj, img = frs[i]
            w = WF + (i % 8) * 4
            va = 24 + (b % NSLOT)
            off = hf * 14336 + img * 7168 + 32 * tiles[jj]
            a(f"ds_read_b64_tr_b16 v[{w}:{w+1}], v{va} offset:{off}")
            a(f"ds_read_b64_tr_b16 v[{w+2}:{w+3}], v{va} offset:{off+1792}")
        PD = 4
        for i, (b, hf, jj, img) in enumerate(frs):
            s = 2 * b + hf
            if i % per_blk == 0:
                vm.wait(a, f"D{min(b + 1, 7)}")
                a("s_barrier")
                stamp(a, 8 + b)
                if b == 2 and part == 0:
                    def sigW(a):
                        cnt_addr(a, 76, 2, 4, CNT_W)
                        atomic_inc(a, 76, 10, 11)
                    wave0(a, "LsigW_skip", sigW)
                if b == 5:
                    a(f"v_lshlrev_b32 v10, 8, v2\n v_add_u32 v10, {CNT_W * 256}, v10")
                    poll(a, 10, 16, 11, f"LwaitW{part}")
                if 1 <= b and b + 3 < 8:
                    dma_block(a, vm, b + 3)
                if b == 0:
                    for k in range(PD):
                        rd(k)
            if jj == 0 and img == 0:
                vm.wait(a, f"X{s}")
            out = min(PD - 1, len(frs) - 1 - i)
            a(f"s_waitcnt lgkmcnt({2*out})")
            w = WF + (i % 8) * 4
            for tt in range(2):
                xr = XF + (tt * 16 + s) * 4
                cc = "0" if s == 0 else acc(img, jj, tt)
                a(f"v_mfma_f32_16x16x32_bf16 {acc(img, jj, tt)}, v[{w}:{w+3}], v[{xr}:{xr+3}], {cc}")
            if i + PD < len(frs):
                rd(i + PD)
        stamp(a, 16)
        pre_epi(a, vm)
        epi1(a, tiles)
        if part == 0:
            a("s_branch Lg1_done\nLg1_part1:")
    a("Lg1_done:")


CACC, CFR = 32, 192


def xcol_issue(a, vm):
    a(f"""
    s_lshl_b32 s77, s2, 1
    s_lshr_b32 s78, s77, 5
    s_lshl_b32 s78, s78, 10
    s_lshr_b32 s79, s77, 3
    s_and_b32 s79, s79, 3
    s_lshl_b32 s79, s79, 8
    s_add_u32 s78, s78, s79
    s_and_b32 s79, s77, 7
    s_lshl_b32 s79, s79, 1
    s_add_u32 s78, s78, s79
    s_lshl_b32 s79, s3, 18
    s_add_u32 s78, s78, s79
    s_add_u32 s78, s78, {XN_OFF}
    v_lshlrev_b32 v6, 14, v3
    v_lshl_add_u32 v6, v2, 4, v6
    s_add_u32 s79, s78, 65536
    s_add_u32 s80, s78, 131072
    s_add_u32 s81, s78, 196608
    buffer_load_dword v28, v6, {WS}, s78 offen sc1
    buffer_load_dword v29, v6, {WS}, s79 offen sc1
    buffer_load_dword v30, v6, {WS}, s80 offen sc1
    buffer_load_dword v31, v6, {WS}, s81 offen sc1
    """)
    vm.issue("XT", 4)


def xcol_stage(a, vm):
    vm.wait(a, "XT")
    a(f"""
    s_lshl_b32 s77, s3, 9
    s_sub_u32 s77, {XR + 4094}, s77
    v_lshlrev_b32 v6, 1, v1
    v_sub_u32 v6, s77, v6
    v_subrev_u32 v6, 384, v6
    """)
    for k in range(4):
        a(f"""
        v_lshlrev_b32 v7, 16, v{28+k}
        v_and_b32 v8, 0xffff0000, v{28+k}
        v_cvt_pk_f16_f32 v7, v7, v8
        ds_write_b16 v6, v7 offset:{384 - 128*k}
        ds_write_b16_d16_hi v6, v7 offset:{384 - 128*k + XRW}
        """)
    a(f"""
    v_lshlrev_b32 v6, 2, v1
    v_add_u32 v6, {XR + 4096}, v6
    v_mov_b32 v7, 0
    ds_write_b32 v6, v7
    ds_write_b32 v6, v7 offset:256
    ds_write_b32 v6, v7 offset:{XRW}
    ds_write_b32 v6, v7 offset:{XRW + 256}
    """)


def conv_setup(a, c):
    a(f"""
    v_sub_u32 v23, 3, v2
    v_and_b32 v23, 3, v23
    v_mul_u32_u24 v20, {KCOPY}, v23
    v_add_u32 v23, v23, v2
    v_lshlrev_b32 v24, 3, v3
    v_sub_u32 v23, v23, v24
    v_add_u32 v23, 25, v23                ; P0
    v_lshl_add_u32 v20, v23, 1, v20
    s_lshl_b32 s87, s3, 6
    s_add_u32 s87, s87, {KCP + c * KCH}
    v_add_u32 v20, s87, v20
    s_lshl_b32 s88, s3, 5
    v_add_u32 v23, s88, v23               ; P0 + 32r
    v_add_u32 v24, 4, v23
    v_lshrrev_b32 v24, 6, v24
    v_lshl_add_u32 v21, v24, 3, v20
    v_add_u32 v21, 8, v21                 ; B2
    v_lshrrev_b32 v23, 6, v23
    v_lshl_add_u32 v20, v23, 3, v20       ; B1
    v_lshlrev_b32 v22, 5, v2
    v_lshl_add_u32 v22, v3, 4, v22
    s_lshl_b32 s88, s3, 6
    s_add_u32 s88, s88, {XR + c * XRW + 528}
    v_sub_u32 v22, s88, v22
    """)


def conv_mfma(a):
    fb = CFR
    for q in range(8):
        a(f"ds_read_b64 v[{fb+4*q}:{fb+4*q+1}], v20 offset:{544*q}")
        a(f"ds_read_b64 v[{fb+4*q+2}:{fb+4*q+3}], v21 offset:{544*q}")
        a(f"ds_read_b128 v[{fb+32+4*q}:{fb+32+4*q+3}], v22 offset:{64*(56-8*q)}")
    done = set()
    k = 0
    for lvl in range(8):
        a(f"s_waitcnt lgkmcnt({min(15, 3*(7-lvl))})")
        for i in range(8):
            for q in range(i + 1):
                p = i - q
                if max(p, q) == lvl:
                    first = not any((i, q2) in done for q2 in range(i + 1))
                    cc = "0" if first else f"v[{CACC+4*i}:{CACC+4*i+3}]"
                    a(f"v_mfma_f32_16x16x32_f16 v[{CACC+4*i}:{CACC+4*i+3}], v[{fb+4*q}:{fb+4*q+3}], v[{fb+32+4*p}:{fb+32+4*p+3}], {cc}")
                    done.add((i, q))


def cex_addr(c, i):
    if c == 0:
        return (TAB, 7168, 1024 * i) if i < 7 else (KCP + KCH, 1024, 0)
    return (0, 8192, 1024 * i)


def conv_finish(a, c, post_read=None):
    if c == 0:
        a(f"""
        s_mul_i32 s84, s3, 7168
        s_add_u32 s84, s84, {TAB}
        v_add_u32 v6, s84, v5
        s_lshl_b32 s84, s3, 10
        s_add_u32 s84, s84, {KCP + KCH}
        v_add_u32 v7, s84, v5
        """)
        for i in range(7):
            a(f"ds_write_b128 v6, v[{CACC+4*i}:{CACC+3+4*i}] offset:{1024*i}")
        a(f"ds_write_b128 v7, v[{CACC+28}:{CACC+31}]")
        a(f"""
        s_lshl_b32 s84, s3, 10
        s_add_u32 s84, s84, {TAB}
        s_mov_b32 s85, 7168
        s_cmp_eq_u32 s3, 7
        s_cselect_b32 s84, {KCP + KCH}, s84
        s_cselect_b32 s85, 1024, s85
        """)
    else:
        a(f"""
        s_lshl_b32 s84, s3, 13
        v_add_u32 v6, s84, v5
        """)
        for i in range(8):
            a(f"ds_write_b128 v6, v[{CACC+4*i}:{CACC+3+4*i}] offset:{1024*i}")
        a("s_lshl_b32 s84, s3, 10\n s_mov_b32 s85, 8192")
    a(f"""
    v_add_u32 v7, s84, v5
    v_lshlrev_b32 v14, 4, v2
    v_lshl_add_u32 v14, v3, 2, v14
    s_lshl_b32 s86, s3, 8
    v_add_u32 v14, s86, v14               ; t0 = 256 w + 16a' + 4q
    v_lshlrev_b32 v15, 1, v14
    v_sub_u32 v16, {XR + c * XRW + 4088}, v15
    ds_read_b64 v[24:25], v16
    s_lshl_b32 s79, s2, 1
    s_add_u32 s79, s79, {c}
    s_lshl_b32 s80, s79, 12
    s_add_u32 s88, s80, {S_OFF}
    {"s_lshl_b32 s86, s89, 16" if c == 0 else "s_and_b32 s86, s89, 0xffff0000"}
    s_waitcnt lgkmcnt(0)
    s_barrier
    """)
    for k in range(8):
        r = 192 + 4 * k
        a(f"ds_read_b128 v[{r}:{r+3}], v7")
        if k < 7:
            a("v_add_u32 v7, s85, v7")
    a("s_waitcnt lgkmcnt(0)")
    if post_read:
        post_read(a)
    r = 192
    for e in range(4):
        a(f"""
        v_add_f32 v{r+e}, v{r+e}, v{r+4+e}
        v_add_f32 v{r+8+e}, v{r+8+e}, v{r+12+e}
        v_add_f32 v{r+16+e}, v{r+16+e}, v{r+20+e}
        v_add_f32 v{r+24+e}, v{r+24+e}, v{r+28+e}
        v_add_f32 v{r+e}, v{r+e}, v{r+8+e}
        v_add_f32 v{r+16+e}, v{r+16+e}, v{r+24+e}
        v_add_f32 v{r+e}, v{r+e}, v{r+16+e}
        v_mul_f32 v{r+e}, s{S_ISC+c}, v{r+e}
        """)
    x0, x1 = 24, 25
    a(f"""
    v_cvt_f32_f16 v20, v{x1}
    v_lshrrev_b32 v21, 16, v{x1}
    v_cvt_f32_f16 v21, v21
    v_cvt_f32_f16 v22, v{x0}
    v_lshrrev_b32 v23, 16, v{x0}
    v_cvt_f32_f16 v23, v23
    v_mul_f32 v21, s86, v21
    v_mul_f32 v20, s86, v20
    v_mul_f32 v23, s86, v23
    v_mul_f32 v22, s86, v22
    v_cvt_pk_bf16_f32 v24, v21, v20
    v_cvt_pk_bf16_f32 v25, v23, v22
    v_cvt_pk_bf16_f32 v26, v{r}, v{r+1}
    v_cvt_pk_bf16_f32 v27, v{r+2}, v{r+3}
    v_lshlrev_b32 v20, 16, v24
    v_and_b32 v21, 0xffff0000, v24
    v_lshlrev_b32 v22, 16, v25
    v_and_b32 v23, 0xffff0000, v25
    v_lshlrev_b32 v28, 16, v26
    v_and_b32 v29, 0xffff0000, v26
    v_lshlrev_b32 v30, 16, v27
    v_and_b32 v31, 0xffff0000, v27
    v_add_f32 v20, v20, v28
    v_add_f32 v21, v21, v29
    v_add_f32 v22, v22, v30
    v_add_f32 v23, v23, v31
    v_cvt_pk_bf16_f32 v12, v20, v21
    v_cvt_pk_bf16_f32 v13, v22, v23
    buffer_store_dwordx2 v[12:13], v15, {WS}, s88 offen sc1
    """)


WPRE = 64
HB = [32, 48, 240]
ACC2 = 176


def gemm2_map(a):
    a(f"""
    s_and_b32 s96, s2, 7
    s_lshr_b32 s97, s2, 3
    s_lshl_b32 s96, s96, 2
    s_and_b32 s98, s97, 3
    s_add_u32 s{S_TT}, s96, s98
    s_lshr_b32 s{S_DD}, s97, 2
    """)


def w_prefetch(a):
    a(f"""
    s_mul_i32 s72, s3, 7
    s_lshl_b32 s72, s72, 5
    s_lshl_b32 s73, s{S_DD}, 2
    s_add_u32 s72, s72, s73
    s_lshl_b32 s72, s72, 10
    s_add_u32 s72, s72, {WDT_OFF}
    """)
    for st in range(7):
        r = WPRE + 16 * st
        for aa in range(4):
            a(f"buffer_load_dwordx4 v[{r+4*aa}:{r+4*aa+3}], v5, {WS}, s72 offen offset:{1024*aa} sc1")
            if aa == 3:
                a("s_add_u32 s72, s72, 32768")


def gemm2(a):
    vm = VM()
    a(f"""
    s_mul_i32 s76, s3, 7
    s_lshl_b32 s77, s{S_TT}, 2
    s_mul_i32 s77, s77, 56
    s_add_u32 s77, s77, s76
    s_lshl_b32 s77, s77, 10
    s_add_u32 s80, s77, {H_OFF}
    s_add_u32 s81, s80, {56*1024}
    s_add_u32 s82, s80, {2*56*1024}
    s_add_u32 s83, s80, {3*56*1024}
    """)
    def h_issue(j):
        fb = HB[j % 3]
        for b in range(4):
            a(f"buffer_load_dwordx4 v[{fb+4*b}:{fb+4*b+3}], v5, {WS}, s{80+b} offen offset:{1024*(j%4)} sc1")
            if j % 4 == 3:
                a(f"s_add_u32 s{80+b}, s{80+b}, 4096")
        vm.issue(f"H{j}", 4)
    for j in range(3):
        h_issue(j)
    for j in range(7):
        vm.wait(a, f"H{j}")
        fb = HB[j % 3]
        wb = WPRE + 16 * j
        for aa in range(4):
            for b in range(4):
                r = ACC2 + (aa * 4 + b) * 4
                cc = "0" if j == 0 else f"v[{r}:{r+3}]"
                a(f"v_mfma_f32_16x16x32_bf16 v[{r}:{r+3}], v[{wb+4*aa}:{wb+4*aa+3}], v[{fb+4*b}:{fb+4*b+3}], {cc}")
        if j + 3 < 7:
            h_issue(j + 3)
    a(f"""
    s_lshl_b32 s76, s3, 14
    s_add_u32 s76, s76, {G2P}
    v_add_u32 v6, s76, v5
    """)
    for i in range(16):
        a(f"ds_write_b128 v6, v[{ACC2+4*i}:{ACC2+4*i+3}] offset:{1024*i}")


def final(a, waitC):
    a(f"""
    s_lshr_b32 s76, s3, 1
    s_lshl_b32 s77, s3, 1
    s_and_b32 s77, s77, 3
    s_lshl_b32 s78, s{S_TT}, 6
    s_lshl_b32 s79, s77, 4
    s_add_u32 s78, s78, s79
    s_lshl_b32 s78, s78, 10
    s_lshl_b32 s79, s{S_DD}, 7
    s_add_u32 s78, s78, s79
    s_lshl_b32 s79, s76, 5
    s_add_u32 s78, s78, s79
    s_add_u32 s79, s78, 16384
    v_lshlrev_b32 v7, 10, v2
    v_lshl_add_u32 v7, v3, 3, v7
    buffer_load_dwordx2 v[10:11], v7, s[{SRD_X}:{SRD_X+3}], s78 offen
    buffer_load_dwordx2 v[12:13], v7, s[{SRD_X}:{SRD_X+3}], s79 offen
    """)
    waitC(a)
    a(f"""
    v_lshrrev_b32 v8, 4, v0
    v_and_b32 v9, 15, v0
    v_lshlrev_b32 v14, 12, v8
    v_lshl_add_u32 v14, v9, 3, v14
    s_lshl_b32 s80, s{S_DD}, 18
    s_lshl_b32 s81, s{S_TT}, 7
    s_add_u32 s80, s80, s81
    s_add_u32 s80, s80, {S_OFF}
    s_add_u32 s81, s80, {32*4096}
    buffer_load_dwordx2 v[16:17], v14, {WS}, s80 offen sc1
    buffer_load_dwordx2 v[18:19], v14, {WS}, s81 offen sc1
    v_mul_u32_u24 v15, {SROW}, v8
    v_lshl_add_u32 v15, v9, 3, v15
    v_add_u32 v15, {STILE}, v15
    s_waitcnt vmcnt(0)
    ds_write_b64 v15, v[16:17]
    ds_write_b64 v15, v[18:19] offset:{32*SROW}
    s_waitcnt lgkmcnt(0)
    s_barrier
    s_lshl_b32 s80, s3, 11
    s_add_u32 s80, s80, {G2P}
    v_add_u32 v20, s80, v5
    v_add_u32 v19, 65536, v20
    """)
    for i in range(2):
        for kq in range(8):
            r = 96 + (i * 8 + kq) * 4
            a(f"ds_read_b128 v[{r}:{r+3}], v{20 if kq < 4 else 19} offset:{(kq%4)*16384 + i*1024}")
    a(f"""
    v_lshlrev_b32 v21, 2, v3
    s_lshl_b32 s80, s76, 4
    v_add_u32 v21, s80, v21
    v_mul_u32_u24 v21, {SROW}, v21
    v_lshl_add_u32 v21, v2, 1, v21
    s_lshl_b32 s80, s77, 5
    s_add_u32 s80, s80, {STILE}
    v_add_u32 v21, s80, v21
    """)
    for i in range(2):
        for e in range(4):
            a(f"ds_read_u16 v{64+4*i+e}, v21 offset:{e*SROW + 32*i}")
    a(f"s_mov_b32 s82, {NLOG2E}\n s_waitcnt lgkmcnt(0)")
    for i in range(2):
        b0 = 96 + i * 32
        for e in range(4):
            a(f"""
            v_add_f32 v{b0+e}, v{b0+e}, v{b0+4+e}
            v_add_f32 v{b0+8+e}, v{b0+8+e}, v{b0+12+e}
            v_add_f32 v{b0+16+e}, v{b0+16+e}, v{b0+20+e}
            v_add_f32 v{b0+24+e}, v{b0+24+e}, v{b0+28+e}
            v_add_f32 v{b0+e}, v{b0+e}, v{b0+8+e}
            v_add_f32 v{b0+16+e}, v{b0+16+e}, v{b0+24+e}
            v_add_f32 v{b0+e}, v{b0+e}, v{b0+16+e}
            """)
        for pr in range(2):
            o0, o1 = b0 + 2 * pr, b0 + 2 * pr + 1
            s0, s1 = 64 + 4 * i + 2 * pr, 64 + 4 * i + 2 * pr + 1
            xx = 10 + 2 * i + pr
            a(f"""
            v_cvt_pk_bf16_f32 v22, v{o0}, v{o1}
            v_lshlrev_b32 v23, 16, v22
            v_and_b32 v24, 0xffff0000, v22
            v_mul_f32 v25, s82, v23
            v_mul_f32 v26, s82, v24
            v_exp_f32 v25, v25
            v_exp_f32 v26, v26
            v_lshlrev_b32 v{s0}, 16, v{s0}
            v_lshlrev_b32 v{s1}, 16, v{s1}
            v_add_f32 v25, 1.0, v25
            v_add_f32 v26, 1.0, v26
            v_rcp_f32 v25, v25
            v_rcp_f32 v26, v26
            s_nop 0
            v_mul_f32 v25, v25, v23
            v_mul_f32 v26, v26, v24
            v_cvt_pk_bf16_f32 v22, v25, v26
            v_lshlrev_b32 v23, 16, v22
            v_and_b32 v24, 0xffff0000, v22
            v_mul_f32 v23, v23, v{s0}
            v_mul_f32 v24, v24, v{s1}
            v_cvt_pk_bf16_f32 v22, v23, v24
            v_lshlrev_b32 v23, 16, v22
            v_and_b32 v24, 0xffff0000, v22
            v_lshlrev_b32 v25, 16, v{xx}
            v_and_b32 v26, 0xffff0000, v{xx}
            v_add_f32 v23, v23, v25
            v_add_f32 v24, v24, v26
            v_cvt_pk_bf16_f32 v{28+2*i+pr}, v23, v24
            """)
        a(f"buffer_store_dwordx2 v[{28+2*i}:{29+2*i}], v7, s[{SRD_OUT}:{SRD_OUT+3}], s{78+i} offen")


def cnt_addr(a, sreg, idx_expr_sreg, shift, base):
    a(f"""
    s_lshr_b32 s{sreg}, s{idx_expr_sreg}, {shift}
    s_lshl_b32 s{sreg}, s{sreg}, 8
    s_add_u32 s{sreg}, s{sreg}, {base * 256}
    """)


def build():
    a = Asm()
    vm = VM()
    prologue(a, vm)
    stamp(a, 1)
    ln(a, vm)
    stamp(a, 2)
    wdt_issue(a, vm)
    gemm1_setup(a)
    kgen_setup(a)
    a("s_waitcnt vmcnt(0)")
    a("v_readfirstlane_b32 s89, v61\n v_readfirstlane_b32 s74, v60")
    a("s_barrier")
    stamp(a, 3)
    def sigA(a):
        a(f"""
        v_readfirstlane_b32 s76, v8
        s_cmp_lg_u32 s76, 0
        s_cbranch_scc1 LsigA_go
        v_mov_b32 v10, 0
        """)
        poll(a, 10, 1, 11, "LsigA_poll", SRD_DBG)
        a("LsigA_go:")
        cnt_addr(a, 76, 2, 4, CNT_A)
        atomic_inc(a, 76, 10, 11)
    wave0(a, "LsigA_skip", sigA)
    def side0(x):
        dma_block(x, vm, 0)
        dma_block(x, vm, 1)
        wdt_loads(x, vm)
    merged(a, lambda x: kgen_tables(x, 0), side0, 8, start=2)
    a("s_waitcnt lgkmcnt(0)\n s_barrier")
    stamp(a, 4)
    kpads(a, 0)
    kgen_mfma(a, 0)
    def waitA(a):
        a(f"v_lshlrev_b32 v10, 8, v2\n v_add_u32 v10, {CNT_A * 256}, v10")
        poll(a, 10, 16, 11, "LwaitA")
    a("s_waitcnt lgkmcnt(0)")
    wave0(a, "LwaitA_skip", waitA)
    a("s_barrier")
    stamp(a, 5)
    xcol_issue(a, vm)
    x_addr(a)
    x_issue(a, vm, 0, 3)
    wdt_store(a, vm)
    conv_setup(a, 0)
    xcol_stage(a, vm)
    a("s_waitcnt lgkmcnt(0)\n s_barrier")
    stamp(a, 6)
    merged(a, conv_mfma, lambda x: x_issue(x, vm, 3, 12), 3, start=24)
    stamp(a, 7)
    def post0(a):
        a("s_barrier")
        dma_block(a, vm, 2)
        dma_block(a, vm, 3)
        x_issue(a, vm, 12, 16)
    conv_finish(a, 0, post0)
    stamp(a, 17)
    def pre_epi(a, vm_):
        par_loads(a, vm_, 1)
    gemm1(a, vm, pre_epi)
    stamp(a, 20)
    a("s_barrier")
    kgen_setup(a)
    gemm2_map(a)
    a("s_waitcnt vmcnt(4)")
    stamp(a, 21)
    merged(a, lambda x: kgen_tables(x, 1), w_prefetch, 6, start=2)
    a("s_waitcnt vmcnt(28) lgkmcnt(0)\n s_barrier")
    def sigB(a):
        cnt_addr(a, 76, 4, 0, CNT_B)
        atomic_inc(a, 76, 10, 11)
    wave0(a, "LsigB_skip", sigB)
    stamp(a, 22)
    kpads(a, 1)
    kgen_mfma(a, 1)
    conv_setup(a, 1)
    a("s_waitcnt lgkmcnt(0)\n s_barrier")
    stamp(a, 23)
    if DEBUG:
        a(f"""
        v_lshlrev_b32 v6, 4, v0
        v_add_u32 v7, {KCP + KCH}, v6
        ds_read_b128 v[8:11], v7
        s_lshl_b32 s76, s2, 13
        s_add_u32 s76, s76, {DBG_OFF}
        s_waitcnt lgkmcnt(0)
        buffer_store_dwordx4 v[8:11], v6, {WS}, s76 offen
        v_mov_b32 v8, s91
        v_mov_b32 v9, s74
        v_mov_b32 v10, v48
        v_mov_b32 v11, v53
        s_add_u32 s76, s76, 0
        v_add_u32 v6, 0x700000, v6
        buffer_store_dwordx4 v[8:11], v6, {WS}, s76 offen
        """)
    conv_mfma(a)
    conv_finish(a, 1)
    stamp(a, 24)
    cnt_addr(a, 76, S_TT, 1, CNT_B)
    a("v_mov_b32 v10, s76")
    poll(a, 10, 16, 11, "LwaitB")
    a(f"""
    v_mov_b32 v10, {MISC + 32}
    v_mov_b32 v11, 1
    s_mov_b64 exec, 1
    ds_add_rtn_u32 v12, v10, v11
    s_waitcnt lgkmcnt(0)
    v_readfirstlane_b32 s76, v12
    s_mov_b64 exec, -1
    s_cmp_lg_u32 s76, 7
    s_cbranch_scc1 LsigC_skip
    """)
    cnt_addr(a, 76, 2, 5, CNT_C)
    atomic_inc(a, 76, 10, 11)
    a("LsigC_skip:\n s_barrier")
    stamp(a, 25)
    gemm2(a)
    stamp(a, 27)
    def waitC(a):
        cnt_addr(a, 86, S_DD, 0, CNT_C)
        a("v_mov_b32 v20, s86")
        poll(a, 20, 32, 21, "LwaitC")
    final(a, waitC)
    stamp(a, 30)
    a("s_waitcnt vmcnt(0)")
    stamp(a, 31)
    stamp_flush(a)
    a("Lexit:\n s_endpgm")
    a.finalize()
    txt = f"; @launch grid=(256,1,1) block=(512,1,1) lds={LDS_BYTES}\n"
    txt += '.amdgcn_target "amdgcn-amd-amdhsa--gfx950"\n.text\n'
    txt += f".globl {KNAME}\n.p2align 8\n.type {KNAME},@function\n" + a.text()
    txt += f""".section .rodata,"a"
.p2align 6
.amdhsa_kernel {KNAME}
  .amdhsa_next_free_vgpr 256
  .amdhsa_next_free_sgpr 102
  .amdhsa_accum_offset 256
  .amdhsa_group_segment_fixed_size 0
  .amdhsa_kernarg_size 128
  .amdhsa_user_sgpr_count 2
  .amdhsa_user_sgpr_kernarg_segment_ptr 1
  .amdhsa_system_sgpr_workgroup_id_x 1
.end_amdhsa_kernel
"""
    return txt


if __name__ == "__main__":
    for o in sys.argv[2:]:
        if o == "nostamp": STAMPS = False
        if o == "debug": DEBUG = True
        if o == "xplain": XSC = ""
        if o == "gplain": GSC = ""
    open(sys.argv[1], "w").write(build())
```

```python
import sys, struct
from dsl import Asm

KNAME = "recurrent_scan__ssm_conv_s4__glu_gated_glu__prompt_kernel"
STAMPS = True
DEBUG = False
XSC = " sc1"
GSC = " sc1"

CNT_A, CNT_B, CNT_C, CNT_W = 0, 16, 32, 40
XTS_ = 16640
XN_OFF = 1 << 20
XT_OFF = 4 << 20
WDT_OFF = 8 << 20
H_OFF = 16 << 20
S_OFF = 32 << 20
DBG_OFF = 64 << 20
STAMP_OFF = DBG_OFF + (8 << 20)

SLOT = 28672
NSLOT = 4
TAB = 2 * SLOT
TROW = 528
TAB_ROWS = 96
KCP = NSLOT * SLOT
KCOPY = 4416
KCH = 4 * KCOPY
MISC = KCP + 2 * KCH
XTS = KCP
XNS = KCP + 8192
XR = MISC + 256
LDS_BYTES = XR + 10240
XRW = 5120
CEX = 0
G2P = 0
STILE = 131072
SROW = 144

SRD_X, SRD_WS, SRD_WG, SRD_WU, SRD_OUT, SRD_DBG, SRD_WD, SRD_T0, SRD_T1 = 8, 12, 16, 20, 24, 28, 32, 36, 40
PTR = 44
def P(i): return PTR + 2 * i
S_ISC = 90
S_TT, S_DD = 64, 65

LOG2E = 0x3fb8aa3b
NLOG2E = 0xbfb8aa3b
INV2PI = 0x3e22f983
F32 = lambda x: hex(struct.unpack("<I", struct.pack("<f", x))[0])
WS = f"s[{SRD_WS}:{SRD_WS+3}]"


class VM:
    def __init__(self):
        self.ops = []
    def issue(self, tag, n=1):
        self.ops += [tag] * n
    def wait(self, a, tag):
        idx = max(i for i, t in enumerate(self.ops) if t == tag)
        n = len(self.ops) - 1 - idx
        a(f"s_waitcnt vmcnt({min(n, 63)})")
    def copy(self):
        v = VM(); v.ops = list(self.ops); return v


def merged(a, main_fn, side_fn, every, start=0):
    m = Asm(); main_fn(m)
    sd = Asm(); side_fn(sd)
    groups, cur = [], []
    for it in sd.items:
        if isinstance(it, str) and it == "; GROUP":
            groups.append(cur); cur = []
        else:
            cur.append(it)
    if cur:
        groups.append(cur)
    n = 0
    for it in m.items:
        a.items.append(it)
        if isinstance(it, str):
            continue
        n += 1
        if n >= start and (n - start) % every == 0 and groups:
            a.items += groups.pop(0)
    for g in groups:
        a.items += g


def srd(a, q, ptr_idx, nbytes):
    a(f"""
    s_mov_b32 s{q}, s{P(ptr_idx)}
    s_and_b32 s{q+1}, s{P(ptr_idx)+1}, 0xffff
    s_mov_b32 s{q+2}, {nbytes}
    s_mov_b32 s{q+3}, 0x00020000
    """)


def stamp(a, idx):
    if not STAMPS:
        return
    a(f"""
    s_memtime s[100:101]
    s_waitcnt lgkmcnt(0)
    v_writelane_b32 v4, s100, {idx}
    """)


def stamp_flush(a):
    if not STAMPS:
        return
    a(f"""
    s_lshl_b32 s76, s2, 3
    s_add_u32 s76, s76, s3
    s_lshl_b32 s76, s76, 8
    s_add_u32 s76, s76, {STAMP_OFF}
    v_lshlrev_b32 v6, 2, v1
    buffer_store_dword v4, v6, {WS}, s76 offen
    """)


def allreduce(a, v, tmp, op="v_add_f32"):
    a(f"""
    {op}_dpp v{v}, v{v}, v{v} quad_perm:[1,0,3,2] row_mask:0xf bank_mask:0xf
    {op}_dpp v{v}, v{v}, v{v} quad_perm:[2,3,0,1] row_mask:0xf bank_mask:0xf
    {op}_dpp v{v}, v{v}, v{v} row_half_mirror row_mask:0xf bank_mask:0xf
    {op}_dpp v{v}, v{v}, v{v} row_mirror row_mask:0xf bank_mask:0xf
    v_mov_b32 v{tmp}, v{v}
    v_permlane16_swap_b32 v{v}, v{tmp}
    {op} v{v}, v{v}, v{tmp}
    v_mov_b32 v{tmp}, v{v}
    v_permlane32_swap_b32 v{v}, v{tmp}
    {op} v{v}, v{v}, v{tmp}
    """)


def bf16r(a, dst, src):
    a(f"v_cvt_pk_bf16_f32 v{dst}, v{src}, v{src}\n v_lshlrev_b32 v{dst}, 16, v{dst}")


def poll(a, vreg, target, tmpv, label, srdq=SRD_WS):
    a(f"""
    s_mov_b32 s99, 0
{label}:
    buffer_load_dword v{tmpv}, v{vreg}, s[{srdq}:{srdq+3}], 0 offen sc1
    s_waitcnt vmcnt(0)
    v_cmp_gt_u32 vcc, {target}, v{tmpv}
    s_cbranch_vccz {label}_ok
    s_sleep 1
    s_add_u32 s99, s99, 1
    s_cmp_lt_u32 s99, 0x8000
    s_cbranch_scc1 {label}
{label}_ok:
    """)


def atomic_inc(a, s_off, v1, v2):
    a(f"""
    v_mov_b32 v{v1}, s{s_off}
    v_mov_b32 v{v2}, 1
    s_mov_b64 exec, 1
    buffer_atomic_add v{v2}, v{v1}, {WS}, 0 offen sc1
    s_mov_b64 exec, -1
    """)


def wave0(a, label, fn):
    a(f"s_cmp_lg_u32 s3, 0\n s_cbranch_scc1 {label}")
    fn(a)
    a(f"{label}:")


def par_loads(a, vm, c):
    a(f"""
    v_lshlrev_b32 v62, 2, v1
    v_mov_b32 v63, 0
    s_lshl_b32 s76, s67, 9
    s_add_u32 s76, s76, {256*c}
    s_lshl_b32 s78, s67, 2
    """)
    for i in range(6):
        q = SRD_T0 if i % 2 == 0 else SRD_T1
        srd(a, q, 1 + i, 512 * 128 * 2)
        a(f"buffer_load_dword v{48+i}, v62, s[{q}:{q+3}], s76 offen")
    vm.issue("par", 6)


def prologue(a, vm):
    a(f"""
{KNAME}:
    s_cmp_ge_u32 s2, 256
    s_cbranch_scc1 Lexit
    s_load_dwordx16 s[44:59], s[0:1], 0
    s_load_dwordx16 s[60:75], s[0:1], 64
    v_and_b32 v1, 63, v0
    v_lshrrev_b32 v4, 6, v0
    v_and_b32 v2, 15, v1
    v_lshrrev_b32 v3, 4, v1
    v_readfirstlane_b32 s3, v4
    v_lshlrev_b32 v5, 4, v1
    s_lshl_b32 s86, s2, 3
    s_add_u32 s86, s86, s3
    s_lshl_b32 s87, s86, 10
    s_waitcnt lgkmcnt(0)
    """)
    srd(a, SRD_X, 0, 2048 * 512 * 2)
    a(f"buffer_load_dwordx4 v[10:13], v5, s[{SRD_X}:{SRD_X+3}], s87 offen")
    vm.issue("x")
    srd(a, SRD_WS, 15, 256 << 20)
    srd(a, SRD_DBG, 14, 256)
    a("v_mov_b32 v4, 0")
    stamp(a, 0)
    a(f"""
    s_cmp_lg_u32 s2, 0
    s_cbranch_scc1 Linit_skip
    s_cmp_lg_u32 s3, 0
    s_cbranch_scc1 Linit_skip
    v_lshlrev_b32 v6, 8, v1
    v_mov_b32 v7, 0
    buffer_store_dword v7, v6, {WS}, 0 offen sc1
    s_waitcnt vmcnt(0)
    v_mov_b32 v6, 1
    s_mov_b64 exec, 1
    buffer_store_dword v6, v7, s[{SRD_DBG}:{SRD_DBG+3}], 0 offen sc1
    s_mov_b64 exec, -1
Linit_skip:
    """)
    srd(a, SRD_WG, 10, 512 * 1792 * 2)
    srd(a, SRD_WU, 11, 512 * 1792 * 2)
    srd(a, SRD_OUT, 13, 2048 * 512 * 2)
    srd(a, SRD_WD, 12, 1792 * 512 * 2)
    a(f"""
    s_and_b32 s67, s2, 7
    s_lshl_b32 s67, s67, 5
    s_lshr_b32 s76, s2, 3
    s_add_u32 s67, s67, s76
    v_mov_b32 v63, 0
    s_lshl_b32 s76, s2, 12
    s_cmp_eq_u32 s3, 0
    s_cbranch_scc1 Lt0
    s_cmp_eq_u32 s3, 1
    s_cbranch_scc1 Lt1
    s_cmp_eq_u32 s3, 2
    s_cbranch_scc1 Lt2
    s_cmp_eq_u32 s3, 3
    s_cbranch_scc1 Lt3
    s_cmp_eq_u32 s3, 4
    s_cbranch_scc1 Lt4
    s_cmp_eq_u32 s3, 5
    s_cbranch_scc1 Lt5
    s_cmp_eq_u32 s3, 6
    s_cbranch_scc1 Lt6
    buffer_load_dword v250, v63, s[{SRD_OUT}:{SRD_OUT+3}], s76 offen
    s_branch Ltj
Lt0:
    buffer_load_dword v250, v63, s[{SRD_WG}:{SRD_WG+3}], s76 offen
    s_branch Ltj
Lt1:
    buffer_load_dword v250, v63, s[{SRD_WU}:{SRD_WU+3}], s76 offen
    s_branch Ltj
Lt2:
    buffer_load_dword v250, v63, s[{SRD_WD}:{SRD_WD+3}], s76 offen
    s_branch Ltj
Lt3:
    s_mov_b32 s77, {(3 << 20) + (1 << 19)}
    buffer_load_dword v250, v63, {WS}, s77 offen
    s_branch Ltj
Lt4:
    s_mov_b32 s77, {1 << 19}
    buffer_load_dword v250, v63, {WS}, s77 offen
    s_branch Ltj
Lt5:
    s_mov_b32 s77, {WDT_OFF + 1900000}
    buffer_load_dword v250, v63, {WS}, s77 offen
    s_branch Ltj
Lt6:
    s_mov_b32 s77, {H_OFF + (15 << 19)}
    buffer_load_dword v250, v63, {WS}, s77 offen
Ltj:
    """)
    vm.issue("tlb")
    par_loads(a, vm, 0)
    srd(a, SRD_T0, 7, 1024)
    a(f"buffer_load_dword v60, v63, s[{SRD_T0}:{SRD_T0+3}], s78 offen")
    srd(a, SRD_T1, 8, 1024)
    a(f"buffer_load_dword v61, v63, s[{SRD_T1}:{SRD_T1+3}], s78 offen")
    vm.issue("par", 2)
    a("s_waitcnt vmcnt(63)")
    a(f"""
    v_mov_b32 v200, {MISC}
    v_mov_b32 v201, 0
    v_lshl_add_u32 v200, v2, 2, v200
    ds_write_b32 v200, v201
    """)


def ln(a, vm):
    f = 20
    vm.wait(a, "x")
    for i in range(4):
        a(f"v_lshlrev_b32 v{f+2*i}, 16, v{10+i}\n v_and_b32 v{f+2*i+1}, 0xffff0000, v{10+i}")
    a(f"""
    v_add_f32 v28, v{f}, v{f+1}
    v_add_f32 v29, v{f+2}, v{f+3}
    v_add_f32 v30, v{f+4}, v{f+5}
    v_add_f32 v31, v{f+6}, v{f+7}
    v_add_f32 v28, v28, v29
    v_add_f32 v30, v30, v31
    v_add_f32 v28, v28, v30
    """)
    allreduce(a, 28, 29)
    a("v_mul_f32 v28, 0x3b000000, v28")
    a(f"v_sub_f32 v30, v{f}, v28\n v_mul_f32 v31, v30, v30")
    for i in range(1, 8):
        a(f"v_sub_f32 v30, v{f+i}, v28\n v_fmac_f32 v31, v30, v30")
    allreduce(a, 31, 29)
    a("v_mul_f32 v31, 0x3b000000, v31")
    bf16r(a, 28, 28)
    bf16r(a, 31, 31)
    a("v_add_f32 v31, 0x3727c5ac, v31")
    bf16r(a, 31, 31)
    a("v_sqrt_f32 v31, v31")
    bf16r(a, 31, 31)
    a("v_rcp_f32 v32, v31")
    for i in range(8):
        a(f"v_sub_f32 v{f+i}, v{f+i}, v28")
    for i in range(4):
        a(f"""
        v_cvt_pk_bf16_f32 v33, v{f+2*i}, v{f+2*i+1}
        v_lshlrev_b32 v{f+2*i}, 16, v33
        v_and_b32 v{f+2*i+1}, 0xffff0000, v33
        """)
    for i in range(8):
        a(f"""
        v_mul_f32 v33, v{f+i}, v32
        v_fma_f32 v34, -v33, v31, v{f+i}
        v_fma_f32 v{f+i}, v34, v32, v33
        """)
    for i in range(4):
        a(f"v_cvt_pk_bf16_f32 v{10+i}, v{f+2*i}, v{f+2*i+1}")
    a(f"""
    s_mul_i32 s91, s3, 1040
    s_add_u32 s91, s91, {XNS}
    v_add_u32 v9, s91, v5
    ds_write_b128 v9, v[10:13]
    v_and_b32 v6, 7, v0
    v_lshrrev_b32 v9, 3, v0
    v_mul_u32_u24 v33, 1040, v6
    v_lshl_add_u32 v33, v9, 4, v33
    v_add_u32 v33, {XNS}, v33
    v_lshlrev_b32 v34, 8, v9
    v_lshl_add_u32 v34, v6, 4, v34
    s_lshr_b32 s91, s2, 1
    s_mul_i32 s91, s91, {XTS_}
    s_and_b32 s92, s2, 1
    s_lshl_b32 s92, s92, 7
    s_add_u32 s91, s91, s92
    s_add_u32 s91, s91, {XN_OFF}
    s_waitcnt lgkmcnt(0)
    s_barrier
    ds_read_b128 v[40:43], v33
    s_waitcnt lgkmcnt(0)
    buffer_store_dwordx4 v[40:43], v34, {WS}, s91 offen sc1
    v_mov_b32 v7, 0
    buffer_load_dword v8, v7, s[{SRD_DBG}:{SRD_DBG+3}], 0 offen sc1
    """)
    vm.issue("lnst", 2)


def wdt_issue(a, vm):
    t = 86
    a(f"""
    s_min_u32 s88, s3, 6
    s_mul_i32 s{t+3}, s2, 7
    s_add_u32 s88, s88, s{t+3}
    s_lshr_b32 s{t+3}, s88, 5              ; J
    s_and_b32 s{t+4}, s88, 31              ; Dt
    s_mul_i32 s{t+5}, s{t+3}, 37
    s_lshr_b32 s{t+5}, s{t+5}, 8
    s_mul_i32 s{t+6}, s{t+5}, 7
    s_sub_u32 s{t+6}, s{t+3}, s{t+6}
    s_mul_i32 s{t+5}, s{t+5}, 224
    s_lshl_b32 s{t+7}, s{t+6}, 5
    s_add_u32 s{t+5}, s{t+5}, s{t+7}
    s_cmp_ge_u32 s{t+6}, 3
    s_cselect_b32 s{t+7}, 16, 0
    s_add_u32 s{t+3}, s{t+5}, s{t+7}
    s_add_u32 s{t+7}, s{t+3}, 16
    s_sub_u32 s{t+8}, s{t+5}, 96
    s_add_u32 s{t+9}, s{t+5}, 16
    s_cmp_eq_u32 s{t+6}, 6
    s_cselect_b32 s{t+3}, s{t+8}, s{t+3}
    s_cselect_b32 s{t+7}, s{t+9}, s{t+7}
    s_lshl_b32 s{t+4}, s{t+4}, 5
    s_lshl_b32 s{t+3}, s{t+3}, 10
    s_lshl_b32 s{t+7}, s{t+7}, 10
    s_add_u32 s{t+3}, s{t+3}, s{t+4}
    s_add_u32 s{t+4}, s{t+7}, s{t+4}
    v_lshlrev_b32 v6, 12, v3
    v_lshl_add_u32 v6, v2, 1, v6
    """)
    a("s_mov_b32 s83, s88\n s_mov_b32 s72, s89\n s_mov_b32 s73, s90")


def wdt_loads(a, vm):
    for j in range(8):
        a(f"buffer_load_ushort v{40+j}, v6, s[{SRD_WD}:{SRD_WD+3}], s{72+(j//4)} offen offset:{1024*(j%4)}")
    vm.issue("wg", 8)


def wdt_store(a, vm):
    vm.wait(a, "wg")
    a(f"""
    v_lshl_or_b32 v14, v41, 16, v40
    v_lshl_or_b32 v15, v43, 16, v42
    v_lshl_or_b32 v16, v45, 16, v44
    v_lshl_or_b32 v17, v47, 16, v46
    s_lshl_b32 s83, s83, 10
    s_add_u32 s83, s83, {WDT_OFF}
    buffer_store_dwordx4 v[14:17], v5, {WS}, s83 offen sc1
    """)
    vm.issue("wst")


def gemm1_setup(a):
    a(f"""
    s_and_b32 s76, s2, 7
    s_lshr_b32 s77, s2, 3
    s_and_b32 s78, s76, 1
    s_lshl_b32 s78, s78, 3
    s_and_b32 s79, s77, 7
    s_add_u32 s4, s78, s79               ; mt
    s_lshr_b32 s78, s76, 1
    s_lshl_b32 s78, s78, 2
    s_lshr_b32 s79, s77, 3
    s_add_u32 s5, s78, s79               ; nt
    s_mul_i32 s6, s5, 224
    s_mul_i32 s7, s3, 896
    s_and_b32 s78, s3, 4
    s_and_b32 s79, s3, 1
    s_lshl_b32 s79, s79, 1
    s_or_b32 s78, s78, s79
    s_lshr_b32 s79, s3, 1
    s_and_b32 s79, s79, 1
    s_or_b32 s78, s78, s79
    s_lshl_b32 s78, s78, 2
    v_mul_u32_u24 v18, 147, v1
    v_lshrrev_b32 v18, 11, v18
    v_mul_u32_u24 v19, 14, v18
    v_sub_u32 v19, v1, v19
    v_add_u32 v18, s78, v18
    v_mul_u32_u24 v18, 3584, v18
    v_lshl_add_u32 v18, v19, 4, v18
    """)


def dma_block(a, vm, b):
    slot = (b % NSLOT) * SLOT
    for hf in range(2):
        for img in range(2):
            q = SRD_WG if img == 0 else SRD_WU
            a(f"""
            s_add_u32 s75, s6, {(64*b + 32*hf) * 3584}
            s_add_u32 m0, s7, {slot + hf*14336 + img*7168}
            s_mov_b32 exec_hi, 0x00ffffff
            buffer_load_dwordx4 v18, s[{q}:{q+3}], s75 offen lds
            s_mov_b32 exec_hi, -1
            """)
    vm.issue(f"D{b}", 4)


TOFF = [120]
def T(x): return x + TOFF[0]


def cmul(a, R, X, Y, Tm):
    a(f"""
    v_pk_mul_f32 v[{Tm}:{Tm+1}], v[{X}:{X+1}], v[{Y}:{Y+1}] op_sel:[0,0] op_sel_hi:[1,0]
    v_pk_fma_f32 v[{R}:{R+1}], v[{X}:{X+1}], v[{Y}:{Y+1}], v[{Tm}:{Tm+1}] op_sel:[1,1,0] op_sel_hi:[0,1,1] neg_lo:[1,0,0]
    """)


def direct(a, R, s_l, A2, WV, t0):
    a(f"""
    v_mul_f32 v{t0}, s{s_l}, v{A2}
    v_mul_f32 v{t0+1}, s{s_l}, v{WV}
    v_exp_f32 v{t0}, v{t0}
    v_fract_f32 v{t0+1}, v{t0+1}
    v_cos_f32 v{t0+2}, v{t0+1}
    v_sin_f32 v{t0+3}, v{t0+1}
    v_mul_f32 v{R}, v{t0}, v{t0+2}
    v_mul_f32 v{R+1}, v{t0}, v{t0+3}
    """)


def kgen_setup(a):
    a(f"""
    s_and_b32 s76, s3, 1
    s_lshl_b32 s77, s76, 4
    s_lshr_b32 s78, s3, 1
    s_mov_b32 s79, 0
    s_mov_b32 s80, {F32(16.0)}
    s_mov_b32 s81, 0
    s_mov_b32 s82, 1.0
    s_cmp_eq_u32 s78, 1
    s_cselect_b32 s79, {F32(256.0)}, s79
    s_cselect_b32 s81, {F32(8.0)}, s81
    s_cmp_eq_u32 s78, 2
    s_cselect_b32 s79, {F32(512.0)}, s79
    s_cselect_b32 s80, {F32(32.0)}, s80
    s_cselect_b32 s81, {F32(16.0)}, s81
    s_cselect_b32 s82, 4.0, s82
    s_cmp_eq_u32 s78, 3
    s_cselect_b32 s79, {F32(1024.0)}, s79
    s_cselect_b32 s80, {F32(64.0)}, s80
    s_cselect_b32 s81, {F32(32.0)}, s81
    s_cselect_b32 s82, {F32(8.0)}, s82
    s_cmp_eq_u32 s76, 1
    s_cselect_b64 s[84:85], -1, 0
    s_lshl_b32 s86, s76, 8
    s_mul_i32 s87, s78, {8*TROW}
    s_add_u32 s86, s86, {TAB}
    s_add_u32 s87, s87, s86
    s_mul_i32 s88, s78, {16*TROW}
    s_add_u32 s88, s88, s86
    s_add_u32 s88, s88, {32*TROW}
    v_lshl_add_u32 v30, v1, 2, s87
    v_lshl_add_u32 v31, v1, 2, s88
    s_mov_b32 s92, 0
    s_cmp_ge_u32 s3, 1
    s_cselect_b32 s92, 1, s92
    s_cmp_ge_u32 s3, 2
    s_cselect_b32 s92, 2, s92
    s_cmp_ge_u32 s3, 4
    s_cselect_b32 s92, 3, s92
    s_lshl_b32 s93, 128, s92
    s_cmp_eq_u32 s92, 0
    s_cselect_b32 s93, 0, s93
    s_lshl_b32 s94, 8, s92
    s_max_u32 s94, s94, 16
    s_lshl_b32 s95, 1, s92
    s_lshr_b32 s95, s95, 1
    s_sub_u32 s95, s3, s95
    s_lshl_b32 s95, s95, 4
    s_add_u32 s96, s93, s95
    v_add_u32 v32, s96, v2
    v_cvt_f32_u32 v32, v32
    v_cvt_pk_bf16_f32 v32, v32, v32
    v_lshlrev_b32 v32, 16, v32
    v_cvt_u32_f32 v32, v32
    v_subrev_u32 v32, s93, v32
    v_lshrrev_b32 v36, 2, v32
    v_add_u32 v36, 12, v36
    v_lshrrev_b32 v37, 3, v32
    v_add_u32 v37, 20, v37
    v_cmp_lt_u32 vcc, 32, v32
    v_cndmask_b32 v36, v36, v37, vcc
    v_cmp_gt_u32 vcc, 16, v32
    v_cndmask_b32 v32, v36, v32, vcc
    v_mul_u32_u24 v32, {TROW}, v32
    v_lshl_add_u32 v32, v3, 4, v32
    v_add_u32 v32, {TAB}, v32
    s_lshl_b32 s97, s92, 4
    s_add_u32 s97, s97, 32
    v_add_u32 v33, s97, v2
    v_mul_u32_u24 v33, {TROW}, v33
    v_lshl_add_u32 v33, v3, 4, v33
    v_add_u32 v33, {TAB}, v33
    v_mul_lo_u32 v34, v2, s94
    v_lshl_add_u32 v34, v3, 2, v34
    v_add_u32 v34, s96, v34
    v_add_u32 v34, 16, v34
    v_add_u32 v35, 4, v34
    v_lshrrev_b32 v35, 6, v35
    v_lshlrev_b32 v35, 3, v35
    v_lshl_add_u32 v35, v34, 1, v35
    v_add_u32 v35, {KCP}, v35
    v_lshrrev_b32 v36, 6, v34
    v_lshlrev_b32 v36, 3, v36
    v_lshl_add_u32 v34, v34, 1, v36
    v_add_u32 v34, {KCP}, v34
    """)


def kpads(a, c):
    a(f"""
    s_cmp_lg_u32 s3, 0
    s_cbranch_scc1 Lkz_skip{c}
    v_mul_u32_u24 v36, {KCOPY}, v3
    v_lshl_add_u32 v36, v2, 1, v36
    v_add_u32 v36, {KCP + c * KCH}, v36
    v_mov_b32 v37, 0
    ds_write_b16 v36, v37
    v_cmp_gt_u32 vcc, v3, v2
    s_and_saveexec_b64 s[96:97], vcc
    ds_write_b16 v36, v37 offset:32
    s_mov_b64 exec, s[96:97]
Lkz_skip{c}:
    """)


def kgen_tables(a, c):
    pb = 48
    AR, AI, BR, BI, CR, CI = range(pb, pb + 6)
    t = T
    a(f"""
    {"s_lshl_b32 s68, s74, 16" if c == 0 else "s_and_b32 s68, s74, 0xffff0000"}
    v_mov_b32 v{t(72)}, s68
    v_mul_f32 v{t(72)}, {LOG2E}, v{t(72)}
    v_exp_f32 v{t(72)}, v{t(72)}
    s_nop 0
    v_cvt_pk_bf16_f32 v{t(72)}, v{t(72)}, v{t(72)}
    v_lshlrev_b32 v{t(72)}, 16, v{t(72)}
    v_lshlrev_b32 v{t(74)}, 16, v{BR}
    v_and_b32 v{t(75)}, 0xffff0000, v{BR}
    v_lshlrev_b32 v{t(76)}, 16, v{BI}
    v_and_b32 v{t(77)}, 0xffff0000, v{BI}
    v_lshlrev_b32 v{t(78)}, 16, v{CR}
    v_and_b32 v{t(79)}, 0xffff0000, v{CR}
    v_lshlrev_b32 v{t(80)}, 16, v{CI}
    v_and_b32 v{t(81)}, 0xffff0000, v{CI}
    v_mul_f32 v{t(74)}, v{t(72)}, v{t(74)}
    v_mul_f32 v{t(75)}, v{t(72)}, v{t(75)}
    v_mul_f32 v{t(76)}, v{t(72)}, v{t(76)}
    v_mul_f32 v{t(77)}, v{t(72)}, v{t(77)}
    v_mul_f32 v{t(82)}, v{t(78)}, v{t(74)}
    v_mul_f32 v{t(83)}, v{t(78)}, v{t(76)}
    v_mul_f32 v{t(84)}, v{t(79)}, v{t(75)}
    v_mul_f32 v{t(85)}, v{t(79)}, v{t(77)}
    v_fma_f32 v{t(82)}, -v{t(80)}, v{t(76)}, v{t(82)}
    v_fma_f32 v{t(83)}, v{t(80)}, v{t(74)}, v{t(83)}
    v_fma_f32 v{t(84)}, -v{t(81)}, v{t(77)}, v{t(84)}
    v_fma_f32 v{t(85)}, v{t(81)}, v{t(75)}, v{t(85)}
    v_max3_f32 v{t(86)}, abs(v{t(82)}), abs(v{t(83)}), abs(v{t(84)})
    v_max_f32 v{t(86)}, abs(v{t(85)}), v{t(86)}
    """)
    allreduce(a, t(86), t(87), "v_max_f32")
    a(f"""
    v_lshrrev_b32 v{t(86)}, 23, v{t(86)}
    v_max_u32 v{t(86)}, 8, v{t(86)}
    v_min_u32 v{t(86)}, 250, v{t(86)}
    v_sub_u32 v{t(87)}, 261, v{t(86)}
    v_lshlrev_b32 v{t(87)}, 23, v{t(87)}
    v_subrev_u32 v{t(86)}, 7, v{t(86)}
    v_lshlrev_b32 v{t(86)}, 23, v{t(86)}
    v_readfirstlane_b32 s{S_ISC+c}, v{t(86)}
    v_cndmask_b32 v{t(82)}, v{t(82)}, v{t(84)}, s[84:85]
    v_cndmask_b32 v{t(83)}, v{t(83)}, v{t(85)}, s[84:85]
    v_mul_f32 v{t(82)}, v{t(82)}, v{t(87)}
    v_mul_f32 v{t(83)}, v{t(83)}, v{t(87)}
    v_lshrrev_b32 v{t(74)}, s77, v{AR}
    v_lshlrev_b32 v{t(74)}, 16, v{t(74)}
    v_lshrrev_b32 v{t(75)}, s77, v{AI}
    v_lshlrev_b32 v{t(75)}, 16, v{t(75)}
    v_mul_f32 v{t(74)}, v{t(72)}, v{t(74)}
    v_mul_f32 v{t(75)}, v{t(72)}, v{t(75)}
    v_mul_f32 v{t(74)}, {LOG2E}, v{t(74)}
    v_mul_f32 v{t(75)}, {INV2PI}, v{t(75)}
    """)
    A2, WV = t(74), t(75)
    direct(a, t(88), 81, A2, WV, t(100))
    direct(a, t(90), 82, A2, WV, t(104))
    direct(a, t(92), 79, A2, WV, t(108))
    direct(a, t(94), 80, A2, WV, t(112))
    cmul(a, t(96), t(82), t(92), t(116))
    cmul(a, t(98), t(96), t(94), t(118))
    cmul(a, t(92), t(94), t(94), t(120))
    def wr(j):
        a(f"""
        v_cvt_pk_f16_f32 v{t(122)}, v{t(88)}, v{t(89)}
        ds_write_b32 v30, v{t(122)} offset:{j*TROW}
        v_cvt_pk_f16_f32 v{t(123)}, v{t(96)}, -v{t(97)}
        ds_write_b32 v31, v{t(123)} offset:{2*j*TROW}
        v_cvt_pk_f16_f32 v{t(124)}, v{t(98)}, -v{t(99)}
        ds_write_b32 v31, v{t(124)} offset:{(2*j+1)*TROW}
        """)
    wr(0)
    for j in range(1, 8):
        cmul(a, t(88), t(88), t(90), t(116))
        cmul(a, t(96), t(96), t(92), t(118))
        cmul(a, t(98), t(98), t(92), t(120))
        wr(j)


def kgen_mfma(a, c):
    acc = T(124)
    for half in range(2):
        for s4 in range(4):
            s = 4 * half + s4
            r = T(72) + 8 * s4
            a(f"ds_read_b128 v[{r}:{r+3}], v32 offset:{64*s}")
            a(f"ds_read_b128 v[{r+4}:{r+7}], v33 offset:{64*s}")
        for s4 in range(4):
            s = 4 * half + s4
            r = T(72) + 8 * s4
            a(f"s_waitcnt lgkmcnt({6-2*s4})")
            cc = "0" if s == 0 else f"v[{acc}:{acc+3}]"
            a(f"v_mfma_f32_16x16x32_f16 v[{acc}:{acc+3}], v[{r}:{r+3}], v[{r+4}:{r+7}], {cc}")
    o = c * KCH
    p0, p1, p2 = T(116), T(117), T(118)
    a(f"""
    v_cvt_pk_f16_f32 v{p0}, v{acc}, v{acc+1}
    v_cvt_pk_f16_f32 v{p1}, v{acc+2}, v{acc+3}
    v_alignbit_b32 v{p2}, v{p1}, v{p0}, 16
    ds_write_b64 v34, v[{p0}:{p1}] offset:{o}
    ds_write_b16 v34, v{p0} offset:{o + KCOPY + 2}
    ds_write_b32 v34, v{p2} offset:{o + KCOPY + 4}
    ds_write_b16_d16_hi v35, v{p1} offset:{o + KCOPY + 8}
    ds_write_b32 v34, v{p0} offset:{o + 2*KCOPY + 4}
    ds_write_b32 v35, v{p1} offset:{o + 2*KCOPY + 8}
    ds_write_b16 v34, v{p0} offset:{o + 3*KCOPY + 6}
    ds_write_b32 v35, v{p2} offset:{o + 3*KCOPY + 8}
    ds_write_b16_d16_hi v35, v{p1} offset:{o + 3*KCOPY + 12}
    """)


XF, ACC1, WF = 64, 128, 32


def x_addr(a):
    a(f"""
    s_lshl_b32 s69, s4, 3
    s_add_u32 s69, s69, s3
    s_mul_i32 s69, s69, {XTS_}
    s_add_u32 s69, s69, {XN_OFF}
    """)


def x_issue(a, vm, s0, s1):
    for s in range(s0, s1):
        r = XF + s * 4
        if s % 4 == 0 or s == s0:
            a(f"s_add_u32 s70, s69, {(s//4)*4096}")
        a(f"buffer_load_dwordx4 v[{r}:{r+3}], v5, {WS}, s70 offen offset:{1024*(s%4)}{XSC}")
        vm.issue(f"X{s}")


def epi1(a):
    a(f"""
    s_lshl_b32 s78, s4, 3
    s_add_u32 s78, s78, s3
    s_mul_i32 s78, s78, {56*1024}
    s_add_u32 s78, s78, {H_OFF}
    s_lshr_b32 s79, s5, 1
    s_mul_i32 s79, s79, 7
    s_and_b32 s80, s5, 1
    s_mul_i32 s81, s80, 3
    s_add_u32 s81, s81, s79
    s_lshl_b32 s81, s81, 10
    s_add_u32 s81, s81, s78
    s_add_u32 s83, s79, 6
    s_lshl_b32 s83, s83, 10
    s_add_u32 s83, s83, s78
    s_lshl_b32 s80, s80, 3
    s_add_u32 s83, s83, s80
    v_mov_b32 v38, {NLOG2E}
    """)
    for j in range(7):
        g_ = ACC1 + j * 4
        u = ACC1 + (7 + j) * 4
        ob = 8 + 4 * ((j // 2) % 4) + 2 * (j & 1)
        for pr in range(2):
            g0, g1, u0, u1 = g_ + 2 * pr, g_ + 2 * pr + 1, u + 2 * pr, u + 2 * pr + 1
            a(f"""
            v_cvt_pk_bf16_f32 v32, v{g0}, v{g1}
            v_cvt_pk_bf16_f32 v33, v{u0}, v{u1}
            v_lshlrev_b32 v34, 16, v32
            v_and_b32 v35, 0xffff0000, v32
            v_mul_f32 v34, v38, v34
            v_mul_f32 v35, v38, v35
            v_exp_f32 v34, v34
            v_exp_f32 v35, v35
            v_lshlrev_b32 v36, 16, v33
            v_and_b32 v37, 0xffff0000, v33
            v_add_f32 v34, 1.0, v34
            v_add_f32 v35, 1.0, v35
            v_rcp_f32 v34, v34
            v_rcp_f32 v35, v35
            s_nop 0
            v_cvt_pk_bf16_f32 v32, v34, v35
            v_lshlrev_b32 v34, 16, v32
            v_and_b32 v35, 0xffff0000, v32
            v_mul_f32 v34, v34, v36
            v_mul_f32 v35, v35, v37
            v_cvt_pk_bf16_f32 v{ob+pr}, v34, v35
            """)
        sb = 8 + 4 * ((j // 2) % 4)
        if j == 6:
            a(f"buffer_store_dwordx2 v[{ob}:{ob+1}], v5, {WS}, s83 offen sc1")
        elif j & 1:
            a(f"buffer_store_dwordx4 v[{sb}:{sb+3}], v5, {WS}, s81 offen offset:{(j//2)*1024} sc1")


def gemm1(a, vm, pre_epi):
    a(f"""
    v_lshrrev_b32 v24, 1, v3
    v_lshlrev_b32 v24, 4, v24
    v_and_b32 v25, 1, v3
    v_lshl_add_u32 v24, v25, 2, v24
    v_lshrrev_b32 v25, 2, v2
    v_add_u32 v24, v24, v25
    v_mul_u32_u24 v24, 224, v24
    v_and_b32 v25, 3, v2
    v_lshl_add_u32 v24, v25, 3, v24
    v_add_u32 v25, {SLOT}, v24
    v_add_u32 v26, {2*SLOT}, v24
    v_add_u32 v27, {3*SLOT}, v24
    """)
    frs = [(b, hf, j, img) for b in range(8) for hf in range(2) for j in range(7) for img in range(2)]
    per_blk = 28
    def rd(i):
        b, hf, j, img = frs[i]
        w = WF + (i % 8) * 4
        va = 24 + (b % NSLOT)
        off = hf * 14336 + img * 7168 + 32 * j
        a(f"ds_read_b64_tr_b16 v[{w}:{w+1}], v{va} offset:{off}")
        a(f"ds_read_b64_tr_b16 v[{w+2}:{w+3}], v{va} offset:{off+1792}")
    PD = 6
    wp = Asm(); w_prefetch(wp, 0, 4)
    wgroups, cur = [], []
    for it in wp.items:
        if isinstance(it, str) and it == "; GROUP":
            wgroups.append(cur); cur = []
        else:
            cur.append(it)
    for i, (b, hf, j, img) in enumerate(frs):
        s = 2 * b + hf
        if i % per_blk == 0:
            vm.wait(a, f"D{min(b + 1, 7)}")
            a("s_barrier")
            stamp(a, 8 + b)
            if b == 2:
                def sigW(a):
                    cnt_addr(a, 76, 2, 4, CNT_W)
                    atomic_inc(a, 76, 10, 11)
                wave0(a, "LsigW_skip", sigW)
            if b == 5:
                a(f"v_lshlrev_b32 v10, 8, v2\n v_add_u32 v10, {CNT_W * 256}, v10")
                poll(a, 10, 16, 11, "LwaitW")
            if 1 <= b and b + 3 < 8:
                dma_block(a, vm, b + 3)
            if b == 0:
                for k in range(PD):
                    rd(k)
        if j == 0 and img == 0:
            vm.wait(a, f"X{s}")
        out = min(PD - 1, len(frs) - 1 - i)
        a(f"s_waitcnt lgkmcnt({2*out})")
        w = WF + (i % 8) * 4
        xr = XF + s * 4
        r = ACC1 + (img * 7 + j) * 4
        cc = "0" if s == 0 else f"v[{r}:{r+3}]"
        a(f"v_mfma_f32_16x16x32_bf16 v[{r}:{r+3}], v[{w}:{w+3}], v[{xr}:{xr+3}], {cc}")
        if i + PD < len(frs):
            rd(i + PD)
        if b >= 5 and i % 5 == 4 and wgroups:
            a.items += wgroups.pop(0)
            vm.issue("WP")
    for g in wgroups:
        a.items += g
        vm.issue("WP")
    stamp(a, 16)
    pre_epi(a, vm)
    epi1(a)


CACC = 32
CFRL = [192]


def xcol_issue(a, vm):
    a(f"""
    s_lshl_b32 s77, s67, 1
    s_lshr_b32 s78, s77, 5
    s_lshl_b32 s78, s78, 10
    s_lshr_b32 s79, s77, 3
    s_and_b32 s79, s79, 3
    s_lshl_b32 s79, s79, 8
    s_add_u32 s78, s78, s79
    s_and_b32 s79, s77, 7
    s_lshl_b32 s79, s79, 1
    s_add_u32 s78, s78, s79
    s_mul_i32 s79, s3, {16*XTS_}
    s_add_u32 s78, s78, s79
    s_add_u32 s78, s78, {XN_OFF}
    v_mul_u32_u24 v6, {XTS_}, v3
    v_lshl_add_u32 v6, v2, 4, v6
    s_add_u32 s79, s78, {4*XTS_}
    s_add_u32 s80, s78, {8*XTS_}
    s_add_u32 s81, s78, {12*XTS_}
    buffer_load_dword v28, v6, {WS}, s78 offen sc1
    buffer_load_dword v29, v6, {WS}, s79 offen sc1
    buffer_load_dword v30, v6, {WS}, s80 offen sc1
    buffer_load_dword v31, v6, {WS}, s81 offen sc1
    """)
    vm.issue("XT", 4)


def xcol_stage(a, vm):
    vm.wait(a, "XT")
    a(f"""
    s_lshl_b32 s77, s3, 9
    s_sub_u32 s77, {XR + 4094}, s77
    v_lshlrev_b32 v6, 1, v1
    v_sub_u32 v6, s77, v6
    v_subrev_u32 v6, 384, v6
    """)
    for k in range(4):
        a(f"""
        v_lshlrev_b32 v7, 16, v{28+k}
        v_and_b32 v8, 0xffff0000, v{28+k}
        v_cvt_pk_f16_f32 v7, v7, v8
        ds_write_b16 v6, v7 offset:{384 - 128*k}
        ds_write_b16_d16_hi v6, v7 offset:{384 - 128*k + XRW}
        """)
    a(f"""
    v_lshlrev_b32 v6, 2, v1
    v_add_u32 v6, {XR + 4096}, v6
    v_mov_b32 v7, 0
    ds_write_b32 v6, v7
    ds_write_b32 v6, v7 offset:256
    ds_write_b32 v6, v7 offset:{XRW}
    ds_write_b32 v6, v7 offset:{XRW + 256}
    """)


def conv_setup(a, c):
    a(f"""
    v_sub_u32 v23, 3, v2
    v_and_b32 v23, 3, v23
    v_mul_u32_u24 v20, {KCOPY}, v23
    v_add_u32 v23, v23, v2
    v_lshlrev_b32 v24, 3, v3
    v_sub_u32 v23, v23, v24
    v_add_u32 v23, 25, v23                ; P0
    v_lshl_add_u32 v20, v23, 1, v20
    s_lshl_b32 s87, s3, 6
    s_add_u32 s87, s87, {KCP + c * KCH}
    v_add_u32 v20, s87, v20
    s_lshl_b32 s88, s3, 5
    v_add_u32 v23, s88, v23               ; P0 + 32r
    v_add_u32 v24, 4, v23
    v_lshrrev_b32 v24, 6, v24
    v_lshl_add_u32 v21, v24, 3, v20
    v_add_u32 v21, 8, v21                 ; B2
    v_lshrrev_b32 v23, 6, v23
    v_lshl_add_u32 v20, v23, 3, v20       ; B1
    v_lshlrev_b32 v22, 5, v2
    v_lshl_add_u32 v22, v3, 4, v22
    s_lshl_b32 s88, s3, 6
    s_add_u32 s88, s88, {XR + c * XRW + 528}
    v_sub_u32 v22, s88, v22
    """)


def conv_mfma(a):
    fb = CFRL[0]
    for q in range(8):
        a(f"ds_read_b64 v[{fb+4*q}:{fb+4*q+1}], v20 offset:{544*q}")
        a(f"ds_read_b64 v[{fb+4*q+2}:{fb+4*q+3}], v21 offset:{544*q}")
        a(f"ds_read_b128 v[{fb+32+4*q}:{fb+32+4*q+3}], v22 offset:{64*(56-8*q)}")
    done = set()
    k = 0
    for lvl in range(8):
        a(f"s_waitcnt lgkmcnt({min(15, 3*(7-lvl))})")
        for i in range(8):
            for q in range(i + 1):
                p = i - q
                if max(p, q) == lvl:
                    first = not any((i, q2) in done for q2 in range(i + 1))
                    cc = "0" if first else f"v[{CACC+4*i}:{CACC+4*i+3}]"
                    a(f"v_mfma_f32_16x16x32_f16 v[{CACC+4*i}:{CACC+4*i+3}], v[{fb+4*q}:{fb+4*q+3}], v[{fb+32+4*p}:{fb+32+4*p+3}], {cc}")
                    done.add((i, q))


def cex_addr(c, i):
    if c == 0:
        return (TAB, 7168, 1024 * i) if i < 7 else (KCP + KCH, 1024, 0)
    return (0, 8192, 1024 * i)


def conv_finish(a, c, post_read=None):
    if c == 0:
        a(f"""
        s_mul_i32 s84, s3, 7168
        s_add_u32 s84, s84, {TAB}
        v_add_u32 v6, s84, v5
        s_lshl_b32 s84, s3, 10
        s_add_u32 s84, s84, {KCP + KCH}
        v_add_u32 v7, s84, v5
        """)
        for i in range(7):
            a(f"ds_write_b128 v6, v[{CACC+4*i}:{CACC+3+4*i}] offset:{1024*i}")
        a(f"ds_write_b128 v7, v[{CACC+28}:{CACC+31}]")
        a(f"""
        s_lshl_b32 s84, s3, 10
        s_add_u32 s84, s84, {TAB}
        s_mov_b32 s85, 7168
        s_cmp_eq_u32 s3, 7
        s_cselect_b32 s84, {KCP + KCH}, s84
        s_cselect_b32 s85, 1024, s85
        """)
    else:
        a(f"""
        s_lshl_b32 s84, s3, 13
        v_add_u32 v6, s84, v5
        """)
        for i in range(8):
            a(f"ds_write_b128 v6, v[{CACC+4*i}:{CACC+3+4*i}] offset:{1024*i}")
        a("s_lshl_b32 s84, s3, 10\n s_mov_b32 s85, 8192")
    a(f"""
    v_add_u32 v7, s84, v5
    v_lshlrev_b32 v14, 4, v2
    v_lshl_add_u32 v14, v3, 2, v14
    s_lshl_b32 s86, s3, 8
    v_add_u32 v14, s86, v14               ; t0 = 256 w + 16a' + 4q
    v_lshlrev_b32 v15, 1, v14
    v_sub_u32 v16, {XR + c * XRW + 4088}, v15
    ds_read_b64 v[24:25], v16
    s_lshl_b32 s79, s67, 1
    s_add_u32 s79, s79, {c}
    s_lshl_b32 s80, s79, 12
    s_add_u32 s88, s80, {S_OFF}
    {"s_lshl_b32 s86, s89, 16" if c == 0 else "s_and_b32 s86, s89, 0xffff0000"}
    s_waitcnt lgkmcnt(0)
    s_barrier
    """)
    for k in range(8):
        r = CFRL[0] + 4 * k
        a(f"ds_read_b128 v[{r}:{r+3}], v7")
        if k < 7:
            a("v_add_u32 v7, s85, v7")
    a("s_waitcnt lgkmcnt(0)")
    if post_read:
        post_read(a)
    r = CFRL[0]
    for e in range(4):
        a(f"""
        v_add_f32 v{r+e}, v{r+e}, v{r+4+e}
        v_add_f32 v{r+8+e}, v{r+8+e}, v{r+12+e}
        v_add_f32 v{r+16+e}, v{r+16+e}, v{r+20+e}
        v_add_f32 v{r+24+e}, v{r+24+e}, v{r+28+e}
        v_add_f32 v{r+e}, v{r+e}, v{r+8+e}
        v_add_f32 v{r+16+e}, v{r+16+e}, v{r+24+e}
        v_add_f32 v{r+e}, v{r+e}, v{r+16+e}
        v_mul_f32 v{r+e}, s{S_ISC+c}, v{r+e}
        """)
    x0, x1 = 24, 25
    a(f"""
    v_cvt_f32_f16 v20, v{x1}
    v_lshrrev_b32 v21, 16, v{x1}
    v_cvt_f32_f16 v21, v21
    v_cvt_f32_f16 v22, v{x0}
    v_lshrrev_b32 v23, 16, v{x0}
    v_cvt_f32_f16 v23, v23
    v_mul_f32 v21, s86, v21
    v_mul_f32 v20, s86, v20
    v_mul_f32 v23, s86, v23
    v_mul_f32 v22, s86, v22
    v_cvt_pk_bf16_f32 v24, v21, v20
    v_cvt_pk_bf16_f32 v25, v23, v22
    v_cvt_pk_bf16_f32 v26, v{r}, v{r+1}
    v_cvt_pk_bf16_f32 v27, v{r+2}, v{r+3}
    v_lshlrev_b32 v20, 16, v24
    v_and_b32 v21, 0xffff0000, v24
    v_lshlrev_b32 v22, 16, v25
    v_and_b32 v23, 0xffff0000, v25
    v_lshlrev_b32 v28, 16, v26
    v_and_b32 v29, 0xffff0000, v26
    v_lshlrev_b32 v30, 16, v27
    v_and_b32 v31, 0xffff0000, v27
    v_add_f32 v20, v20, v28
    v_add_f32 v21, v21, v29
    v_add_f32 v22, v22, v30
    v_add_f32 v23, v23, v31
    v_cvt_pk_bf16_f32 v12, v20, v21
    v_cvt_pk_bf16_f32 v13, v22, v23
    buffer_store_dwordx2 v[12:13], v15, {WS}, s88 offen sc1
    """)


def WREG(j): return 192 + 16 * j if j < 4 else 128 + 16 * (j - 4)
HB = [32, 48, 176]
ACC2 = 64


def gemm2_map(a):
    a(f"""
    s_and_b32 s96, s2, 7
    s_lshr_b32 s97, s2, 3
    s_lshl_b32 s96, s96, 2
    s_and_b32 s98, s97, 3
    s_add_u32 s{S_TT}, s96, s98
    s_lshr_b32 s{S_DD}, s97, 2
    """)


def w_prefetch(a, j0, j1):
    a(f"""
    s_mul_i32 s72, s3, 7
    s_add_u32 s72, s72, {j0}
    s_lshl_b32 s72, s72, 5
    s_lshl_b32 s73, s{S_DD}, 2
    s_add_u32 s72, s72, s73
    s_lshl_b32 s72, s72, 10
    s_add_u32 s72, s72, {WDT_OFF}
    """)
    for st in range(j0, j1):
        r = WREG(st)
        for aa in range(4):
            a(f"buffer_load_dwordx4 v[{r+4*aa}:{r+4*aa+3}], v5, {WS}, s72 offen offset:{1024*aa} sc1")
            if aa == 3:
                a("s_add_u32 s72, s72, 32768")


def gemm2(a):
    vm = VM()
    a(f"""
    s_mul_i32 s76, s3, 7
    s_lshl_b32 s77, s{S_TT}, 2
    s_mul_i32 s77, s77, 56
    s_add_u32 s77, s77, s76
    s_lshl_b32 s77, s77, 10
    s_add_u32 s80, s77, {H_OFF}
    s_add_u32 s81, s80, {56*1024}
    s_add_u32 s82, s80, {2*56*1024}
    s_add_u32 s83, s80, {3*56*1024}
    """)
    def h_issue(j):
        fb = HB[j % 3]
        for b in range(4):
            a(f"buffer_load_dwordx4 v[{fb+4*b}:{fb+4*b+3}], v5, {WS}, s{80+b} offen offset:{1024*(j%4)} sc1")
            if j % 4 == 3:
                a(f"s_add_u32 s{80+b}, s{80+b}, 4096")
        vm.issue(f"H{j}", 4)
    for j in range(3):
        h_issue(j)
    for j in range(7):
        vm.wait(a, f"H{j}")
        fb = HB[j % 3]
        wb = WREG(j)
        for aa in range(4):
            for b in range(4):
                r = ACC2 + (aa * 4 + b) * 4
                cc = "0" if j == 0 else f"v[{r}:{r+3}]"
                a(f"v_mfma_f32_16x16x32_bf16 v[{r}:{r+3}], v[{wb+4*aa}:{wb+4*aa+3}], v[{fb+4*b}:{fb+4*b+3}], {cc}")
        if j + 3 < 7:
            h_issue(j + 3)
    a(f"""
    s_lshl_b32 s76, s3, 14
    s_add_u32 s76, s76, {G2P}
    v_add_u32 v6, s76, v5
    """)
    for i in range(16):
        a(f"ds_write_b128 v6, v[{ACC2+4*i}:{ACC2+4*i+3}] offset:{1024*i}")


def final(a, waitC):
    a(f"""
    s_lshr_b32 s76, s3, 1
    s_lshl_b32 s77, s3, 1
    s_and_b32 s77, s77, 3
    s_lshl_b32 s78, s{S_TT}, 6
    s_lshl_b32 s79, s77, 4
    s_add_u32 s78, s78, s79
    s_lshl_b32 s78, s78, 10
    s_lshl_b32 s79, s{S_DD}, 7
    s_add_u32 s78, s78, s79
    s_lshl_b32 s79, s76, 5
    s_add_u32 s78, s78, s79
    s_add_u32 s79, s78, 16384
    v_lshlrev_b32 v7, 10, v2
    v_lshl_add_u32 v7, v3, 3, v7
    buffer_load_dwordx2 v[10:11], v7, s[{SRD_X}:{SRD_X+3}], s78 offen
    buffer_load_dwordx2 v[12:13], v7, s[{SRD_X}:{SRD_X+3}], s79 offen
    """)
    waitC(a)
    a(f"""
    v_lshrrev_b32 v8, 4, v0
    v_and_b32 v9, 15, v0
    v_lshlrev_b32 v14, 12, v8
    v_lshl_add_u32 v14, v9, 3, v14
    s_lshl_b32 s80, s{S_DD}, 18
    s_lshl_b32 s81, s{S_TT}, 7
    s_add_u32 s80, s80, s81
    s_add_u32 s80, s80, {S_OFF}
    s_add_u32 s81, s80, {32*4096}
    buffer_load_dwordx2 v[16:17], v14, {WS}, s80 offen sc1
    buffer_load_dwordx2 v[18:19], v14, {WS}, s81 offen sc1
    v_mul_u32_u24 v15, {SROW}, v8
    v_lshl_add_u32 v15, v9, 3, v15
    v_add_u32 v15, {STILE}, v15
    s_waitcnt vmcnt(0)
    ds_write_b64 v15, v[16:17]
    ds_write_b64 v15, v[18:19] offset:{32*SROW}
    s_waitcnt lgkmcnt(0)
    s_barrier
    s_lshl_b32 s80, s3, 11
    s_add_u32 s80, s80, {G2P}
    v_add_u32 v20, s80, v5
    v_add_u32 v19, 65536, v20
    """)
    for i in range(2):
        for kq in range(8):
            r = 96 + (i * 8 + kq) * 4
            a(f"ds_read_b128 v[{r}:{r+3}], v{20 if kq < 4 else 19} offset:{(kq%4)*16384 + i*1024}")
    a(f"""
    v_lshlrev_b32 v21, 2, v3
    s_lshl_b32 s80, s76, 4
    v_add_u32 v21, s80, v21
    v_mul_u32_u24 v21, {SROW}, v21
    v_lshl_add_u32 v21, v2, 1, v21
    s_lshl_b32 s80, s77, 5
    s_add_u32 s80, s80, {STILE}
    v_add_u32 v21, s80, v21
    """)
    for i in range(2):
        for e in range(4):
            a(f"ds_read_u16 v{64+4*i+e}, v21 offset:{e*SROW + 32*i}")
    a(f"s_mov_b32 s82, {NLOG2E}\n s_waitcnt lgkmcnt(0)")
    for i in range(2):
        b0 = 96 + i * 32
        for e in range(4):
            a(f"""
            v_add_f32 v{b0+e}, v{b0+e}, v{b0+4+e}
            v_add_f32 v{b0+8+e}, v{b0+8+e}, v{b0+12+e}
            v_add_f32 v{b0+16+e}, v{b0+16+e}, v{b0+20+e}
            v_add_f32 v{b0+24+e}, v{b0+24+e}, v{b0+28+e}
            v_add_f32 v{b0+e}, v{b0+e}, v{b0+8+e}
            v_add_f32 v{b0+16+e}, v{b0+16+e}, v{b0+24+e}
            v_add_f32 v{b0+e}, v{b0+e}, v{b0+16+e}
            """)
        for pr in range(2):
            o0, o1 = b0 + 2 * pr, b0 + 2 * pr + 1
            s0, s1 = 64 + 4 * i + 2 * pr, 64 + 4 * i + 2 * pr + 1
            xx = 10 + 2 * i + pr
            a(f"""
            v_cvt_pk_bf16_f32 v22, v{o0}, v{o1}
            v_lshlrev_b32 v23, 16, v22
            v_and_b32 v24, 0xffff0000, v22
            v_mul_f32 v25, s82, v23
            v_mul_f32 v26, s82, v24
            v_exp_f32 v25, v25
            v_exp_f32 v26, v26
            v_lshlrev_b32 v{s0}, 16, v{s0}
            v_lshlrev_b32 v{s1}, 16, v{s1}
            v_add_f32 v25, 1.0, v25
            v_add_f32 v26, 1.0, v26
            v_rcp_f32 v25, v25
            v_rcp_f32 v26, v26
            s_nop 0
            v_mul_f32 v25, v25, v23
            v_mul_f32 v26, v26, v24
            v_cvt_pk_bf16_f32 v22, v25, v26
            v_lshlrev_b32 v23, 16, v22
            v_and_b32 v24, 0xffff0000, v22
            v_mul_f32 v23, v23, v{s0}
            v_mul_f32 v24, v24, v{s1}
            v_cvt_pk_bf16_f32 v22, v23, v24
            v_lshlrev_b32 v23, 16, v22
            v_and_b32 v24, 0xffff0000, v22
            v_lshlrev_b32 v25, 16, v{xx}
            v_and_b32 v26, 0xffff0000, v{xx}
            v_add_f32 v23, v23, v25
            v_add_f32 v24, v24, v26
            v_cvt_pk_bf16_f32 v{28+2*i+pr}, v23, v24
            """)
        a(f"buffer_store_dwordx2 v[{28+2*i}:{29+2*i}], v7, s[{SRD_OUT}:{SRD_OUT+3}], s{78+i} offen")


def cnt_addr(a, sreg, idx_expr_sreg, shift, base):
    a(f"""
    s_lshr_b32 s{sreg}, s{idx_expr_sreg}, {shift}
    s_lshl_b32 s{sreg}, s{sreg}, 8
    s_add_u32 s{sreg}, s{sreg}, {base * 256}
    """)


def build():
    a = Asm()
    vm = VM()
    prologue(a, vm)
    stamp(a, 1)
    ln(a, vm)
    stamp(a, 2)
    wdt_issue(a, vm)
    gemm1_setup(a)
    kgen_setup(a)
    a("s_waitcnt vmcnt(0)")
    a("v_readfirstlane_b32 s89, v61\n v_readfirstlane_b32 s74, v60")
    a("s_barrier")
    stamp(a, 3)
    def sigA(a):
        a(f"""
        v_readfirstlane_b32 s76, v8
        s_cmp_lg_u32 s76, 0
        s_cbranch_scc1 LsigA_go
        v_mov_b32 v10, 0
        """)
        poll(a, 10, 1, 11, "LsigA_poll", SRD_DBG)
        a("LsigA_go:")
        cnt_addr(a, 76, 2, 4, CNT_A)
        atomic_inc(a, 76, 10, 11)
    wave0(a, "LsigA_skip", sigA)
    def side0(x):
        dma_block(x, vm, 0)
        dma_block(x, vm, 1)
        wdt_loads(x, vm)
    merged(a, lambda x: kgen_tables(x, 0), side0, 8, start=2)
    a("s_waitcnt lgkmcnt(0)\n s_barrier")
    stamp(a, 4)
    kpads(a, 0)
    kgen_mfma(a, 0)
    def waitA(a):
        a(f"v_lshlrev_b32 v10, 8, v2\n v_add_u32 v10, {CNT_A * 256}, v10")
        poll(a, 10, 16, 11, "LwaitA")
    a("s_waitcnt lgkmcnt(0)")
    wave0(a, "LwaitA_skip", waitA)
    a("s_barrier")
    stamp(a, 5)
    xcol_issue(a, vm)
    x_addr(a)
    x_issue(a, vm, 0, 4)
    wdt_store(a, vm)
    conv_setup(a, 0)
    xcol_stage(a, vm)
    a("s_waitcnt lgkmcnt(0)\n s_barrier")
    stamp(a, 6)
    merged(a, conv_mfma, lambda x: x_issue(x, vm, 4, 12), 4, start=24)
    stamp(a, 7)
    def post0(a):
        a("s_barrier")
        dma_block(a, vm, 2)
        dma_block(a, vm, 3)
        x_issue(a, vm, 12, 16)
    conv_finish(a, 0, post0)
    stamp(a, 17)
    gemm2_map(a)
    def pre_epi(a, vm_):
        par_loads(a, vm_, 1)
    gemm1(a, vm, pre_epi)
    stamp(a, 20)
    a("s_barrier")
    TOFF[0] = -8
    CFRL[0] = 64
    kgen_setup(a)
    a("s_waitcnt vmcnt(4)")
    stamp(a, 21)
    merged(a, lambda x: kgen_tables(x, 1), lambda x: w_prefetch(x, 4, 7), 12, start=2)
    a("s_waitcnt vmcnt(12) lgkmcnt(0)\n s_barrier")
    def sigB(a):
        cnt_addr(a, 76, 4, 0, CNT_B)
        atomic_inc(a, 76, 10, 11)
    wave0(a, "LsigB_skip", sigB)
    stamp(a, 22)
    kpads(a, 1)
    kgen_mfma(a, 1)
    conv_setup(a, 1)
    a("s_waitcnt lgkmcnt(0)\n s_barrier")
    stamp(a, 23)
    if DEBUG:
        a(f"""
        v_lshlrev_b32 v6, 4, v0
        v_add_u32 v7, {KCP + KCH}, v6
        ds_read_b128 v[8:11], v7
        s_lshl_b32 s76, s2, 13
        s_add_u32 s76, s76, {DBG_OFF}
        s_waitcnt lgkmcnt(0)
        buffer_store_dwordx4 v[8:11], v6, {WS}, s76 offen
        v_mov_b32 v8, s91
        v_mov_b32 v9, s74
        v_mov_b32 v10, v48
        v_mov_b32 v11, v53
        s_add_u32 s76, s76, 0
        v_add_u32 v6, 0x700000, v6
        buffer_store_dwordx4 v[8:11], v6, {WS}, s76 offen
        """)
    conv_mfma(a)
    conv_finish(a, 1)
    stamp(a, 24)
    cnt_addr(a, 76, S_TT, 1, CNT_B)
    a("v_mov_b32 v10, s76")
    poll(a, 10, 16, 11, "LwaitB")
    a(f"""
    v_mov_b32 v10, {MISC + 32}
    v_mov_b32 v11, 1
    s_mov_b64 exec, 1
    ds_add_rtn_u32 v12, v10, v11
    s_waitcnt lgkmcnt(0)
    v_readfirstlane_b32 s76, v12
    s_mov_b64 exec, -1
    s_cmp_lg_u32 s76, 7
    s_cbranch_scc1 LsigC_skip
    """)
    cnt_addr(a, 76, 67, 5, CNT_C)
    atomic_inc(a, 76, 10, 11)
    a("LsigC_skip:\n s_barrier")
    stamp(a, 25)
    gemm2(a)
    stamp(a, 27)
    def waitC(a):
        cnt_addr(a, 86, S_DD, 0, CNT_C)
        a("v_mov_b32 v20, s86")
        poll(a, 20, 32, 21, "LwaitC")
    final(a, waitC)
    stamp(a, 30)
    a("s_waitcnt vmcnt(0)")
    stamp(a, 31)
    stamp_flush(a)
    a("Lexit:\n s_endpgm")
    a.finalize()
    txt = f"; @launch grid=(256,1,1) block=(512,1,1) lds={LDS_BYTES}\n"
    txt += '.amdgcn_target "amdgcn-amd-amdhsa--gfx950"\n.text\n'
    txt += f".globl {KNAME}\n.p2align 8\n.type {KNAME},@function\n" + a.text()
    txt += f""".section .rodata,"a"
.p2align 6
.amdhsa_kernel {KNAME}
  .amdhsa_next_free_vgpr 256
  .amdhsa_next_free_sgpr 102
  .amdhsa_accum_offset 256
  .amdhsa_group_segment_fixed_size 0
  .amdhsa_kernarg_size 128
  .amdhsa_user_sgpr_count 2
  .amdhsa_user_sgpr_kernarg_segment_ptr 1
  .amdhsa_system_sgpr_workgroup_id_x 1
.end_amdhsa_kernel
"""
    return txt


if __name__ == "__main__":
    for o in sys.argv[2:]:
        if o == "nostamp": STAMPS = False
        if o == "debug": DEBUG = True
        if o == "xplain": XSC = ""
        if o == "gplain": GSC = ""
    open(sys.argv[1], "w").write(build())
```

```python
import sys, struct
from dsl import Asm

KNAME = "recurrent_scan__ssm_conv_s4__glu_gated_glu__prompt_kernel"
STAMPS = True
DEBUG = False
XSC = " sc1"
GSC = " sc1"

CNT_A, CNT_B, CNT_C, CNT_W = 0, 16, 32, 40
XTS_ = 16640
XN_OFF = 1 << 20
XT_OFF = 4 << 20
WDT_OFF = 8 << 20
H_OFF = 16 << 20
S_OFF = 32 << 20
DBG_OFF = 64 << 20
STAMP_OFF = DBG_OFF + (8 << 20)

SLOT = 28672
NSLOT = 4
TAB = 2 * SLOT
TROW = 528
TAB_ROWS = 96
KCP = NSLOT * SLOT
KCOPY = 4416
KCH = 4 * KCOPY
MISC = KCP + 2 * KCH
XTS = KCP
XNS = KCP + 8192
XR = MISC + 256
LDS_BYTES = XR + 10240
XRW = 5120
CEX = 0
G2P = 0
STILE = 131072
SROW = 144

SRD_X, SRD_WS, SRD_WG, SRD_WU, SRD_OUT, SRD_DBG, SRD_WD, SRD_T0, SRD_T1 = 8, 12, 16, 20, 24, 28, 32, 36, 40
PTR = 44
def P(i): return PTR + 2 * i
S_ISC = 90
S_TT, S_DD = 64, 65

LOG2E = 0x3fb8aa3b
NLOG2E = 0xbfb8aa3b
INV2PI = 0x3e22f983
F32 = lambda x: hex(struct.unpack("<I", struct.pack("<f", x))[0])
WS = f"s[{SRD_WS}:{SRD_WS+3}]"


class VM:
    def __init__(self):
        self.ops = []
    def issue(self, tag, n=1):
        self.ops += [tag] * n
    def wait(self, a, tag):
        idx = max(i for i, t in enumerate(self.ops) if t == tag)
        n = len(self.ops) - 1 - idx
        a(f"s_waitcnt vmcnt({min(n, 63)})")
    def copy(self):
        v = VM(); v.ops = list(self.ops); return v


def merged(a, main_fn, side_fn, every, start=0):
    m = Asm(); main_fn(m)
    sd = Asm(); side_fn(sd)
    groups, cur = [], []
    for it in sd.items:
        if isinstance(it, str) and it == "; GROUP":
            groups.append(cur); cur = []
        else:
            cur.append(it)
    if cur:
        groups.append(cur)
    n = 0
    for it in m.items:
        a.items.append(it)
        if isinstance(it, str):
            continue
        n += 1
        if n >= start and (n - start) % every == 0 and groups:
            a.items += groups.pop(0)
    for g in groups:
        a.items += g


def srd(a, q, ptr_idx, nbytes):
    a(f"""
    s_mov_b32 s{q}, s{P(ptr_idx)}
    s_and_b32 s{q+1}, s{P(ptr_idx)+1}, 0xffff
    s_mov_b32 s{q+2}, {nbytes}
    s_mov_b32 s{q+3}, 0x00020000
    """)


def stamp(a, idx):
    if not STAMPS:
        return
    a(f"""
    s_memtime s[100:101]
    s_waitcnt lgkmcnt(0)
    v_writelane_b32 v4, s100, {idx}
    """)


def stamp_flush(a):
    if not STAMPS:
        return
    a(f"""
    s_lshl_b32 s76, s2, 3
    s_add_u32 s76, s76, s3
    s_lshl_b32 s76, s76, 8
    s_add_u32 s76, s76, {STAMP_OFF}
    v_lshlrev_b32 v6, 2, v1
    buffer_store_dword v4, v6, {WS}, s76 offen
    """)


def allreduce(a, v, tmp, op="v_add_f32"):
    a(f"""
    {op}_dpp v{v}, v{v}, v{v} quad_perm:[1,0,3,2] row_mask:0xf bank_mask:0xf
    {op}_dpp v{v}, v{v}, v{v} quad_perm:[2,3,0,1] row_mask:0xf bank_mask:0xf
    {op}_dpp v{v}, v{v}, v{v} row_half_mirror row_mask:0xf bank_mask:0xf
    {op}_dpp v{v}, v{v}, v{v} row_mirror row_mask:0xf bank_mask:0xf
    v_mov_b32 v{tmp}, v{v}
    v_permlane16_swap_b32 v{v}, v{tmp}
    {op} v{v}, v{v}, v{tmp}
    v_mov_b32 v{tmp}, v{v}
    v_permlane32_swap_b32 v{v}, v{tmp}
    {op} v{v}, v{v}, v{tmp}
    """)


def bf16r(a, dst, src):
    a(f"v_cvt_pk_bf16_f32 v{dst}, v{src}, v{src}\n v_lshlrev_b32 v{dst}, 16, v{dst}")


def poll(a, vreg, target, tmpv, label, srdq=SRD_WS):
    a(f"""
    s_mov_b32 s99, 0
{label}:
    buffer_load_dword v{tmpv}, v{vreg}, s[{srdq}:{srdq+3}], 0 offen sc1
    s_waitcnt vmcnt(0)
    v_cmp_gt_u32 vcc, {target}, v{tmpv}
    s_cbranch_vccz {label}_ok
    s_sleep 1
    s_add_u32 s99, s99, 1
    s_cmp_lt_u32 s99, 0x8000
    s_cbranch_scc1 {label}
{label}_ok:
    """)


def atomic_inc(a, s_off, v1, v2):
    a(f"""
    v_mov_b32 v{v1}, s{s_off}
    v_mov_b32 v{v2}, 1
    s_mov_b64 exec, 1
    buffer_atomic_add v{v2}, v{v1}, {WS}, 0 offen sc1
    s_mov_b64 exec, -1
    """)


def wave0(a, label, fn):
    a(f"s_cmp_lg_u32 s3, 0\n s_cbranch_scc1 {label}")
    fn(a)
    a(f"{label}:")


def par_loads(a, vm, c):
    a(f"""
    v_lshlrev_b32 v62, 2, v1
    v_mov_b32 v63, 0
    s_lshl_b32 s76, s67, 9
    s_add_u32 s76, s76, {256*c}
    s_lshl_b32 s78, s67, 2
    """)
    for i in range(6):
        q = SRD_T0 if i % 2 == 0 else SRD_T1
        srd(a, q, 1 + i, 512 * 128 * 2)
        a(f"buffer_load_dword v{48+i}, v62, s[{q}:{q+3}], s76 offen")
    vm.issue("par", 6)


def prologue(a, vm):
    a(f"""
{KNAME}:
    s_cmp_ge_u32 s2, 256
    s_cbranch_scc1 Lexit
    s_load_dwordx16 s[44:59], s[0:1], 0
    s_load_dwordx16 s[60:75], s[0:1], 64
    v_and_b32 v1, 63, v0
    v_lshrrev_b32 v4, 6, v0
    v_and_b32 v2, 15, v1
    v_lshrrev_b32 v3, 4, v1
    v_readfirstlane_b32 s3, v4
    v_lshlrev_b32 v5, 4, v1
    s_lshl_b32 s86, s2, 3
    s_add_u32 s86, s86, s3
    s_lshl_b32 s87, s86, 10
    s_waitcnt lgkmcnt(0)
    """)
    srd(a, SRD_X, 0, 2048 * 512 * 2)
    a(f"buffer_load_dwordx4 v[10:13], v5, s[{SRD_X}:{SRD_X+3}], s87 offen")
    vm.issue("x")
    srd(a, SRD_WS, 15, 256 << 20)
    srd(a, SRD_DBG, 14, 256)
    a("v_mov_b32 v4, 0")
    stamp(a, 0)
    a(f"""
    s_cmp_lg_u32 s2, 0
    s_cbranch_scc1 Linit_skip
    s_cmp_lg_u32 s3, 0
    s_cbranch_scc1 Linit_skip
    v_lshlrev_b32 v6, 8, v1
    v_mov_b32 v7, 0
    buffer_store_dword v7, v6, {WS}, 0 offen sc1
    s_waitcnt vmcnt(0)
    v_mov_b32 v6, 1
    s_mov_b64 exec, 1
    buffer_store_dword v6, v7, s[{SRD_DBG}:{SRD_DBG+3}], 0 offen sc1
    s_mov_b64 exec, -1
Linit_skip:
    """)
    srd(a, SRD_WG, 10, 512 * 1792 * 2)
    srd(a, SRD_WU, 11, 512 * 1792 * 2)
    srd(a, SRD_OUT, 13, 2048 * 512 * 2)
    srd(a, SRD_WD, 12, 1792 * 512 * 2)
    a(f"""
    s_and_b32 s67, s2, 7
    s_lshl_b32 s67, s67, 5
    s_lshr_b32 s76, s2, 3
    s_add_u32 s67, s67, s76
    v_mov_b32 v63, 0
    s_lshl_b32 s76, s2, 12
    s_cmp_eq_u32 s3, 0
    s_cbranch_scc1 Lt0
    s_cmp_eq_u32 s3, 1
    s_cbranch_scc1 Lt1
    s_cmp_eq_u32 s3, 2
    s_cbranch_scc1 Lt2
    s_cmp_eq_u32 s3, 3
    s_cbranch_scc1 Lt3
    s_cmp_eq_u32 s3, 4
    s_cbranch_scc1 Lt4
    s_cmp_eq_u32 s3, 5
    s_cbranch_scc1 Lt5
    s_cmp_eq_u32 s3, 6
    s_cbranch_scc1 Lt6
    buffer_load_dword v250, v63, s[{SRD_OUT}:{SRD_OUT+3}], s76 offen
    s_branch Ltj
Lt0:
    buffer_load_dword v250, v63, s[{SRD_WG}:{SRD_WG+3}], s76 offen
    s_branch Ltj
Lt1:
    buffer_load_dword v250, v63, s[{SRD_WU}:{SRD_WU+3}], s76 offen
    s_branch Ltj
Lt2:
    buffer_load_dword v250, v63, s[{SRD_WD}:{SRD_WD+3}], s76 offen
    s_branch Ltj
Lt3:
    s_mov_b32 s77, {(3 << 20) + (1 << 19)}
    buffer_load_dword v250, v63, {WS}, s77 offen
    s_branch Ltj
Lt4:
    s_mov_b32 s77, {1 << 19}
    buffer_load_dword v250, v63, {WS}, s77 offen
    s_branch Ltj
Lt5:
    s_mov_b32 s77, {WDT_OFF + 1900000}
    buffer_load_dword v250, v63, {WS}, s77 offen
    s_branch Ltj
Lt6:
    s_mov_b32 s77, {H_OFF + (15 << 19)}
    buffer_load_dword v250, v63, {WS}, s77 offen
Ltj:
    """)
    vm.issue("tlb")
    par_loads(a, vm, 0)
    srd(a, SRD_T0, 7, 1024)
    a(f"buffer_load_dword v60, v63, s[{SRD_T0}:{SRD_T0+3}], s78 offen")
    srd(a, SRD_T1, 8, 1024)
    a(f"buffer_load_dword v61, v63, s[{SRD_T1}:{SRD_T1+3}], s78 offen")
    vm.issue("par", 2)
    a("s_waitcnt vmcnt(63)")
    a(f"""
    v_mov_b32 v200, {MISC}
    v_mov_b32 v201, 0
    v_lshl_add_u32 v200, v2, 2, v200
    ds_write_b32 v200, v201
    """)


def ln(a, vm):
    f = 20
    vm.wait(a, "x")
    for i in range(4):
        a(f"v_lshlrev_b32 v{f+2*i}, 16, v{10+i}\n v_and_b32 v{f+2*i+1}, 0xffff0000, v{10+i}")
    a(f"""
    v_add_f32 v28, v{f}, v{f+1}
    v_add_f32 v29, v{f+2}, v{f+3}
    v_add_f32 v30, v{f+4}, v{f+5}
    v_add_f32 v31, v{f+6}, v{f+7}
    v_add_f32 v28, v28, v29
    v_add_f32 v30, v30, v31
    v_add_f32 v28, v28, v30
    """)
    allreduce(a, 28, 29)
    a("v_mul_f32 v28, 0x3b000000, v28")
    a(f"v_sub_f32 v30, v{f}, v28\n v_mul_f32 v31, v30, v30")
    for i in range(1, 8):
        a(f"v_sub_f32 v30, v{f+i}, v28\n v_fmac_f32 v31, v30, v30")
    allreduce(a, 31, 29)
    a("v_mul_f32 v31, 0x3b000000, v31")
    bf16r(a, 28, 28)
    bf16r(a, 31, 31)
    a("v_add_f32 v31, 0x3727c5ac, v31")
    bf16r(a, 31, 31)
    a("v_sqrt_f32 v31, v31")
    bf16r(a, 31, 31)
    a("v_rcp_f32 v32, v31")
    for i in range(8):
        a(f"v_sub_f32 v{f+i}, v{f+i}, v28")
    for i in range(4):
        a(f"""
        v_cvt_pk_bf16_f32 v33, v{f+2*i}, v{f+2*i+1}
        v_lshlrev_b32 v{f+2*i}, 16, v33
        v_and_b32 v{f+2*i+1}, 0xffff0000, v33
        """)
    for i in range(8):
        a(f"""
        v_mul_f32 v33, v{f+i}, v32
        v_fma_f32 v34, -v33, v31, v{f+i}
        v_fma_f32 v{f+i}, v34, v32, v33
        """)
    for i in range(4):
        a(f"v_cvt_pk_bf16_f32 v{10+i}, v{f+2*i}, v{f+2*i+1}")
    a(f"""
    s_mul_i32 s91, s3, 1040
    s_add_u32 s91, s91, {XNS}
    v_add_u32 v9, s91, v5
    ds_write_b128 v9, v[10:13]
    v_and_b32 v6, 7, v0
    v_lshrrev_b32 v9, 3, v0
    v_mul_u32_u24 v33, 1040, v6
    v_lshl_add_u32 v33, v9, 4, v33
    v_add_u32 v33, {XNS}, v33
    v_lshlrev_b32 v34, 8, v9
    v_lshl_add_u32 v34, v6, 4, v34
    s_lshr_b32 s91, s2, 1
    s_mul_i32 s91, s91, {XTS_}
    s_and_b32 s92, s2, 1
    s_lshl_b32 s92, s92, 7
    s_add_u32 s91, s91, s92
    s_add_u32 s91, s91, {XN_OFF}
    s_waitcnt lgkmcnt(0)
    s_barrier
    ds_read_b128 v[40:43], v33
    s_waitcnt lgkmcnt(0)
    buffer_store_dwordx4 v[40:43], v34, {WS}, s91 offen sc1
    v_mov_b32 v7, 0
    buffer_load_dword v8, v7, s[{SRD_DBG}:{SRD_DBG+3}], 0 offen sc1
    """)
    vm.issue("lnst", 2)


def wdt_issue(a, vm):
    t = 86
    a(f"""
    s_min_u32 s88, s3, 6
    s_mul_i32 s{t+3}, s2, 7
    s_add_u32 s88, s88, s{t+3}
    s_lshr_b32 s{t+3}, s88, 5              ; J
    s_and_b32 s{t+4}, s88, 31              ; Dt
    s_mul_i32 s{t+5}, s{t+3}, 37
    s_lshr_b32 s{t+5}, s{t+5}, 8
    s_mul_i32 s{t+6}, s{t+5}, 7
    s_sub_u32 s{t+6}, s{t+3}, s{t+6}
    s_mul_i32 s{t+5}, s{t+5}, 224
    s_lshl_b32 s{t+7}, s{t+6}, 5
    s_add_u32 s{t+5}, s{t+5}, s{t+7}
    s_cmp_ge_u32 s{t+6}, 3
    s_cselect_b32 s{t+7}, 16, 0
    s_add_u32 s{t+3}, s{t+5}, s{t+7}
    s_add_u32 s{t+7}, s{t+3}, 16
    s_sub_u32 s{t+8}, s{t+5}, 96
    s_add_u32 s{t+9}, s{t+5}, 16
    s_cmp_eq_u32 s{t+6}, 6
    s_cselect_b32 s{t+3}, s{t+8}, s{t+3}
    s_cselect_b32 s{t+7}, s{t+9}, s{t+7}
    s_lshl_b32 s{t+4}, s{t+4}, 5
    s_lshl_b32 s{t+3}, s{t+3}, 10
    s_lshl_b32 s{t+7}, s{t+7}, 10
    s_add_u32 s{t+3}, s{t+3}, s{t+4}
    s_add_u32 s{t+4}, s{t+7}, s{t+4}
    v_lshlrev_b32 v19, 12, v3
    v_lshl_add_u32 v19, v2, 1, v19
    """)
    a("s_mov_b32 s66, s88\n s_mov_b32 s62, s89\n s_mov_b32 s63, s90")


def wdt_loads(a, vm):
    for j in range(8):
        a(f"buffer_load_ushort v{184+j}, v19, s[{SRD_WD}:{SRD_WD+3}], s{62+(j//4)} offen offset:{1024*(j%4)}")
    vm.issue("wg", 8)


def wdt_store(a, vm):
    vm.wait(a, "wg")
    a(f"""
    v_lshl_or_b32 v12, v185, 16, v184
    v_lshl_or_b32 v13, v187, 16, v186
    v_lshl_or_b32 v14, v189, 16, v188
    v_lshl_or_b32 v15, v191, 16, v190
    s_lshl_b32 s66, s66, 10
    s_add_u32 s66, s66, {WDT_OFF}
    buffer_store_dwordx4 v[12:15], v5, {WS}, s66 offen sc1
    """)
    vm.issue("wst")


def gemm1_setup(a):
    a(f"""
    s_and_b32 s76, s2, 7
    s_lshr_b32 s77, s2, 3
    s_and_b32 s78, s76, 1
    s_lshl_b32 s78, s78, 3
    s_and_b32 s79, s77, 7
    s_add_u32 s4, s78, s79               ; mt
    s_lshr_b32 s78, s76, 1
    s_lshl_b32 s78, s78, 2
    s_lshr_b32 s79, s77, 3
    s_add_u32 s5, s78, s79               ; nt
    s_mul_i32 s6, s5, 224
    s_mul_i32 s7, s3, 896
    s_and_b32 s78, s3, 4
    s_and_b32 s79, s3, 1
    s_lshl_b32 s79, s79, 1
    s_or_b32 s78, s78, s79
    s_lshr_b32 s79, s3, 1
    s_and_b32 s79, s79, 1
    s_or_b32 s78, s78, s79
    s_lshl_b32 s78, s78, 2
    v_mul_u32_u24 v18, 147, v1
    v_lshrrev_b32 v18, 11, v18
    v_mul_u32_u24 v19, 14, v18
    v_sub_u32 v19, v1, v19
    v_add_u32 v18, s78, v18
    v_mul_u32_u24 v18, 3584, v18
    v_lshl_add_u32 v18, v19, 4, v18
    """)


def dma_block(a, vm, b):
    slot = (b % NSLOT) * SLOT
    for hf in range(2):
        for img in range(2):
            q = SRD_WG if img == 0 else SRD_WU
            a(f"""
            s_add_u32 s75, s6, {(64*b + 32*hf) * 3584}
            s_add_u32 m0, s7, {slot + hf*14336 + img*7168}
            s_mov_b32 exec_hi, 0x00ffffff
            buffer_load_dwordx4 v18, s[{q}:{q+3}], s75 offen lds
            s_mov_b32 exec_hi, -1
            """)
    vm.issue(f"D{b}", 4)


TOFF = [120]
def T(x): return x + TOFF[0]


def cmul(a, R, X, Y, Tm):
    a(f"""
    v_pk_mul_f32 v[{Tm}:{Tm+1}], v[{X}:{X+1}], v[{Y}:{Y+1}] op_sel:[0,0] op_sel_hi:[1,0]
    v_pk_fma_f32 v[{R}:{R+1}], v[{X}:{X+1}], v[{Y}:{Y+1}], v[{Tm}:{Tm+1}] op_sel:[1,1,0] op_sel_hi:[0,1,1] neg_lo:[1,0,0]
    """)


def direct(a, R, s_l, A2, WV, t0):
    a(f"""
    v_mul_f32 v{t0}, s{s_l}, v{A2}
    v_mul_f32 v{t0+1}, s{s_l}, v{WV}
    v_exp_f32 v{t0}, v{t0}
    v_fract_f32 v{t0+1}, v{t0+1}
    v_cos_f32 v{t0+2}, v{t0+1}
    v_sin_f32 v{t0+3}, v{t0+1}
    v_mul_f32 v{R}, v{t0}, v{t0+2}
    v_mul_f32 v{R+1}, v{t0}, v{t0+3}
    """)


def kgen_setup(a):
    a(f"""
    s_and_b32 s76, s3, 1
    s_lshl_b32 s77, s76, 4
    s_lshr_b32 s78, s3, 1
    s_mov_b32 s79, 0
    s_mov_b32 s80, {F32(16.0)}
    s_mov_b32 s81, 0
    s_mov_b32 s82, 1.0
    s_cmp_eq_u32 s78, 1
    s_cselect_b32 s79, {F32(256.0)}, s79
    s_cselect_b32 s81, {F32(8.0)}, s81
    s_cmp_eq_u32 s78, 2
    s_cselect_b32 s79, {F32(512.0)}, s79
    s_cselect_b32 s80, {F32(32.0)}, s80
    s_cselect_b32 s81, {F32(16.0)}, s81
    s_cselect_b32 s82, 4.0, s82
    s_cmp_eq_u32 s78, 3
    s_cselect_b32 s79, {F32(1024.0)}, s79
    s_cselect_b32 s80, {F32(64.0)}, s80
    s_cselect_b32 s81, {F32(32.0)}, s81
    s_cselect_b32 s82, {F32(8.0)}, s82
    s_cmp_eq_u32 s76, 1
    s_cselect_b64 s[84:85], -1, 0
    s_lshl_b32 s86, s76, 8
    s_mul_i32 s87, s78, {8*TROW}
    s_add_u32 s86, s86, {TAB}
    s_add_u32 s87, s87, s86
    s_mul_i32 s88, s78, {16*TROW}
    s_add_u32 s88, s88, s86
    s_add_u32 s88, s88, {32*TROW}
    v_lshl_add_u32 v30, v1, 2, s87
    v_lshl_add_u32 v31, v1, 2, s88
    s_mov_b32 s92, 0
    s_cmp_ge_u32 s3, 1
    s_cselect_b32 s92, 1, s92
    s_cmp_ge_u32 s3, 2
    s_cselect_b32 s92, 2, s92
    s_cmp_ge_u32 s3, 4
    s_cselect_b32 s92, 3, s92
    s_lshl_b32 s93, 128, s92
    s_cmp_eq_u32 s92, 0
    s_cselect_b32 s93, 0, s93
    s_lshl_b32 s94, 8, s92
    s_max_u32 s94, s94, 16
    s_lshl_b32 s95, 1, s92
    s_lshr_b32 s95, s95, 1
    s_sub_u32 s95, s3, s95
    s_lshl_b32 s95, s95, 4
    s_add_u32 s96, s93, s95
    v_add_u32 v32, s96, v2
    v_cvt_f32_u32 v32, v32
    v_cvt_pk_bf16_f32 v32, v32, v32
    v_lshlrev_b32 v32, 16, v32
    v_cvt_u32_f32 v32, v32
    v_subrev_u32 v32, s93, v32
    v_lshrrev_b32 v36, 2, v32
    v_add_u32 v36, 12, v36
    v_lshrrev_b32 v37, 3, v32
    v_add_u32 v37, 20, v37
    v_cmp_lt_u32 vcc, 32, v32
    v_cndmask_b32 v36, v36, v37, vcc
    v_cmp_gt_u32 vcc, 16, v32
    v_cndmask_b32 v32, v36, v32, vcc
    v_mul_u32_u24 v32, {TROW}, v32
    v_lshl_add_u32 v32, v3, 4, v32
    v_add_u32 v32, {TAB}, v32
    s_lshl_b32 s97, s92, 4
    s_add_u32 s97, s97, 32
    v_add_u32 v33, s97, v2
    v_mul_u32_u24 v33, {TROW}, v33
    v_lshl_add_u32 v33, v3, 4, v33
    v_add_u32 v33, {TAB}, v33
    v_mul_lo_u32 v34, v2, s94
    v_lshl_add_u32 v34, v3, 2, v34
    v_add_u32 v34, s96, v34
    v_add_u32 v34, 16, v34
    v_add_u32 v35, 4, v34
    v_lshrrev_b32 v35, 6, v35
    v_lshlrev_b32 v35, 3, v35
    v_lshl_add_u32 v35, v34, 1, v35
    v_add_u32 v35, {KCP}, v35
    v_lshrrev_b32 v36, 6, v34
    v_lshlrev_b32 v36, 3, v36
    v_lshl_add_u32 v34, v34, 1, v36
    v_add_u32 v34, {KCP}, v34
    """)


def kpads(a, c):
    a(f"""
    s_cmp_lg_u32 s3, 0
    s_cbranch_scc1 Lkz_skip{c}
    v_mul_u32_u24 v36, {KCOPY}, v3
    v_lshl_add_u32 v36, v2, 1, v36
    v_add_u32 v36, {KCP + c * KCH}, v36
    v_mov_b32 v37, 0
    ds_write_b16 v36, v37
    v_cmp_gt_u32 vcc, v3, v2
    s_and_saveexec_b64 s[96:97], vcc
    ds_write_b16 v36, v37 offset:32
    s_mov_b64 exec, s[96:97]
Lkz_skip{c}:
    """)


def kgen_tables(a, c):
    pb = 48
    AR, AI, BR, BI, CR, CI = range(pb, pb + 6)
    t = T
    a(f"""
    {"s_lshl_b32 s68, s74, 16" if c == 0 else "s_and_b32 s68, s74, 0xffff0000"}
    v_mov_b32 v{t(72)}, s68
    v_mul_f32 v{t(72)}, {LOG2E}, v{t(72)}
    v_exp_f32 v{t(72)}, v{t(72)}
    s_nop 0
    v_cvt_pk_bf16_f32 v{t(72)}, v{t(72)}, v{t(72)}
    v_lshlrev_b32 v{t(72)}, 16, v{t(72)}
    v_lshlrev_b32 v{t(74)}, 16, v{BR}
    v_and_b32 v{t(75)}, 0xffff0000, v{BR}
    v_lshlrev_b32 v{t(76)}, 16, v{BI}
    v_and_b32 v{t(77)}, 0xffff0000, v{BI}
    v_lshlrev_b32 v{t(78)}, 16, v{CR}
    v_and_b32 v{t(79)}, 0xffff0000, v{CR}
    v_lshlrev_b32 v{t(80)}, 16, v{CI}
    v_and_b32 v{t(81)}, 0xffff0000, v{CI}
    v_mul_f32 v{t(74)}, v{t(72)}, v{t(74)}
    v_mul_f32 v{t(75)}, v{t(72)}, v{t(75)}
    v_mul_f32 v{t(76)}, v{t(72)}, v{t(76)}
    v_mul_f32 v{t(77)}, v{t(72)}, v{t(77)}
    v_mul_f32 v{t(82)}, v{t(78)}, v{t(74)}
    v_mul_f32 v{t(83)}, v{t(78)}, v{t(76)}
    v_mul_f32 v{t(84)}, v{t(79)}, v{t(75)}
    v_mul_f32 v{t(85)}, v{t(79)}, v{t(77)}
    v_fma_f32 v{t(82)}, -v{t(80)}, v{t(76)}, v{t(82)}
    v_fma_f32 v{t(83)}, v{t(80)}, v{t(74)}, v{t(83)}
    v_fma_f32 v{t(84)}, -v{t(81)}, v{t(77)}, v{t(84)}
    v_fma_f32 v{t(85)}, v{t(81)}, v{t(75)}, v{t(85)}
    v_max3_f32 v{t(86)}, abs(v{t(82)}), abs(v{t(83)}), abs(v{t(84)})
    v_max_f32 v{t(86)}, abs(v{t(85)}), v{t(86)}
    """)
    allreduce(a, t(86), t(87), "v_max_f32")
    a(f"""
    v_lshrrev_b32 v{t(86)}, 23, v{t(86)}
    v_max_u32 v{t(86)}, 8, v{t(86)}
    v_min_u32 v{t(86)}, 250, v{t(86)}
    v_sub_u32 v{t(87)}, 261, v{t(86)}
    v_lshlrev_b32 v{t(87)}, 23, v{t(87)}
    v_subrev_u32 v{t(86)}, 7, v{t(86)}
    v_lshlrev_b32 v{t(86)}, 23, v{t(86)}
    v_readfirstlane_b32 s{S_ISC+c}, v{t(86)}
    v_cndmask_b32 v{t(82)}, v{t(82)}, v{t(84)}, s[84:85]
    v_cndmask_b32 v{t(83)}, v{t(83)}, v{t(85)}, s[84:85]
    v_mul_f32 v{t(82)}, v{t(82)}, v{t(87)}
    v_mul_f32 v{t(83)}, v{t(83)}, v{t(87)}
    v_lshrrev_b32 v{t(74)}, s77, v{AR}
    v_lshlrev_b32 v{t(74)}, 16, v{t(74)}
    v_lshrrev_b32 v{t(75)}, s77, v{AI}
    v_lshlrev_b32 v{t(75)}, 16, v{t(75)}
    v_mul_f32 v{t(74)}, v{t(72)}, v{t(74)}
    v_mul_f32 v{t(75)}, v{t(72)}, v{t(75)}
    v_mul_f32 v{t(74)}, {LOG2E}, v{t(74)}
    v_mul_f32 v{t(75)}, {INV2PI}, v{t(75)}
    """)
    A2, WV = t(74), t(75)
    direct(a, t(88), 81, A2, WV, t(100))
    direct(a, t(90), 82, A2, WV, t(104))
    direct(a, t(92), 79, A2, WV, t(108))
    direct(a, t(94), 80, A2, WV, t(112))
    cmul(a, t(96), t(82), t(92), t(116))
    cmul(a, t(98), t(96), t(94), t(118))
    cmul(a, t(92), t(94), t(94), t(120))
    def wr(j):
        a(f"""
        v_cvt_pk_f16_f32 v{t(122)}, v{t(88)}, v{t(89)}
        ds_write_b32 v30, v{t(122)} offset:{j*TROW}
        v_cvt_pk_f16_f32 v{t(123)}, v{t(96)}, -v{t(97)}
        ds_write_b32 v31, v{t(123)} offset:{2*j*TROW}
        v_cvt_pk_f16_f32 v{t(124)}, v{t(98)}, -v{t(99)}
        ds_write_b32 v31, v{t(124)} offset:{(2*j+1)*TROW}
        """)
    wr(0)
    for j in range(1, 8):
        cmul(a, t(88), t(88), t(90), t(116))
        cmul(a, t(96), t(96), t(92), t(118))
        cmul(a, t(98), t(98), t(92), t(120))
        wr(j)


def kgen_mfma(a, c):
    acc = T(124)
    for half in range(2):
        for s4 in range(4):
            s = 4 * half + s4
            r = T(72) + 8 * s4
            a(f"ds_read_b128 v[{r}:{r+3}], v32 offset:{64*s}")
            a(f"ds_read_b128 v[{r+4}:{r+7}], v33 offset:{64*s}")
        for s4 in range(4):
            s = 4 * half + s4
            r = T(72) + 8 * s4
            a(f"s_waitcnt lgkmcnt({6-2*s4})")
            cc = "0" if s == 0 else f"v[{acc}:{acc+3}]"
            a(f"v_mfma_f32_16x16x32_f16 v[{acc}:{acc+3}], v[{r}:{r+3}], v[{r+4}:{r+7}], {cc}")
    o = c * KCH
    p0, p1, p2 = T(116), T(117), T(118)
    a(f"""
    v_cvt_pk_f16_f32 v{p0}, v{acc}, v{acc+1}
    v_cvt_pk_f16_f32 v{p1}, v{acc+2}, v{acc+3}
    v_alignbit_b32 v{p2}, v{p1}, v{p0}, 16
    ds_write_b64 v34, v[{p0}:{p1}] offset:{o}
    ds_write_b16 v34, v{p0} offset:{o + KCOPY + 2}
    ds_write_b32 v34, v{p2} offset:{o + KCOPY + 4}
    ds_write_b16_d16_hi v35, v{p1} offset:{o + KCOPY + 8}
    ds_write_b32 v34, v{p0} offset:{o + 2*KCOPY + 4}
    ds_write_b32 v35, v{p1} offset:{o + 2*KCOPY + 8}
    ds_write_b16 v34, v{p0} offset:{o + 3*KCOPY + 6}
    ds_write_b32 v35, v{p2} offset:{o + 3*KCOPY + 8}
    ds_write_b16_d16_hi v35, v{p1} offset:{o + 3*KCOPY + 12}
    """)


XF, ACC1, WF = 64, 128, 32


def x_addr(a):
    a(f"""
    s_lshl_b32 s69, s4, 3
    s_add_u32 s69, s69, s3
    s_mul_i32 s69, s69, {XTS_}
    s_add_u32 s69, s69, {XN_OFF}
    """)


def x_issue(a, vm, s0, s1):
    for s in range(s0, s1):
        r = XF + s * 4
        if s % 4 == 0 or s == s0:
            a(f"s_add_u32 s70, s69, {(s//4)*4096}")
        a(f"buffer_load_dwordx4 v[{r}:{r+3}], v5, {WS}, s70 offen offset:{1024*(s%4)}{XSC}")
        vm.issue(f"X{s}")


def epi1(a):
    a(f"""
    s_lshl_b32 s78, s4, 3
    s_add_u32 s78, s78, s3
    s_mul_i32 s78, s78, {56*1024}
    s_add_u32 s78, s78, {H_OFF}
    s_lshr_b32 s79, s5, 1
    s_mul_i32 s79, s79, 7
    s_and_b32 s80, s5, 1
    s_mul_i32 s81, s80, 3
    s_add_u32 s81, s81, s79
    s_lshl_b32 s81, s81, 10
    s_add_u32 s81, s81, s78
    s_add_u32 s83, s79, 6
    s_lshl_b32 s83, s83, 10
    s_add_u32 s83, s83, s78
    s_lshl_b32 s80, s80, 3
    s_add_u32 s83, s83, s80
    v_mov_b32 v38, {NLOG2E}
    """)
    for j in range(7):
        g_ = ACC1 + j * 4
        u = ACC1 + (7 + j) * 4
        ob = 8 + 4 * ((j // 2) % 4) + 2 * (j & 1)
        for pr in range(2):
            g0, g1, u0, u1 = g_ + 2 * pr, g_ + 2 * pr + 1, u + 2 * pr, u + 2 * pr + 1
            a(f"""
            v_cvt_pk_bf16_f32 v32, v{g0}, v{g1}
            v_cvt_pk_bf16_f32 v33, v{u0}, v{u1}
            v_lshlrev_b32 v34, 16, v32
            v_and_b32 v35, 0xffff0000, v32
            v_mul_f32 v34, v38, v34
            v_mul_f32 v35, v38, v35
            v_exp_f32 v34, v34
            v_exp_f32 v35, v35
            v_lshlrev_b32 v36, 16, v33
            v_and_b32 v37, 0xffff0000, v33
            v_add_f32 v34, 1.0, v34
            v_add_f32 v35, 1.0, v35
            v_rcp_f32 v34, v34
            v_rcp_f32 v35, v35
            s_nop 0
            v_cvt_pk_bf16_f32 v32, v34, v35
            v_lshlrev_b32 v34, 16, v32
            v_and_b32 v35, 0xffff0000, v32
            v_mul_f32 v34, v34, v36
            v_mul_f32 v35, v35, v37
            v_cvt_pk_bf16_f32 v{ob+pr}, v34, v35
            """)
        sb = 8 + 4 * ((j // 2) % 4)
        if j == 6:
            a(f"buffer_store_dwordx2 v[{ob}:{ob+1}], v5, {WS}, s83 offen sc1")
        elif j & 1:
            a(f"buffer_store_dwordx4 v[{sb}:{sb+3}], v5, {WS}, s81 offen offset:{(j//2)*1024} sc1")


def gemm1(a, vm, pre_epi):
    a(f"""
    v_lshrrev_b32 v24, 1, v3
    v_lshlrev_b32 v24, 4, v24
    v_and_b32 v25, 1, v3
    v_lshl_add_u32 v24, v25, 2, v24
    v_lshrrev_b32 v25, 2, v2
    v_add_u32 v24, v24, v25
    v_mul_u32_u24 v24, 224, v24
    v_and_b32 v25, 3, v2
    v_lshl_add_u32 v24, v25, 3, v24
    v_add_u32 v25, {SLOT}, v24
    v_add_u32 v26, {2*SLOT}, v24
    v_add_u32 v27, {3*SLOT}, v24
    """)
    frs = [(b, hf, j, img) for b in range(8) for hf in range(2) for j in range(7) for img in range(2)]
    per_blk = 28
    def rd(i):
        b, hf, j, img = frs[i]
        w = WF + (i % 8) * 4
        va = 24 + (b % NSLOT)
        off = hf * 14336 + img * 7168 + 32 * j
        a(f"ds_read_b64_tr_b16 v[{w}:{w+1}], v{va} offset:{off}")
        a(f"ds_read_b64_tr_b16 v[{w+2}:{w+3}], v{va} offset:{off+1792}")
    PD = 6
    gp = Asm(); wdt_loads(gp, VM())
    ggroups, cur = [], []
    for it in gp.items:
        if isinstance(it, str) and it == "; GROUP":
            ggroups.append(cur); cur = []
        else:
            cur.append(it)
    wp = Asm(); w_prefetch(wp, 0, 4)
    wgroups, cur = [], []
    for it in wp.items:
        if isinstance(it, str) and it == "; GROUP":
            wgroups.append(cur); cur = []
        else:
            cur.append(it)
    for i, (b, hf, j, img) in enumerate(frs):
        s = 2 * b + hf
        if i % per_blk == 0:
            vm.wait(a, f"D{min(b + 1, 7)}")
            a("s_barrier")
            stamp(a, 8 + b)
            if b == 4:
                def sigW(a):
                    cnt_addr(a, 76, 2, 4, CNT_W)
                    atomic_inc(a, 76, 10, 11)
                wave0(a, "LsigW_skip", sigW)
            if b == 6:
                a(f"v_lshlrev_b32 v10, 8, v2\n v_add_u32 v10, {CNT_W * 256}, v10")
                poll(a, 10, 16, 11, "LwaitW")
            if 1 <= b and b + 3 < 8:
                dma_block(a, vm, b + 3)
            if b == 0:
                for k in range(PD):
                    rd(k)
        if j == 0 and img == 0:
            vm.wait(a, f"X{s}")
        out = min(PD - 1, len(frs) - 1 - i)
        a(f"s_waitcnt lgkmcnt({2*out})")
        w = WF + (i % 8) * 4
        xr = XF + s * 4
        r = ACC1 + (img * 7 + j) * 4
        cc = "0" if s == 0 else f"v[{r}:{r+3}]"
        a(f"v_mfma_f32_16x16x32_bf16 v[{r}:{r+3}], v[{w}:{w+3}], v[{xr}:{xr+3}], {cc}")
        if i + PD < len(frs):
            rd(i + PD)
        if b == 0 and i % 3 == 2 and ggroups:
            a.items += ggroups.pop(0)
            vm.issue("wg")
        if b == 1 and i % per_blk == per_blk - 1:
            wdt_store(a, vm)
        if b >= 6 and i % 3 == 2 and wgroups:
            a.items += wgroups.pop(0)
            vm.issue("WP")
    for g in wgroups:
        a.items += g
        vm.issue("WP")
    stamp(a, 16)
    pre_epi(a, vm)
    epi1(a)


CACC = 32
CFRL = [192]


def xcol_issue(a, vm):
    a(f"""
    s_lshl_b32 s77, s67, 1
    s_lshr_b32 s78, s77, 5
    s_lshl_b32 s78, s78, 10
    s_lshr_b32 s79, s77, 3
    s_and_b32 s79, s79, 3
    s_lshl_b32 s79, s79, 8
    s_add_u32 s78, s78, s79
    s_and_b32 s79, s77, 7
    s_lshl_b32 s79, s79, 1
    s_add_u32 s78, s78, s79
    s_mul_i32 s79, s3, {16*XTS_}
    s_add_u32 s78, s78, s79
    s_add_u32 s78, s78, {XN_OFF}
    v_mul_u32_u24 v6, {XTS_}, v3
    v_lshl_add_u32 v6, v2, 4, v6
    s_add_u32 s79, s78, {4*XTS_}
    s_add_u32 s80, s78, {8*XTS_}
    s_add_u32 s81, s78, {12*XTS_}
    buffer_load_dword v28, v6, {WS}, s78 offen sc1
    buffer_load_dword v29, v6, {WS}, s79 offen sc1
    buffer_load_dword v30, v6, {WS}, s80 offen sc1
    buffer_load_dword v31, v6, {WS}, s81 offen sc1
    """)
    vm.issue("XT", 4)


def xcol_stage(a, vm):
    vm.wait(a, "XT")
    a(f"""
    s_lshl_b32 s77, s3, 9
    s_sub_u32 s77, {XR + 4094}, s77
    v_lshlrev_b32 v6, 1, v1
    v_sub_u32 v6, s77, v6
    v_subrev_u32 v6, 384, v6
    """)
    for k in range(4):
        a(f"""
        v_lshlrev_b32 v7, 16, v{28+k}
        v_and_b32 v8, 0xffff0000, v{28+k}
        v_cvt_pk_f16_f32 v7, v7, v8
        ds_write_b16 v6, v7 offset:{384 - 128*k}
        ds_write_b16_d16_hi v6, v7 offset:{384 - 128*k + XRW}
        """)
    a(f"""
    v_lshlrev_b32 v6, 2, v1
    v_add_u32 v6, {XR + 4096}, v6
    v_mov_b32 v7, 0
    ds_write_b32 v6, v7
    ds_write_b32 v6, v7 offset:256
    ds_write_b32 v6, v7 offset:{XRW}
    ds_write_b32 v6, v7 offset:{XRW + 256}
    """)


def conv_setup(a, c):
    a(f"""
    v_sub_u32 v23, 3, v2
    v_and_b32 v23, 3, v23
    v_mul_u32_u24 v20, {KCOPY}, v23
    v_add_u32 v23, v23, v2
    v_lshlrev_b32 v24, 3, v3
    v_sub_u32 v23, v23, v24
    v_add_u32 v23, 25, v23                ; P0
    v_lshl_add_u32 v20, v23, 1, v20
    s_lshl_b32 s87, s3, 6
    s_add_u32 s87, s87, {KCP + c * KCH}
    v_add_u32 v20, s87, v20
    s_lshl_b32 s88, s3, 5
    v_add_u32 v23, s88, v23               ; P0 + 32r
    v_add_u32 v24, 4, v23
    v_lshrrev_b32 v24, 6, v24
    v_lshl_add_u32 v21, v24, 3, v20
    v_add_u32 v21, 8, v21                 ; B2
    v_lshrrev_b32 v23, 6, v23
    v_lshl_add_u32 v20, v23, 3, v20       ; B1
    v_lshlrev_b32 v22, 5, v2
    v_lshl_add_u32 v22, v3, 4, v22
    s_lshl_b32 s88, s3, 6
    s_add_u32 s88, s88, {XR + c * XRW + 528}
    v_sub_u32 v22, s88, v22
    """)


def conv_mfma(a):
    fb = CFRL[0]
    for q in range(8):
        a(f"ds_read_b64 v[{fb+4*q}:{fb+4*q+1}], v20 offset:{544*q}")
        a(f"ds_read_b64 v[{fb+4*q+2}:{fb+4*q+3}], v21 offset:{544*q}")
        a(f"ds_read_b128 v[{fb+32+4*q}:{fb+32+4*q+3}], v22 offset:{64*(56-8*q)}")
    done = set()
    k = 0
    for lvl in range(8):
        a(f"s_waitcnt lgkmcnt({min(15, 3*(7-lvl))})")
        for i in range(8):
            for q in range(i + 1):
                p = i - q
                if max(p, q) == lvl:
                    first = not any((i, q2) in done for q2 in range(i + 1))
                    cc = "0" if first else f"v[{CACC+4*i}:{CACC+4*i+3}]"
                    a(f"v_mfma_f32_16x16x32_f16 v[{CACC+4*i}:{CACC+4*i+3}], v[{fb+4*q}:{fb+4*q+3}], v[{fb+32+4*p}:{fb+32+4*p+3}], {cc}")
                    done.add((i, q))


def cex_addr(c, i):
    if c == 0:
        return (TAB, 7168, 1024 * i) if i < 7 else (KCP + KCH, 1024, 0)
    return (0, 8192, 1024 * i)


def conv_finish(a, c, post_read=None):
    if c == 0:
        a(f"""
        s_mul_i32 s84, s3, 7168
        s_add_u32 s84, s84, {TAB}
        v_add_u32 v6, s84, v5
        s_lshl_b32 s84, s3, 10
        s_add_u32 s84, s84, {KCP + KCH}
        v_add_u32 v7, s84, v5
        """)
        for i in range(7):
            a(f"ds_write_b128 v6, v[{CACC+4*i}:{CACC+3+4*i}] offset:{1024*i}")
        a(f"ds_write_b128 v7, v[{CACC+28}:{CACC+31}]")
        a(f"""
        s_lshl_b32 s84, s3, 10
        s_add_u32 s84, s84, {TAB}
        s_mov_b32 s85, 7168
        s_cmp_eq_u32 s3, 7
        s_cselect_b32 s84, {KCP + KCH}, s84
        s_cselect_b32 s85, 1024, s85
        """)
    else:
        a(f"""
        s_lshl_b32 s84, s3, 13
        v_add_u32 v6, s84, v5
        """)
        for i in range(8):
            a(f"ds_write_b128 v6, v[{CACC+4*i}:{CACC+3+4*i}] offset:{1024*i}")
        a("s_lshl_b32 s84, s3, 10\n s_mov_b32 s85, 8192")
    a(f"""
    v_add_u32 v7, s84, v5
    v_lshlrev_b32 v14, 4, v2
    v_lshl_add_u32 v14, v3, 2, v14
    s_lshl_b32 s86, s3, 8
    v_add_u32 v14, s86, v14               ; t0 = 256 w + 16a' + 4q
    v_lshlrev_b32 v15, 1, v14
    v_sub_u32 v16, {XR + c * XRW + 4088}, v15
    ds_read_b64 v[24:25], v16
    s_lshl_b32 s79, s67, 1
    s_add_u32 s79, s79, {c}
    s_lshl_b32 s80, s79, 12
    s_add_u32 s88, s80, {S_OFF}
    {"s_lshl_b32 s86, s89, 16" if c == 0 else "s_and_b32 s86, s89, 0xffff0000"}
    s_waitcnt lgkmcnt(0)
    s_barrier
    """)
    for k in range(8):
        r = CFRL[0] + 4 * k
        a(f"ds_read_b128 v[{r}:{r+3}], v7")
        if k < 7:
            a("v_add_u32 v7, s85, v7")
    a("s_waitcnt lgkmcnt(0)")
    if post_read:
        post_read(a)
    r = CFRL[0]
    for e in range(4):
        a(f"""
        v_add_f32 v{r+e}, v{r+e}, v{r+4+e}
        v_add_f32 v{r+8+e}, v{r+8+e}, v{r+12+e}
        v_add_f32 v{r+16+e}, v{r+16+e}, v{r+20+e}
        v_add_f32 v{r+24+e}, v{r+24+e}, v{r+28+e}
        v_add_f32 v{r+e}, v{r+e}, v{r+8+e}
        v_add_f32 v{r+16+e}, v{r+16+e}, v{r+24+e}
        v_add_f32 v{r+e}, v{r+e}, v{r+16+e}
        v_mul_f32 v{r+e}, s{S_ISC+c}, v{r+e}
        """)
    x0, x1 = 24, 25
    a(f"""
    v_cvt_f32_f16 v20, v{x1}
    v_lshrrev_b32 v21, 16, v{x1}
    v_cvt_f32_f16 v21, v21
    v_cvt_f32_f16 v22, v{x0}
    v_lshrrev_b32 v23, 16, v{x0}
    v_cvt_f32_f16 v23, v23
    v_mul_f32 v21, s86, v21
    v_mul_f32 v20, s86, v20
    v_mul_f32 v23, s86, v23
    v_mul_f32 v22, s86, v22
    v_cvt_pk_bf16_f32 v24, v21, v20
    v_cvt_pk_bf16_f32 v25, v23, v22
    v_cvt_pk_bf16_f32 v26, v{r}, v{r+1}
    v_cvt_pk_bf16_f32 v27, v{r+2}, v{r+3}
    v_lshlrev_b32 v20, 16, v24
    v_and_b32 v21, 0xffff0000, v24
    v_lshlrev_b32 v22, 16, v25
    v_and_b32 v23, 0xffff0000, v25
    v_lshlrev_b32 v28, 16, v26
    v_and_b32 v29, 0xffff0000, v26
    v_lshlrev_b32 v30, 16, v27
    v_and_b32 v31, 0xffff0000, v27
    v_add_f32 v20, v20, v28
    v_add_f32 v21, v21, v29
    v_add_f32 v22, v22, v30
    v_add_f32 v23, v23, v31
    v_cvt_pk_bf16_f32 v12, v20, v21
    v_cvt_pk_bf16_f32 v13, v22, v23
    buffer_store_dwordx2 v[12:13], v15, {WS}, s88 offen sc1
    """)


def WREG(j): return 192 + 16 * j if j < 4 else 128 + 16 * (j - 4)
HB = [32, 48, 176]
ACC2 = 64


def gemm2_map(a):
    a(f"""
    s_and_b32 s96, s2, 7
    s_lshr_b32 s97, s2, 3
    s_lshl_b32 s96, s96, 2
    s_and_b32 s98, s97, 3
    s_add_u32 s{S_TT}, s96, s98
    s_lshr_b32 s{S_DD}, s97, 2
    """)


def w_prefetch(a, j0, j1):
    a(f"""
    s_mul_i32 s72, s3, 7
    s_add_u32 s72, s72, {j0}
    s_lshl_b32 s72, s72, 5
    s_lshl_b32 s73, s{S_DD}, 2
    s_add_u32 s72, s72, s73
    s_lshl_b32 s72, s72, 10
    s_add_u32 s72, s72, {WDT_OFF}
    """)
    for st in range(j0, j1):
        r = WREG(st)
        for aa in range(4):
            a(f"buffer_load_dwordx4 v[{r+4*aa}:{r+4*aa+3}], v5, {WS}, s72 offen offset:{1024*aa} sc1")
            if aa == 3:
                a("s_add_u32 s72, s72, 32768")


def gemm2(a):
    vm = VM()
    a(f"""
    s_mul_i32 s76, s3, 7
    s_lshl_b32 s77, s{S_TT}, 2
    s_mul_i32 s77, s77, 56
    s_add_u32 s77, s77, s76
    s_lshl_b32 s77, s77, 10
    s_add_u32 s80, s77, {H_OFF}
    s_add_u32 s81, s80, {56*1024}
    s_add_u32 s82, s80, {2*56*1024}
    s_add_u32 s83, s80, {3*56*1024}
    """)
    def h_issue(j):
        fb = HB[j % 3]
        for b in range(4):
            a(f"buffer_load_dwordx4 v[{fb+4*b}:{fb+4*b+3}], v5, {WS}, s{80+b} offen offset:{1024*(j%4)} sc1")
            if j % 4 == 3:
                a(f"s_add_u32 s{80+b}, s{80+b}, 4096")
        vm.issue(f"H{j}", 4)
    for j in range(3):
        h_issue(j)
    for j in range(7):
        vm.wait(a, f"H{j}")
        fb = HB[j % 3]
        wb = WREG(j)
        for aa in range(4):
            for b in range(4):
                r = ACC2 + (aa * 4 + b) * 4
                cc = "0" if j == 0 else f"v[{r}:{r+3}]"
                a(f"v_mfma_f32_16x16x32_bf16 v[{r}:{r+3}], v[{wb+4*aa}:{wb+4*aa+3}], v[{fb+4*b}:{fb+4*b+3}], {cc}")
        if j + 3 < 7:
            h_issue(j + 3)
        if j == 3:
            a(f"""
            s_lshr_b32 s76, s3, 1
            s_lshl_b32 s77, s3, 1
            s_and_b32 s77, s77, 3
            s_lshl_b32 s78, s{S_TT}, 6
            s_lshl_b32 s79, s77, 4
            s_add_u32 s78, s78, s79
            s_lshl_b32 s78, s78, 10
            s_lshl_b32 s79, s{S_DD}, 7
            s_add_u32 s78, s78, s79
            s_lshl_b32 s79, s76, 5
            s_add_u32 s78, s78, s79
            s_add_u32 s79, s78, 16384
            v_lshlrev_b32 v7, 10, v2
            v_lshl_add_u32 v7, v3, 3, v7
            buffer_load_dwordx2 v[10:11], v7, s[{SRD_X}:{SRD_X+3}], s78 offen
            buffer_load_dwordx2 v[12:13], v7, s[{SRD_X}:{SRD_X+3}], s79 offen
            s_lshl_b32 s86, s{S_DD}, 8
            s_add_u32 s86, s86, {CNT_C * 256}
            v_mov_b32 v20, s86
            buffer_load_dword v21, v20, {WS}, 0 offen sc1
            """)
            vm.issue("misc", 3)
    a(f"""
    s_waitcnt vmcnt(0)
    v_cmp_gt_u32 vcc, 32, v21
    s_cbranch_vccz LwaitC_ok2
    """)
    poll(a, 20, 32, 21, "LwaitC")
    a(f"""
LwaitC_ok2:
    v_lshrrev_b32 v8, 4, v0
    v_and_b32 v9, 15, v0
    v_lshlrev_b32 v14, 12, v8
    v_lshl_add_u32 v14, v9, 3, v14
    s_lshl_b32 s80, s{S_DD}, 18
    s_lshl_b32 s81, s{S_TT}, 7
    s_add_u32 s80, s80, s81
    s_add_u32 s80, s80, {S_OFF}
    s_add_u32 s81, s80, {32*4096}
    buffer_load_dwordx2 v[16:17], v14, {WS}, s80 offen sc1
    buffer_load_dwordx2 v[18:19], v14, {WS}, s81 offen sc1
    v_mul_u32_u24 v15, {SROW}, v8
    v_lshl_add_u32 v15, v9, 3, v15
    v_add_u32 v15, {STILE}, v15
    s_lshl_b32 s80, s3, 14
    s_add_u32 s80, s80, {G2P}
    v_add_u32 v6, s80, v5
    """)
    for i in range(16):
        a(f"ds_write_b128 v6, v[{ACC2+4*i}:{ACC2+4*i+3}] offset:{1024*i}")


def final(a, waitC):
    a(f"""
    s_waitcnt vmcnt(0)
    ds_write_b64 v15, v[16:17]
    ds_write_b64 v15, v[18:19] offset:{32*SROW}
    s_waitcnt lgkmcnt(0)
    s_barrier
    s_lshl_b32 s80, s3, 11
    s_add_u32 s80, s80, {G2P}
    v_add_u32 v20, s80, v5
    v_add_u32 v19, 65536, v20
    """)
    for i in range(2):
        for kq in range(8):
            r = 96 + (i * 8 + kq) * 4
            a(f"ds_read_b128 v[{r}:{r+3}], v{20 if kq < 4 else 19} offset:{(kq%4)*16384 + i*1024}")
    a(f"""
    v_lshlrev_b32 v21, 2, v3
    s_lshl_b32 s80, s76, 4
    v_add_u32 v21, s80, v21
    v_mul_u32_u24 v21, {SROW}, v21
    v_lshl_add_u32 v21, v2, 1, v21
    s_lshl_b32 s80, s77, 5
    s_add_u32 s80, s80, {STILE}
    v_add_u32 v21, s80, v21
    """)
    for i in range(2):
        for e in range(4):
            a(f"ds_read_u16 v{64+4*i+e}, v21 offset:{e*SROW + 32*i}")
    a(f"s_mov_b32 s82, {NLOG2E}\n s_waitcnt lgkmcnt(0)")
    for i in range(2):
        b0 = 96 + i * 32
        for e in range(4):
            a(f"""
            v_add_f32 v{b0+e}, v{b0+e}, v{b0+4+e}
            v_add_f32 v{b0+8+e}, v{b0+8+e}, v{b0+12+e}
            v_add_f32 v{b0+16+e}, v{b0+16+e}, v{b0+20+e}
            v_add_f32 v{b0+24+e}, v{b0+24+e}, v{b0+28+e}
            v_add_f32 v{b0+e}, v{b0+e}, v{b0+8+e}
            v_add_f32 v{b0+16+e}, v{b0+16+e}, v{b0+24+e}
            v_add_f32 v{b0+e}, v{b0+e}, v{b0+16+e}
            """)
        for pr in range(2):
            o0, o1 = b0 + 2 * pr, b0 + 2 * pr + 1
            s0, s1 = 64 + 4 * i + 2 * pr, 64 + 4 * i + 2 * pr + 1
            xx = 10 + 2 * i + pr
            a(f"""
            v_cvt_pk_bf16_f32 v22, v{o0}, v{o1}
            v_lshlrev_b32 v23, 16, v22
            v_and_b32 v24, 0xffff0000, v22
            v_mul_f32 v25, s82, v23
            v_mul_f32 v26, s82, v24
            v_exp_f32 v25, v25
            v_exp_f32 v26, v26
            v_lshlrev_b32 v{s0}, 16, v{s0}
            v_lshlrev_b32 v{s1}, 16, v{s1}
            v_add_f32 v25, 1.0, v25
            v_add_f32 v26, 1.0, v26
            v_rcp_f32 v25, v25
            v_rcp_f32 v26, v26
            s_nop 0
            v_mul_f32 v25, v25, v23
            v_mul_f32 v26, v26, v24
            v_cvt_pk_bf16_f32 v22, v25, v26
            v_lshlrev_b32 v23, 16, v22
            v_and_b32 v24, 0xffff0000, v22
            v_mul_f32 v23, v23, v{s0}
            v_mul_f32 v24, v24, v{s1}
            v_cvt_pk_bf16_f32 v22, v23, v24
            v_lshlrev_b32 v23, 16, v22
            v_and_b32 v24, 0xffff0000, v22
            v_lshlrev_b32 v25, 16, v{xx}
            v_and_b32 v26, 0xffff0000, v{xx}
            v_add_f32 v23, v23, v25
            v_add_f32 v24, v24, v26
            v_cvt_pk_bf16_f32 v{28+2*i+pr}, v23, v24
            """)
        a(f"buffer_store_dwordx2 v[{28+2*i}:{29+2*i}], v7, s[{SRD_OUT}:{SRD_OUT+3}], s{78+i} offen")


def cnt_addr(a, sreg, idx_expr_sreg, shift, base):
    a(f"""
    s_lshr_b32 s{sreg}, s{idx_expr_sreg}, {shift}
    s_lshl_b32 s{sreg}, s{sreg}, 8
    s_add_u32 s{sreg}, s{sreg}, {base * 256}
    """)


def build():
    a = Asm()
    vm = VM()
    prologue(a, vm)
    stamp(a, 1)
    ln(a, vm)
    stamp(a, 2)
    gemm1_setup(a)
    wdt_issue(a, vm)
    kgen_setup(a)
    a("s_waitcnt vmcnt(0)")
    a("v_readfirstlane_b32 s89, v61\n v_readfirstlane_b32 s74, v60")
    a("s_barrier")
    stamp(a, 3)
    def sigA(a):
        a(f"""
        v_readfirstlane_b32 s76, v8
        s_cmp_lg_u32 s76, 0
        s_cbranch_scc1 LsigA_go
        v_mov_b32 v10, 0
        """)
        poll(a, 10, 1, 11, "LsigA_poll", SRD_DBG)
        a("LsigA_go:")
        cnt_addr(a, 76, 2, 4, CNT_A)
        atomic_inc(a, 76, 10, 11)
    wave0(a, "LsigA_skip", sigA)
    def side0(x):
        dma_block(x, vm, 0)
        dma_block(x, vm, 1)
    merged(a, lambda x: kgen_tables(x, 0), side0, 8, start=2)
    a("s_waitcnt lgkmcnt(0)\n s_barrier")
    stamp(a, 4)
    kpads(a, 0)
    kgen_mfma(a, 0)
    def waitA(a):
        a(f"v_lshlrev_b32 v10, 8, v2\n v_add_u32 v10, {CNT_A * 256}, v10")
        poll(a, 10, 16, 11, "LwaitA")
    a("s_waitcnt lgkmcnt(0)")
    wave0(a, "LwaitA_skip", waitA)
    a("s_barrier")
    stamp(a, 5)
    xcol_issue(a, vm)
    x_addr(a)
    x_issue(a, vm, 0, 4)
    conv_setup(a, 0)
    xcol_stage(a, vm)
    a("s_waitcnt lgkmcnt(0)\n s_barrier")
    stamp(a, 6)
    merged(a, conv_mfma, lambda x: x_issue(x, vm, 4, 12), 4, start=24)
    stamp(a, 7)
    def post0(a):
        a("s_barrier")
        dma_block(a, vm, 2)
        dma_block(a, vm, 3)
        x_issue(a, vm, 12, 16)
    conv_finish(a, 0, post0)
    stamp(a, 17)
    gemm2_map(a)
    def pre_epi(a, vm_):
        par_loads(a, vm_, 1)
    gemm1(a, vm, pre_epi)
    stamp(a, 20)
    a("s_barrier")
    TOFF[0] = -8
    CFRL[0] = 64
    kgen_setup(a)
    a("s_waitcnt vmcnt(4)")
    stamp(a, 21)
    merged(a, lambda x: kgen_tables(x, 1), lambda x: w_prefetch(x, 4, 7), 12, start=2)
    a("s_waitcnt vmcnt(12) lgkmcnt(0)\n s_barrier")
    def sigB(a):
        cnt_addr(a, 76, 4, 0, CNT_B)
        atomic_inc(a, 76, 10, 11)
    wave0(a, "LsigB_skip", sigB)
    stamp(a, 22)
    kpads(a, 1)
    kgen_mfma(a, 1)
    conv_setup(a, 1)
    a("s_waitcnt lgkmcnt(0)\n s_barrier")
    stamp(a, 23)
    if DEBUG:
        a(f"""
        v_lshlrev_b32 v6, 4, v0
        v_add_u32 v7, {KCP + KCH}, v6
        ds_read_b128 v[8:11], v7
        s_lshl_b32 s76, s2, 13
        s_add_u32 s76, s76, {DBG_OFF}
        s_waitcnt lgkmcnt(0)
        buffer_store_dwordx4 v[8:11], v6, {WS}, s76 offen
        v_mov_b32 v8, s91
        v_mov_b32 v9, s74
        v_mov_b32 v10, v48
        v_mov_b32 v11, v53
        s_add_u32 s76, s76, 0
        v_add_u32 v6, 0x700000, v6
        buffer_store_dwordx4 v[8:11], v6, {WS}, s76 offen
        """)
    conv_mfma(a)
    conv_finish(a, 1)
    stamp(a, 24)
    cnt_addr(a, 76, S_TT, 1, CNT_B)
    a("v_mov_b32 v10, s76")
    poll(a, 10, 16, 11, "LwaitB")
    a(f"""
    v_mov_b32 v10, {MISC + 32}
    v_mov_b32 v11, 1
    s_mov_b64 exec, 1
    ds_add_rtn_u32 v12, v10, v11
    s_waitcnt lgkmcnt(0)
    v_readfirstlane_b32 s76, v12
    s_mov_b64 exec, -1
    s_cmp_lg_u32 s76, 7
    s_cbranch_scc1 LsigC_skip
    """)
    cnt_addr(a, 76, 67, 5, CNT_C)
    atomic_inc(a, 76, 10, 11)
    a("LsigC_skip:\n s_barrier")
    stamp(a, 25)
    gemm2(a)
    stamp(a, 27)
    def waitC(a):
        cnt_addr(a, 86, S_DD, 0, CNT_C)
        a("v_mov_b32 v20, s86")
        poll(a, 20, 32, 21, "LwaitC")
    final(a, waitC)
    stamp(a, 30)
    a("s_waitcnt vmcnt(0)")
    stamp(a, 31)
    stamp_flush(a)
    a("Lexit:\n s_endpgm")
    a.finalize()
    txt = f"; @launch grid=(256,1,1) block=(512,1,1) lds={LDS_BYTES}\n"
    txt += '.amdgcn_target "amdgcn-amd-amdhsa--gfx950"\n.text\n'
    txt += f".globl {KNAME}\n.p2align 8\n.type {KNAME},@function\n" + a.text()
    txt += f""".section .rodata,"a"
.p2align 6
.amdhsa_kernel {KNAME}
  .amdhsa_next_free_vgpr 256
  .amdhsa_next_free_sgpr 102
  .amdhsa_accum_offset 256
  .amdhsa_group_segment_fixed_size 0
  .amdhsa_kernarg_size 128
  .amdhsa_user_sgpr_count 2
  .amdhsa_user_sgpr_kernarg_segment_ptr 1
  .amdhsa_system_sgpr_workgroup_id_x 1
.end_amdhsa_kernel
"""
    return txt


if __name__ == "__main__":
    for o in sys.argv[2:]:
        if o == "nostamp": STAMPS = False
        if o == "debug": DEBUG = True
        if o == "xplain": XSC = ""
        if o == "gplain": GSC = ""
    open(sys.argv[1], "w").write(build())
```

```python
import sys, struct
from dsl import Asm

KNAME = "recurrent_scan__ssm_conv_s4__glu_gated_glu__prompt_kernel"
STAMPS = True

CNT_A, CNT_B, CNT_C, CNT_W = 0, 16, 32, 40
XTS_ = 16640
XN_OFF = 1 << 20
WDT_OFF = 8 << 20
H_OFF = 16 << 20
S_OFF = 32 << 20
DBG_OFF = 64 << 20
STAMP_OFF = DBG_OFF + (8 << 20)

SLOT = 28672
NSLOT = 3
TAB = NSLOT * SLOT
TROW = 528
KCP = TAB + 96 * TROW
KCOPY = 4416
XR = KCP + 4 * KCOPY
XRW = 4608
MISC = XR + 2 * XRW
LDS_BYTES = MISC + 256
XNS = XR
CEX = TAB
G2P = 0
STILE = 131072
SROW = 144

SRD_X, SRD_WS, SRD_WG, SRD_WU, SRD_OUT, SRD_DBG, SRD_WD, SRD_T0, SRD_T1 = 8, 12, 16, 20, 24, 28, 32, 36, 40
PTR = 44
def P(i): return PTR + 2 * i
S_ISC = 90
S_TT, S_DD = 64, 65
S_CP = 1

LOG2E = 0x3fb8aa3b
NLOG2E = 0xbfb8aa3b
INV2PI = 0x3e22f983
F32 = lambda x: hex(struct.unpack("<I", struct.pack("<f", x))[0])
WS = f"s[{SRD_WS}:{SRD_WS+3}]"


class VM:
    def __init__(self): self.ops = []
    def issue(self, tag, n=1): self.ops += [tag] * n
    def wait(self, a, tag):
        idx = max(i for i, t in enumerate(self.ops) if t == tag)
        a(f"s_waitcnt vmcnt({min(len(self.ops) - 1 - idx, 63)})")


def groups_of(fn):
    sd = Asm(); fn(sd)
    groups, cur = [], []
    for it in sd.items:
        if isinstance(it, str) and it == "; GROUP":
            groups.append(cur); cur = []
        else:
            cur.append(it)
    if cur:
        groups.append(cur)
    return groups


def srd(a, q, ptr_idx, nbytes):
    a(f"""
    s_mov_b32 s{q}, s{P(ptr_idx)}
    s_and_b32 s{q+1}, s{P(ptr_idx)+1}, 0xffff
    s_mov_b32 s{q+2}, {nbytes}
    s_mov_b32 s{q+3}, 0x00020000
    """)


def stamp(a, idx):
    if STAMPS:
        a(f"s_memtime s[100:101]\n s_waitcnt lgkmcnt(0)\n v_writelane_b32 v4, s100, {idx}")


def stamp_flush(a):
    if STAMPS:
        a(f"""
        s_mul_i32 s76, s2, 12
        s_add_u32 s76, s76, s3
        s_lshl_b32 s76, s76, 8
        s_add_u32 s76, s76, {STAMP_OFF}
        v_lshlrev_b32 v6, 2, v1
        buffer_store_dword v4, v6, {WS}, s76 offen
        """)


def allreduce(a, v, tmp, op="v_add_f32"):
    a(f"""
    {op}_dpp v{v}, v{v}, v{v} quad_perm:[1,0,3,2] row_mask:0xf bank_mask:0xf
    {op}_dpp v{v}, v{v}, v{v} quad_perm:[2,3,0,1] row_mask:0xf bank_mask:0xf
    {op}_dpp v{v}, v{v}, v{v} row_half_mirror row_mask:0xf bank_mask:0xf
    {op}_dpp v{v}, v{v}, v{v} row_mirror row_mask:0xf bank_mask:0xf
    v_mov_b32 v{tmp}, v{v}
    v_permlane16_swap_b32 v{v}, v{tmp}
    {op} v{v}, v{v}, v{tmp}
    v_mov_b32 v{tmp}, v{v}
    v_permlane32_swap_b32 v{v}, v{tmp}
    {op} v{v}, v{v}, v{tmp}
    """)


def bf16r(a, dst, src):
    a(f"v_cvt_pk_bf16_f32 v{dst}, v{src}, v{src}\n v_lshlrev_b32 v{dst}, 16, v{dst}")


_lab = [0]
def newlab(p):
    _lab[0] += 1
    return f"{p}{_lab[0]}"


def poll(a, vreg, target, tmpv, srdq=SRD_WS):
    L = newlab("Lp")
    a(f"""
    s_mov_b32 s99, 0
{L}:
    buffer_load_dword v{tmpv}, v{vreg}, s[{srdq}:{srdq+3}], 0 offen sc1
    s_waitcnt vmcnt(0)
    v_cmp_gt_u32 vcc, {target}, v{tmpv}
    s_cbranch_vccz {L}_ok
    s_sleep 1
    s_add_u32 s99, s99, 1
    s_cmp_lt_u32 s99, 0x8000
    s_cbranch_scc1 {L}
{L}_ok:
    """)


_lb = [0]
def lbar(a, n, target=None):
    idx = _lb[0]; _lb[0] += 1
    assert idx < 60
    L = newlab("Lb")
    a(f"""
    s_waitcnt lgkmcnt(0)
    v_mov_b32 v6, {MISC + 4 * idx}
    v_mov_b32 v7, 1
    s_mov_b64 exec, 1
    ds_add_u32 v6, v7
    s_mov_b64 exec, -1
    s_mov_b32 s99, 0
{L}:
    ds_read_b32 v7, v6
    s_waitcnt lgkmcnt(0)
    v_readfirstlane_b32 s98, v7
    s_add_u32 s99, s99, 1
    s_cmp_ge_u32 s98, {target or n}
    s_cbranch_scc1 {L}_ok
    s_cmp_lt_u32 s99, 0x400000
    s_cbranch_scc1 {L}
{L}_ok:
    """)


def atomic_inc(a, s_off, v1, v2):
    a(f"""
    v_mov_b32 v{v1}, s{s_off}
    v_mov_b32 v{v2}, 1
    s_mov_b64 exec, 1
    buffer_atomic_add v{v2}, v{v1}, {WS}, 0 offen sc1
    s_mov_b64 exec, -1
    """)


def wave_is(a, w, fn):
    L = newlab("Lw")
    a(f"s_cmp_lg_u32 s3, {w}\n s_cbranch_scc1 {L}")
    fn(a)
    a(f"{L}:")


def cnt_addr(a, sreg, idx, shift, base):
    a(f"""
    s_lshr_b32 s{sreg}, s{idx}, {shift}
    s_lshl_b32 s{sreg}, s{sreg}, 8
    s_add_u32 s{sreg}, s{sreg}, {base * 256}
    """)


def prologue(a):
    a(f"""
{KNAME}:
    s_cmp_ge_u32 s2, 256
    s_cbranch_scc1 Lexit
    s_load_dwordx16 s[44:59], s[0:1], 0
    s_load_dwordx16 s[60:75], s[0:1], 64
    v_and_b32 v1, 63, v0
    v_lshrrev_b32 v4, 6, v0
    v_and_b32 v2, 15, v1
    v_lshrrev_b32 v3, 4, v1
    v_readfirstlane_b32 s3, v4
    v_lshlrev_b32 v5, 4, v1
    v_mov_b32 v4, 0
    s_lshl_b32 s86, s2, 3
    s_add_u32 s86, s86, s3
    s_lshl_b32 s87, s86, 10
    s_waitcnt lgkmcnt(0)
    """)
    srd(a, SRD_WS, 15, 256 << 20)
    a(f"""
    s_and_b32 s77, s2, 7
    s_lshl_b32 s77, s77, 5
    s_lshr_b32 s76, s2, 3
    s_add_u32 s{S_CP}, s77, s76
    s_cmp_ge_u32 s3, 8
    s_cbranch_scc1 Lssm
    """)


def ln(a, vm):
    f = 24
    vm.wait(a, "x")
    for i in range(4):
        a(f"v_lshlrev_b32 v{f+2*i}, 16, v{10+i}\n v_and_b32 v{f+2*i+1}, 0xffff0000, v{10+i}")
    a(f"""
    v_add_f32 v32, v{f}, v{f+1}
    v_add_f32 v33, v{f+2}, v{f+3}
    v_add_f32 v34, v{f+4}, v{f+5}
    v_add_f32 v35, v{f+6}, v{f+7}
    v_add_f32 v32, v32, v33
    v_add_f32 v34, v34, v35
    v_add_f32 v32, v32, v34
    """)
    allreduce(a, 32, 33)
    a("v_mul_f32 v32, 0x3b000000, v32")
    a(f"v_sub_f32 v34, v{f}, v32\n v_mul_f32 v35, v34, v34")
    for i in range(1, 8):
        a(f"v_sub_f32 v34, v{f+i}, v32\n v_fmac_f32 v35, v34, v34")
    allreduce(a, 35, 33)
    a("v_mul_f32 v35, 0x3b000000, v35")
    bf16r(a, 32, 32)
    bf16r(a, 35, 35)
    a("v_add_f32 v35, 0x3727c5ac, v35")
    bf16r(a, 35, 35)
    a("v_sqrt_f32 v35, v35")
    bf16r(a, 35, 35)
    a("v_rcp_f32 v36, v35")
    for i in range(8):
        a(f"v_sub_f32 v{f+i}, v{f+i}, v32")
    for i in range(4):
        a(f"""
        v_cvt_pk_bf16_f32 v37, v{f+2*i}, v{f+2*i+1}
        v_lshlrev_b32 v{f+2*i}, 16, v37
        v_and_b32 v{f+2*i+1}, 0xffff0000, v37
        """)
    for i in range(8):
        a(f"""
        v_mul_f32 v37, v{f+i}, v36
        v_fma_f32 v38, -v37, v35, v{f+i}
        v_fma_f32 v{f+i}, v38, v36, v37
        """)
    for i in range(4):
        a(f"v_cvt_pk_bf16_f32 v{10+i}, v{f+2*i}, v{f+2*i+1}")
    a(f"""
    s_mul_i32 s91, s3, 1040
    s_add_u32 s91, s91, {XNS}
    v_add_u32 v9, s91, v5
    ds_write_b128 v9, v[10:13]
    v_and_b32 v8, 7, v0
    v_lshrrev_b32 v9, 3, v0
    v_mul_u32_u24 v37, 1040, v8
    v_lshl_add_u32 v37, v9, 4, v37
    v_add_u32 v37, {XNS}, v37
    v_lshlrev_b32 v38, 8, v9
    v_lshl_add_u32 v38, v8, 4, v38
    s_lshr_b32 s91, s2, 1
    s_mul_i32 s91, s91, {XTS_}
    s_and_b32 s92, s2, 1
    s_lshl_b32 s92, s92, 7
    s_add_u32 s91, s91, s92
    s_add_u32 s91, s91, {XN_OFF}
    """)
    lbar(a, 8)
    a(f"""
    ds_read_b128 v[40:43], v37
    s_waitcnt lgkmcnt(0)
    buffer_store_dwordx4 v[40:43], v38, {WS}, s91 offen sc1
    v_mov_b32 v9, 0
    buffer_load_dword v8, v9, s[{SRD_DBG}:{SRD_DBG+3}], 0 offen sc1
    """)
    vm.issue("lnst", 2)


def gemm1_setup(a):
    a(f"""
    s_and_b32 s76, s2, 7
    s_lshr_b32 s77, s2, 3
    s_and_b32 s78, s76, 1
    s_lshl_b32 s78, s78, 3
    s_and_b32 s79, s77, 7
    s_add_u32 s4, s78, s79
    s_lshr_b32 s78, s76, 1
    s_lshl_b32 s78, s78, 2
    s_lshr_b32 s79, s77, 3
    s_add_u32 s5, s78, s79
    s_mul_i32 s6, s5, 224
    s_mul_i32 s7, s3, 896
    s_and_b32 s78, s3, 4
    s_and_b32 s79, s3, 1
    s_lshl_b32 s79, s79, 1
    s_or_b32 s78, s78, s79
    s_lshr_b32 s79, s3, 1
    s_and_b32 s79, s79, 1
    s_or_b32 s78, s78, s79
    s_lshl_b32 s78, s78, 2
    v_mul_u32_u24 v18, 147, v1
    v_lshrrev_b32 v18, 11, v18
    v_mul_u32_u24 v19, 14, v18
    v_sub_u32 v19, v1, v19
    v_add_u32 v18, s78, v18
    v_mul_u32_u24 v18, 3584, v18
    v_lshl_add_u32 v18, v19, 4, v18
    s_lshl_b32 s{S_TT}, s76, 2
    s_and_b32 s78, s77, 3
    s_add_u32 s{S_TT}, s{S_TT}, s78
    s_lshr_b32 s{S_DD}, s77, 2
    """)


def dma_block(a, vm, b):
    slot = (b % NSLOT) * SLOT
    for hf in range(2):
        for img in range(2):
            q = SRD_WG if img == 0 else SRD_WU
            a(f"""
            s_add_u32 s75, s6, {(64*b + 32*hf) * 3584}
            s_add_u32 m0, s7, {slot + hf*14336 + img*7168}
            s_mov_b32 exec_hi, 0x00ffffff
            buffer_load_dwordx4 v18, s[{q}:{q+3}], s75 offen lds
            s_mov_b32 exec_hi, -1
            """)
    vm.issue(f"D{b}", 4)


def wdt(a, k):
    t = 86
    rb = 128 + 12 * k
    a(f"""
    s_lshl_b32 s88, s{S_SW}, 1
    s_add_u32 s88, s88, {k}
    s_min_u32 s88, s88, 6
    s_mul_i32 s{t+3}, s2, 7
    s_add_u32 s88, s88, s{t+3}
    s_lshr_b32 s{t+3}, s88, 5
    s_and_b32 s{t+4}, s88, 31
    s_mul_i32 s{t+5}, s{t+3}, 37
    s_lshr_b32 s{t+5}, s{t+5}, 8
    s_mul_i32 s{t+6}, s{t+5}, 7
    s_sub_u32 s{t+6}, s{t+3}, s{t+6}
    s_mul_i32 s{t+5}, s{t+5}, 224
    s_lshl_b32 s{t+7}, s{t+6}, 5
    s_add_u32 s{t+5}, s{t+5}, s{t+7}
    s_cmp_ge_u32 s{t+6}, 3
    s_cselect_b32 s{t+7}, 16, 0
    s_add_u32 s{t+3}, s{t+5}, s{t+7}
    s_add_u32 s{t+7}, s{t+3}, 16
    s_sub_u32 s{t+8}, s{t+5}, 96
    s_add_u32 s{t+9}, s{t+5}, 16
    s_cmp_eq_u32 s{t+6}, 6
    s_cselect_b32 s{t+3}, s{t+8}, s{t+3}
    s_cselect_b32 s{t+7}, s{t+9}, s{t+7}
    s_lshl_b32 s{t+4}, s{t+4}, 5
    s_lshl_b32 s{t+3}, s{t+3}, 10
    s_lshl_b32 s{t+7}, s{t+7}, 10
    s_add_u32 s{t+3}, s{t+3}, s{t+4}
    s_add_u32 s{t+4}, s{t+7}, s{t+4}
    s_lshl_b32 s{70+k}, s88, 10
    s_add_u32 s{70+k}, s{70+k}, {WDT_OFF}
    v_lshlrev_b32 v19, 12, v3
    v_lshl_add_u32 v19, v2, 1, v19
    """)
    for j in range(8):
        a(f"buffer_load_ushort v{rb+j}, v19, s[{SRD_WD}:{SRD_WD+3}], s{t+3+(j//4)} offen offset:{1024*(j%4)}")


def wdt_store(a, k):
    rb = 128 + 12 * k
    a(f"""
    v_lshl_or_b32 v{rb+8}, v{rb+1}, 16, v{rb}
    v_lshl_or_b32 v{rb+9}, v{rb+3}, 16, v{rb+2}
    v_lshl_or_b32 v{rb+10}, v{rb+5}, 16, v{rb+4}
    v_lshl_or_b32 v{rb+11}, v{rb+7}, 16, v{rb+6}
    buffer_store_dwordx4 v[{rb+8}:{rb+11}], v5, {WS}, s{70+k} offen sc1
    """)


WF, XF, ACC1 = 24, 44, 108
NWF = 5


def gemm1(a, vm):
    a(f"""
    s_lshl_b32 s69, s4, 3
    s_add_u32 s69, s69, s3
    s_mul_i32 s69, s69, {XTS_}
    s_add_u32 s69, s69, {XN_OFF}
    """)
    for s in range(16):
        if s % 4 == 0:
            a(f"s_add_u32 s70, s69, {(s//4)*4096}")
        a(f"buffer_load_dwordx4 v[{XF+4*s}:{XF+4*s+3}], v5, {WS}, s70 offen offset:{1024*(s%4)} sc1")
        vm.issue(f"X{s}")
    a(f"""
    v_lshrrev_b32 v20, 1, v3
    v_lshlrev_b32 v20, 4, v20
    v_and_b32 v21, 1, v3
    v_lshl_add_u32 v20, v21, 2, v20
    v_lshrrev_b32 v21, 2, v2
    v_add_u32 v20, v20, v21
    v_mul_u32_u24 v20, 224, v20
    v_and_b32 v21, 3, v2
    v_lshl_add_u32 v20, v21, 3, v20
    v_add_u32 v21, {SLOT}, v20
    v_add_u32 v22, {2*SLOT}, v20
    """)
    PD = 4
    for b in range(8):
        vm.wait(a, f"D{b}")
        lbar(a, 8)
        stamp(a, 8 + b)
        if 1 <= b and b + 2 < 8:
            dma_block(a, vm, b + 2)
        frs = [(hf, j, img) for hf in range(2) for j in range(7) for img in range(2)]
        def rd(i):
            hf, j, img = frs[i]
            w = WF + (i % NWF) * 4
            off = hf * 14336 + img * 7168 + 32 * j
            a(f"ds_read_b64_tr_b16 v[{w}:{w+1}], v{20 + b % NSLOT} offset:{off}")
            a(f"ds_read_b64_tr_b16 v[{w+2}:{w+3}], v{20 + b % NSLOT} offset:{off+1792}")
        for k in range(PD):
            rd(k)
        for i, (hf, j, img) in enumerate(frs):
            s = 2 * b + hf
            if j == 0 and img == 0:
                vm.wait(a, f"X{s}")
            out = min(PD - 1, len(frs) - 1 - i)
            a(f"s_waitcnt lgkmcnt({2*out})")
            w = WF + (i % NWF) * 4
            xr = XF + s * 4
            r = ACC1 + (img * 7 + j) * 4
            cc = "0" if s == 0 else f"v[{r}:{r+3}]"
            a(f"v_mfma_f32_16x16x32_bf16 v[{r}:{r+3}], v[{w}:{w+3}], v[{xr}:{xr+3}], {cc}")
            if i + PD < len(frs):
                rd(i + PD)
    stamp(a, 16)
    a(f"""
    s_lshl_b32 s78, s4, 3
    s_add_u32 s78, s78, s3
    s_mul_i32 s78, s78, {56*1024}
    s_add_u32 s78, s78, {H_OFF}
    s_lshr_b32 s79, s5, 1
    s_mul_i32 s79, s79, 7
    s_and_b32 s80, s5, 1
    s_mul_i32 s81, s80, 3
    s_add_u32 s81, s81, s79
    s_lshl_b32 s81, s81, 10
    s_add_u32 s81, s81, s78
    s_add_u32 s83, s79, 6
    s_lshl_b32 s83, s83, 10
    s_add_u32 s83, s83, s78
    s_lshl_b32 s80, s80, 3
    s_add_u32 s83, s83, s80
    v_mov_b32 v30, {NLOG2E}
    """)
    for j in range(7):
        g_ = ACC1 + j * 4
        u = ACC1 + (7 + j) * 4
        ob = 8 + 4 * (j // 2) + 2 * (j & 1)
        for pr in range(2):
            g0, g1, u0, u1 = g_ + 2 * pr, g_ + 2 * pr + 1, u + 2 * pr, u + 2 * pr + 1
            a(f"""
            v_cvt_pk_bf16_f32 v24, v{g0}, v{g1}
            v_cvt_pk_bf16_f32 v25, v{u0}, v{u1}
            v_lshlrev_b32 v26, 16, v24
            v_and_b32 v27, 0xffff0000, v24
            v_mul_f32 v26, v30, v26
            v_mul_f32 v27, v30, v27
            v_exp_f32 v26, v26
            v_exp_f32 v27, v27
            v_lshlrev_b32 v28, 16, v25
            v_and_b32 v29, 0xffff0000, v25
            v_add_f32 v26, 1.0, v26
            v_add_f32 v27, 1.0, v27
            v_rcp_f32 v26, v26
            v_rcp_f32 v27, v27
            s_nop 0
            v_cvt_pk_bf16_f32 v24, v26, v27
            v_lshlrev_b32 v26, 16, v24
            v_and_b32 v27, 0xffff0000, v24
            v_mul_f32 v26, v26, v28
            v_mul_f32 v27, v27, v29
            v_cvt_pk_bf16_f32 v{ob+pr}, v26, v27
            """)
        sb = 8 + 4 * (j // 2)
        if j == 6:
            a(f"buffer_store_dwordx2 v[{ob}:{ob+1}], v5, {WS}, s83 offen sc1")
        elif j & 1:
            a(f"buffer_store_dwordx4 v[{sb}:{sb+3}], v5, {WS}, s81 offen offset:{(j//2)*1024} sc1")


ACC2 = 24
ST2 = [88, 120]


def gemm2(a):
    vm = VM()
    a(f"""
    s_mul_i32 s72, s3, 7
    s_lshl_b32 s72, s72, 5
    s_lshl_b32 s73, s{S_DD}, 2
    s_add_u32 s72, s72, s73
    s_lshl_b32 s72, s72, 10
    s_add_u32 s72, s72, {WDT_OFF}
    s_mul_i32 s76, s3, 7
    s_lshl_b32 s77, s{S_TT}, 2
    s_mul_i32 s77, s77, 56
    s_add_u32 s77, s77, s76
    s_lshl_b32 s77, s77, 10
    s_add_u32 s80, s77, {H_OFF}
    s_add_u32 s81, s80, {56*1024}
    s_add_u32 s82, s80, {2*56*1024}
    s_add_u32 s83, s80, {3*56*1024}
    v_lshlrev_b32 v10, 8, v2
    v_add_u32 v10, {CNT_W * 256}, v10
    """)
    poll(a, 10, 16, 11)
    def w_issue(j):
        fb = ST2[j % 2]
        for aa in range(4):
            a(f"buffer_load_dwordx4 v[{fb+4*aa}:{fb+4*aa+3}], v5, {WS}, s72 offen offset:{1024*aa} sc1")
        a("s_add_u32 s72, s72, 32768")
        vm.issue(f"W{j}", 4)
    def h_issue(j):
        fb = ST2[j % 2] + 16
        for b in range(4):
            a(f"buffer_load_dwordx4 v[{fb+4*b}:{fb+4*b+3}], v5, {WS}, s{80+b} offen offset:{1024*(j%4)} sc1")
            if j % 4 == 3:
                a(f"s_add_u32 s{80+b}, s{80+b}, 4096")
        vm.issue(f"H{j}", 4)
    w_issue(0)
    w_issue(1)
    cnt_addr(a, 76, S_TT, 1, CNT_B)
    a("v_mov_b32 v10, s76")
    poll(a, 10, 16, 11)
    stamp(a, 25)
    vm.ops = []
    h_issue(0)
    h_issue(1)
    for j in range(7):
        vm.wait(a, f"H{j}")
        fb = ST2[j % 2]
        for aa in range(4):
            for b in range(4):
                r = ACC2 + (aa * 4 + b) * 4
                cc = "0" if j == 0 else f"v[{r}:{r+3}]"
                a(f"v_mfma_f32_16x16x32_bf16 v[{r}:{r+3}], v[{fb+4*aa}:{fb+4*aa+3}], v[{fb+16+4*b}:{fb+16+4*b+3}], {cc}")
        if j + 2 < 7:
            w_issue(j + 2)
            h_issue(j + 2)
        if j == 3:
            a(f"""
            s_lshr_b32 s76, s3, 1
            s_lshl_b32 s77, s3, 1
            s_and_b32 s77, s77, 3
            s_lshl_b32 s78, s{S_TT}, 6
            s_lshl_b32 s79, s77, 4
            s_add_u32 s78, s78, s79
            s_lshl_b32 s78, s78, 10
            s_lshl_b32 s79, s{S_DD}, 7
            s_add_u32 s78, s78, s79
            s_lshl_b32 s79, s76, 5
            s_add_u32 s78, s78, s79
            s_add_u32 s79, s78, 16384
            v_lshlrev_b32 v9, 10, v2
            v_lshl_add_u32 v9, v3, 3, v9
            buffer_load_dwordx2 v[10:11], v9, s[{SRD_X}:{SRD_X+3}], s78 offen
            buffer_load_dwordx2 v[12:13], v9, s[{SRD_X}:{SRD_X+3}], s79 offen
            s_lshl_b32 s86, s{S_DD}, 8
            s_add_u32 s86, s86, {CNT_C * 256}
            v_mov_b32 v20, s86
            buffer_load_dword v21, v20, {WS}, 0 offen sc1
            """)
            vm.issue("misc", 3)
    a(f"""
    s_waitcnt vmcnt(0)
    v_cmp_gt_u32 vcc, 32, v21
    s_cbranch_vccz LwaitC_ok2
    """)
    poll(a, 20, 32, 21)
    a(f"""
LwaitC_ok2:
    v_lshrrev_b32 v8, 4, v0
    v_and_b32 v14, 15, v0
    v_lshlrev_b32 v15, 12, v8
    v_lshl_add_u32 v15, v14, 3, v15
    s_lshl_b32 s80, s{S_DD}, 18
    s_lshl_b32 s81, s{S_TT}, 7
    s_add_u32 s80, s80, s81
    s_add_u32 s80, s80, {S_OFF}
    s_add_u32 s81, s80, {32*4096}
    buffer_load_dwordx2 v[16:17], v15, {WS}, s80 offen sc1
    buffer_load_dwordx2 v[18:19], v15, {WS}, s81 offen sc1
    v_mul_u32_u24 v15, {SROW}, v8
    v_lshl_add_u32 v15, v14, 3, v15
    v_add_u32 v15, {STILE}, v15
    s_lshl_b32 s80, s3, 14
    s_add_u32 s80, s80, {G2P}
    v_add_u32 v14, s80, v5
    """)
    for i in range(16):
        a(f"ds_write_b128 v14, v[{ACC2+4*i}:{ACC2+4*i+3}] offset:{1024*i}")


def final(a):
    a(f"""
    s_waitcnt vmcnt(0)
    ds_write_b64 v15, v[16:17]
    ds_write_b64 v15, v[18:19] offset:{32*SROW}
    """)
    lbar(a, 8)
    a(f"""
    s_lshl_b32 s80, s3, 11
    s_add_u32 s80, s80, {G2P}
    v_add_u32 v20, s80, v5
    v_add_u32 v19, 65536, v20
    """)
    for i in range(2):
        for kq in range(8):
            r = 88 + (i * 8 + kq) * 4
            a(f"ds_read_b128 v[{r}:{r+3}], v{20 if kq < 4 else 19} offset:{(kq%4)*16384 + i*1024}")
    a(f"""
    v_lshlrev_b32 v21, 2, v3
    s_lshl_b32 s80, s76, 4
    v_add_u32 v21, s80, v21
    v_mul_u32_u24 v21, {SROW}, v21
    v_lshl_add_u32 v21, v2, 1, v21
    s_lshl_b32 s80, s77, 5
    s_add_u32 s80, s80, {STILE}
    v_add_u32 v21, s80, v21
    """)
    for i in range(2):
        for e in range(4):
            a(f"ds_read_u16 v{32+4*i+e}, v21 offset:{e*SROW + 32*i}")
    a(f"s_mov_b32 s82, {NLOG2E}\n s_waitcnt lgkmcnt(0)")
    for i in range(2):
        b0 = 88 + i * 32
        for e in range(4):
            a(f"""
            v_add_f32 v{b0+e}, v{b0+e}, v{b0+4+e}
            v_add_f32 v{b0+8+e}, v{b0+8+e}, v{b0+12+e}
            v_add_f32 v{b0+16+e}, v{b0+16+e}, v{b0+20+e}
            v_add_f32 v{b0+24+e}, v{b0+24+e}, v{b0+28+e}
            v_add_f32 v{b0+e}, v{b0+e}, v{b0+8+e}
            v_add_f32 v{b0+16+e}, v{b0+16+e}, v{b0+24+e}
            v_add_f32 v{b0+e}, v{b0+e}, v{b0+16+e}
            """)
        for pr in range(2):
            o0, o1 = b0 + 2 * pr, b0 + 2 * pr + 1
            s0, s1 = 32 + 4 * i + 2 * pr, 32 + 4 * i + 2 * pr + 1
            xx = 10 + 2 * i + pr
            a(f"""
            v_cvt_pk_bf16_f32 v22, v{o0}, v{o1}
            v_lshlrev_b32 v23, 16, v22
            v_and_b32 v24, 0xffff0000, v22
            v_mul_f32 v25, s82, v23
            v_mul_f32 v26, s82, v24
            v_exp_f32 v25, v25
            v_exp_f32 v26, v26
            v_lshlrev_b32 v{s0}, 16, v{s0}
            v_lshlrev_b32 v{s1}, 16, v{s1}
            v_add_f32 v25, 1.0, v25
            v_add_f32 v26, 1.0, v26
            v_rcp_f32 v25, v25
            v_rcp_f32 v26, v26
            s_nop 0
            v_mul_f32 v25, v25, v23
            v_mul_f32 v26, v26, v24
            v_cvt_pk_bf16_f32 v22, v25, v26
            v_lshlrev_b32 v23, 16, v22
            v_and_b32 v24, 0xffff0000, v22
            v_mul_f32 v23, v23, v{s0}
            v_mul_f32 v24, v24, v{s1}
            v_cvt_pk_bf16_f32 v22, v23, v24
            v_lshlrev_b32 v23, 16, v22
            v_and_b32 v24, 0xffff0000, v22
            v_lshlrev_b32 v25, 16, v{xx}
            v_and_b32 v26, 0xffff0000, v{xx}
            v_add_f32 v23, v23, v25
            v_add_f32 v24, v24, v26
            v_cvt_pk_bf16_f32 v{28+2*i+pr}, v23, v24
            """)
        a(f"buffer_store_dwordx2 v[{28+2*i}:{29+2*i}], v9, s[{SRD_OUT}:{SRD_OUT+3}], s{78+i} offen")


def gemm_path(a):
    vm = VM()
    srd(a, SRD_X, 0, 2048 * 512 * 2)
    a(f"buffer_load_dwordx4 v[10:13], v5, s[{SRD_X}:{SRD_X+3}], s87 offen")
    vm.issue("x")
    srd(a, SRD_DBG, 14, 256)
    stamp(a, 0)
    a(f"""
    s_cmp_lg_u32 s2, 0
    s_cbranch_scc1 Linit_skip
    s_cmp_lg_u32 s3, 0
    s_cbranch_scc1 Linit_skip
    v_lshlrev_b32 v6, 8, v1
    v_mov_b32 v7, 0
    buffer_store_dword v7, v6, {WS}, 0 offen sc1
    s_waitcnt vmcnt(0)
    v_mov_b32 v6, 1
    s_mov_b64 exec, 1
    buffer_store_dword v6, v7, s[{SRD_DBG}:{SRD_DBG+3}], 0 offen sc1
    s_mov_b64 exec, -1
Linit_skip:
    """)
    srd(a, SRD_WG, 10, 512 * 1792 * 2)
    srd(a, SRD_WU, 11, 512 * 1792 * 2)
    srd(a, SRD_OUT, 13, 2048 * 512 * 2)
    a("s_barrier")
    gemm1_setup(a)
    stamp(a, 1)
    ln(a, vm)
    stamp(a, 2)
    vm.wait(a, "lnst")
    lbar(a, 8)
    def sigA(a):
        L = newlab("Lsa")
        a(f"""
        v_readfirstlane_b32 s76, v8
        s_cmp_lg_u32 s76, 0
        s_cbranch_scc1 {L}
        v_mov_b32 v10, 0
        """)
        poll(a, 10, 1, 11, SRD_DBG)
        a(f"{L}:")
        cnt_addr(a, 76, 2, 4, CNT_A)
        atomic_inc(a, 76, 10, 11)
    wave_is(a, 0, sigA)
    stamp(a, 3)
    dma_block(a, vm, 0)
    dma_block(a, vm, 1)
    dma_block(a, vm, 2)
    stamp(a, 4)
    def waitA(a):
        cnt_addr(a, 76, 4, 0, CNT_A)
        a("v_mov_b32 v10, s76")
        poll(a, 10, 16, 11)
    waitA(a)
    stamp(a, 5)
    gemm1(a, vm)
    stamp(a, 20)
    a("s_waitcnt vmcnt(0)")
    lbar(a, 8)
    def sigB(a):
        cnt_addr(a, 76, 4, 0, CNT_B)
        atomic_inc(a, 76, 10, 11)
    wave_is(a, 0, sigB)
    stamp(a, 21)
    gemm2(a)
    stamp(a, 27)
    final(a)
    stamp(a, 30)
    a("s_waitcnt vmcnt(0)")
    stamp(a, 31)
    stamp_flush(a)
    a("s_endpgm")


def T(x): return x - 8


def cmul(a, R, X, Y, Tm):
    a(f"""
    v_pk_mul_f32 v[{Tm}:{Tm+1}], v[{X}:{X+1}], v[{Y}:{Y+1}] op_sel:[0,0] op_sel_hi:[1,0]
    v_pk_fma_f32 v[{R}:{R+1}], v[{X}:{X+1}], v[{Y}:{Y+1}], v[{Tm}:{Tm+1}] op_sel:[1,1,0] op_sel_hi:[0,1,1] neg_lo:[1,0,0]
    """)


def direct(a, R, s_l, A2, WV, t0):
    a(f"""
    v_mul_f32 v{t0}, s{s_l}, v{A2}
    v_mul_f32 v{t0+1}, s{s_l}, v{WV}
    v_exp_f32 v{t0}, v{t0}
    v_fract_f32 v{t0+1}, v{t0+1}
    v_cos_f32 v{t0+2}, v{t0+1}
    v_sin_f32 v{t0+3}, v{t0+1}
    v_mul_f32 v{R}, v{t0}, v{t0+2}
    v_mul_f32 v{R+1}, v{t0}, v{t0+3}
    """)


def kgen_common(a, c):
    pb = 48 + 6 * c
    AR, AI, BR, BI, CR, CI = range(pb, pb + 6)
    t = T
    a(f"""
    {"s_lshl_b32 s68, s74, 16" if c == 0 else "s_and_b32 s68, s74, 0xffff0000"}
    v_mov_b32 v{t(72)}, s68
    v_mul_f32 v{t(72)}, {LOG2E}, v{t(72)}
    v_exp_f32 v{t(72)}, v{t(72)}
    s_nop 0
    v_cvt_pk_bf16_f32 v{t(72)}, v{t(72)}, v{t(72)}
    v_lshlrev_b32 v{t(72)}, 16, v{t(72)}
    v_lshlrev_b32 v{t(74)}, 16, v{BR}
    v_and_b32 v{t(75)}, 0xffff0000, v{BR}
    v_lshlrev_b32 v{t(76)}, 16, v{BI}
    v_and_b32 v{t(77)}, 0xffff0000, v{BI}
    v_lshlrev_b32 v{t(78)}, 16, v{CR}
    v_and_b32 v{t(79)}, 0xffff0000, v{CR}
    v_lshlrev_b32 v{t(80)}, 16, v{CI}
    v_and_b32 v{t(81)}, 0xffff0000, v{CI}
    v_mul_f32 v{t(74)}, v{t(72)}, v{t(74)}
    v_mul_f32 v{t(75)}, v{t(72)}, v{t(75)}
    v_mul_f32 v{t(76)}, v{t(72)}, v{t(76)}
    v_mul_f32 v{t(77)}, v{t(72)}, v{t(77)}
    v_mul_f32 v{t(82)}, v{t(78)}, v{t(74)}
    v_mul_f32 v{t(83)}, v{t(78)}, v{t(76)}
    v_mul_f32 v{t(84)}, v{t(79)}, v{t(75)}
    v_mul_f32 v{t(85)}, v{t(79)}, v{t(77)}
    v_fma_f32 v{t(82)}, -v{t(80)}, v{t(76)}, v{t(82)}
    v_fma_f32 v{t(83)}, v{t(80)}, v{t(74)}, v{t(83)}
    v_fma_f32 v{t(84)}, -v{t(81)}, v{t(77)}, v{t(84)}
    v_fma_f32 v{t(85)}, v{t(81)}, v{t(75)}, v{t(85)}
    v_max3_f32 v{t(86)}, abs(v{t(82)}), abs(v{t(83)}), abs(v{t(84)})
    v_max_f32 v{t(86)}, abs(v{t(85)}), v{t(86)}
    """)
    allreduce(a, t(86), t(87), "v_max_f32")
    a(f"""
    v_lshrrev_b32 v{t(86)}, 23, v{t(86)}
    v_max_u32 v{t(86)}, 8, v{t(86)}
    v_min_u32 v{t(86)}, 250, v{t(86)}
    v_sub_u32 v{t(87)}, 261, v{t(86)}
    v_lshlrev_b32 v{t(87)}, 23, v{t(87)}
    v_subrev_u32 v{t(86)}, 7, v{t(86)}
    v_lshlrev_b32 v{t(86)}, 23, v{t(86)}
    v_readfirstlane_b32 s{S_ISC+c}, v{t(86)}
    v_cndmask_b32 v{t(82)}, v{t(82)}, v{t(84)}, s[84:85]
    v_cndmask_b32 v{t(83)}, v{t(83)}, v{t(85)}, s[84:85]
    v_mul_f32 v{t(82)}, v{t(82)}, v{t(87)}
    v_mul_f32 v{t(83)}, v{t(83)}, v{t(87)}
    v_lshrrev_b32 v{t(74)}, s77, v{AR}
    v_lshlrev_b32 v{t(74)}, 16, v{t(74)}
    v_lshrrev_b32 v{t(75)}, s77, v{AI}
    v_lshlrev_b32 v{t(75)}, 16, v{t(75)}
    v_mul_f32 v{t(74)}, v{t(72)}, v{t(74)}
    v_mul_f32 v{t(75)}, v{t(72)}, v{t(75)}
    v_mul_f32 v{t(74)}, {LOG2E}, v{t(74)}
    v_mul_f32 v{t(75)}, {INV2PI}, v{t(75)}
    """)


def kgen_tables(a, c):
    t = T
    L = newlab("Lkt")
    a(f"""
    s_lshr_b32 s78, s{S_SW}, 1
    s_lshl_b32 s78, s78, 1
    s_add_u32 s63, s78, 2
{L}:
    s_mov_b32 s79, 0
    s_mov_b32 s80, {F32(16.0)}
    s_mov_b32 s81, 0
    s_mov_b32 s82, 1.0
    s_cmp_eq_u32 s78, 1
    s_cselect_b32 s79, {F32(256.0)}, s79
    s_cselect_b32 s81, {F32(8.0)}, s81
    s_cmp_eq_u32 s78, 2
    s_cselect_b32 s79, {F32(512.0)}, s79
    s_cselect_b32 s80, {F32(32.0)}, s80
    s_cselect_b32 s81, {F32(16.0)}, s81
    s_cselect_b32 s82, 4.0, s82
    s_cmp_eq_u32 s78, 3
    s_cselect_b32 s79, {F32(1024.0)}, s79
    s_cselect_b32 s80, {F32(64.0)}, s80
    s_cselect_b32 s81, {F32(32.0)}, s81
    s_cselect_b32 s82, {F32(8.0)}, s82
    s_lshl_b32 s86, s76, 8
    s_mul_i32 s87, s78, {8*TROW}
    s_add_u32 s86, s86, {TAB}
    s_add_u32 s87, s87, s86
    s_mul_i32 s88, s78, {16*TROW}
    s_add_u32 s88, s88, s86
    s_add_u32 s88, s88, {32*TROW}
    v_lshl_add_u32 v30, v1, 2, s87
    v_lshl_add_u32 v31, v1, 2, s88
    """)
    A2, WV = t(74), t(75)
    direct(a, t(88), 81, A2, WV, t(100))
    direct(a, t(90), 82, A2, WV, t(104))
    direct(a, t(92), 79, A2, WV, t(108))
    direct(a, t(94), 80, A2, WV, t(112))
    cmul(a, t(96), t(82), t(92), t(116))
    cmul(a, t(98), t(96), t(94), t(118))
    cmul(a, t(92), t(94), t(94), t(120))
    def wr(j):
        a(f"""
        v_cvt_pk_f16_f32 v{t(122)}, v{t(88)}, v{t(89)}
        ds_write_b32 v30, v{t(122)} offset:{j*TROW}
        v_cvt_pk_f16_f32 v{t(123)}, v{t(96)}, -v{t(97)}
        ds_write_b32 v31, v{t(123)} offset:{2*j*TROW}
        v_cvt_pk_f16_f32 v{t(124)}, v{t(98)}, -v{t(99)}
        ds_write_b32 v31, v{t(124)} offset:{(2*j+1)*TROW}
        """)
    wr(0)
    for j in range(1, 8):
        cmul(a, t(88), t(88), t(90), t(116))
        cmul(a, t(96), t(96), t(92), t(118))
        cmul(a, t(98), t(98), t(92), t(120))
        wr(j)
    a(f"""
    s_add_u32 s78, s78, 1
    s_cmp_lt_u32 s78, s63
    s_cbranch_scc1 {L}
    """)


def kgen_mfma(a):
    L = newlab("Lkm")
    acc = 120
    fr = 128
    a(f"""
    s_lshl_b32 s62, s{S_SW}, 1
    s_add_u32 s63, s62, 2
{L}:
    s_mov_b32 s92, 0
    s_cmp_ge_u32 s62, 1
    s_cselect_b32 s92, 1, s92
    s_cmp_ge_u32 s62, 2
    s_cselect_b32 s92, 2, s92
    s_cmp_ge_u32 s62, 4
    s_cselect_b32 s92, 3, s92
    s_lshl_b32 s93, 128, s92
    s_cmp_eq_u32 s92, 0
    s_cselect_b32 s93, 0, s93
    s_lshl_b32 s94, 8, s92
    s_max_u32 s94, s94, 16
    s_lshl_b32 s95, 1, s92
    s_lshr_b32 s95, s95, 1
    s_sub_u32 s95, s62, s95
    s_lshl_b32 s95, s95, 4
    s_add_u32 s96, s93, s95
    v_add_u32 v32, s96, v2
    v_cvt_f32_u32 v32, v32
    v_cvt_pk_bf16_f32 v32, v32, v32
    v_lshlrev_b32 v32, 16, v32
    v_cvt_u32_f32 v32, v32
    v_subrev_u32 v32, s93, v32
    v_lshrrev_b32 v36, 2, v32
    v_add_u32 v36, 12, v36
    v_lshrrev_b32 v37, 3, v32
    v_add_u32 v37, 20, v37
    v_cmp_lt_u32 vcc, 32, v32
    v_cndmask_b32 v36, v36, v37, vcc
    v_cmp_gt_u32 vcc, 16, v32
    v_cndmask_b32 v32, v36, v32, vcc
    v_mul_u32_u24 v32, {TROW}, v32
    v_lshl_add_u32 v32, v3, 4, v32
    v_add_u32 v32, {TAB}, v32
    s_lshl_b32 s97, s92, 4
    s_add_u32 s97, s97, 32
    v_add_u32 v33, s97, v2
    v_mul_u32_u24 v33, {TROW}, v33
    v_lshl_add_u32 v33, v3, 4, v33
    v_add_u32 v33, {TAB}, v33
    v_mul_lo_u32 v34, v2, s94
    v_lshl_add_u32 v34, v3, 2, v34
    v_add_u32 v34, s96, v34
    v_add_u32 v34, 16, v34
    v_add_u32 v35, 4, v34
    v_lshrrev_b32 v35, 6, v35
    v_lshlrev_b32 v35, 3, v35
    v_lshl_add_u32 v35, v34, 1, v35
    v_add_u32 v35, {KCP}, v35
    v_lshrrev_b32 v36, 6, v34
    v_lshlrev_b32 v36, 3, v36
    v_lshl_add_u32 v34, v34, 1, v36
    v_add_u32 v34, {KCP}, v34
    """)
    for half in range(2):
        for s4 in range(4):
            s = 4 * half + s4
            r = fr + 8 * s4
            a(f"ds_read_b128 v[{r}:{r+3}], v32 offset:{64*s}")
            a(f"ds_read_b128 v[{r+4}:{r+7}], v33 offset:{64*s}")
        for s4 in range(4):
            s = 4 * half + s4
            r = fr + 8 * s4
            a(f"s_waitcnt lgkmcnt({6-2*s4})")
            cc = "0" if s == 0 else f"v[{acc}:{acc+3}]"
            a(f"v_mfma_f32_16x16x32_f16 v[{acc}:{acc+3}], v[{r}:{r+3}], v[{r+4}:{r+7}], {cc}")
    p0, p1, p2 = 124, 125, 126
    a(f"""
    v_cvt_pk_f16_f32 v{p0}, v{acc}, v{acc+1}
    v_cvt_pk_f16_f32 v{p1}, v{acc+2}, v{acc+3}
    v_alignbit_b32 v{p2}, v{p1}, v{p0}, 16
    ds_write_b64 v34, v[{p0}:{p1}]
    ds_write_b16 v34, v{p0} offset:{KCOPY + 2}
    ds_write_b32 v34, v{p2} offset:{KCOPY + 4}
    ds_write_b16_d16_hi v35, v{p1} offset:{KCOPY + 8}
    ds_write_b32 v34, v{p0} offset:{2*KCOPY + 4}
    ds_write_b32 v35, v{p1} offset:{2*KCOPY + 8}
    ds_write_b16 v34, v{p0} offset:{3*KCOPY + 6}
    ds_write_b32 v35, v{p2} offset:{3*KCOPY + 8}
    ds_write_b16_d16_hi v35, v{p1} offset:{3*KCOPY + 12}
    s_add_u32 s62, s62, 1
    s_cmp_lt_u32 s62, s63
    s_cbranch_scc1 {L}
    """)


def kpads(a):
    L = newlab("Lkz")
    a(f"""
    s_cmp_lg_u32 s3, 8
    s_cbranch_scc1 {L}
    v_mul_u32_u24 v36, {KCOPY}, v3
    v_lshl_add_u32 v36, v2, 1, v36
    v_add_u32 v36, {KCP}, v36
    v_mov_b32 v37, 0
    ds_write_b16 v36, v37
    v_cmp_gt_u32 vcc, v3, v2
    s_and_saveexec_b64 s[96:97], vcc
    ds_write_b16 v36, v37 offset:32
    s_mov_b64 exec, s[96:97]
{L}:
    """)


def xcol(a):
    a(f"""
    s_lshl_b32 s77, s{S_CP}, 1
    s_lshr_b32 s78, s77, 5
    s_lshl_b32 s78, s78, 10
    s_lshr_b32 s79, s77, 3
    s_and_b32 s79, s79, 3
    s_lshl_b32 s79, s79, 8
    s_add_u32 s78, s78, s79
    s_and_b32 s79, s77, 7
    s_lshl_b32 s79, s79, 1
    s_add_u32 s78, s78, s79
    s_mul_i32 s79, s{S_SW}, {32*XTS_}
    s_add_u32 s78, s78, s79
    s_add_u32 s78, s78, {XN_OFF}
    v_mul_u32_u24 v8, {XTS_}, v3
    v_lshl_add_u32 v8, v2, 4, v8
    """)
    for k in range(8):
        a(f"buffer_load_dword v{64+k}, v8, {WS}, s78 offen sc1")
        a(f"s_add_u32 s78, s78, {4*XTS_}")
    a(f"""
    s_lshl_b32 s77, s{S_SW}, 10
    s_sub_u32 s77, {XR + 4094 - 896}, s77
    v_lshlrev_b32 v8, 1, v1
    v_sub_u32 v8, s77, v8
    v_lshlrev_b32 v9, 2, v1
    v_add_u32 v9, {XR + 4096}, v9
    v_mov_b32 v10, 0
    ds_write_b32 v9, v10
    ds_write_b32 v9, v10 offset:256
    ds_write_b32 v9, v10 offset:{XRW}
    ds_write_b32 v9, v10 offset:{XRW + 256}
    s_waitcnt vmcnt(0)
    """)
    for k in range(8):
        a(f"""
        v_lshlrev_b32 v10, 16, v{64+k}
        v_and_b32 v11, 0xffff0000, v{64+k}
        v_cvt_pk_f16_f32 v10, v10, v11
        ds_write_b16 v8, v10 offset:{896 - 128*k}
        ds_write_b16_d16_hi v8, v10 offset:{896 - 128*k + XRW}
        """)


CACC, CFR = 128, 64


def conv(a, c):
    L = newlab("Lcv")
    for i in range(32):
        a(f"v_mov_b32 v{CACC+i}, 0")
    a(f"""
    s_lshl_b32 s62, s{S_SW}, 1
    s_add_u32 s63, s62, 2
{L}:
    v_sub_u32 v23, 3, v2
    v_and_b32 v23, 3, v23
    v_mul_u32_u24 v20, {KCOPY}, v23
    v_add_u32 v23, v23, v2
    v_lshlrev_b32 v24, 3, v3
    v_sub_u32 v23, v23, v24
    v_add_u32 v23, 25, v23
    v_lshl_add_u32 v20, v23, 1, v20
    s_lshl_b32 s87, s62, 6
    s_add_u32 s87, s87, {KCP}
    v_add_u32 v20, s87, v20
    s_lshl_b32 s88, s62, 5
    v_add_u32 v23, s88, v23
    v_add_u32 v24, 4, v23
    v_lshrrev_b32 v24, 6, v24
    v_lshl_add_u32 v21, v24, 3, v20
    v_add_u32 v21, 8, v21
    v_lshrrev_b32 v23, 6, v23
    v_lshl_add_u32 v20, v23, 3, v20
    v_lshlrev_b32 v22, 5, v2
    v_lshl_add_u32 v22, v3, 4, v22
    s_lshl_b32 s88, s62, 6
    s_add_u32 s88, s88, {XR + c * XRW + 528}
    v_sub_u32 v22, s88, v22
    """)
    fb = CFR
    for q in range(8):
        a(f"ds_read_b64 v[{fb+4*q}:{fb+4*q+1}], v20 offset:{544*q}")
        a(f"ds_read_b64 v[{fb+4*q+2}:{fb+4*q+3}], v21 offset:{544*q}")
        a(f"ds_read_b128 v[{fb+32+4*q}:{fb+32+4*q+3}], v22 offset:{64*(56-8*q)}")
    for lvl in range(8):
        a(f"s_waitcnt lgkmcnt({min(15, 3*(7-lvl))})")
        for i in range(8):
            for q in range(i + 1):
                p = i - q
                if max(p, q) == lvl:
                    a(f"v_mfma_f32_16x16x32_f16 v[{CACC+4*i}:{CACC+4*i+3}], v[{fb+4*q}:{fb+4*q+3}], v[{fb+32+4*p}:{fb+32+4*p+3}], v[{CACC+4*i}:{CACC+4*i+3}]")
    a(f"""
    s_add_u32 s62, s62, 1
    s_cmp_lt_u32 s62, s63
    s_nop 7
    s_cbranch_scc1 {L}
    s_nop 7
    s_lshl_b32 s84, s{S_SW}, 13
    s_add_u32 s84, s84, {CEX}
    v_add_u32 v8, s84, v5
    """)
    for i in range(8):
        a(f"ds_write_b128 v8, v[{CACC+4*i}:{CACC+3+4*i}] offset:{1024*i}")
    a(f"""
    s_lshl_b32 s84, s{S_SW}, 11
    s_add_u32 s84, s84, {CEX}
    v_add_u32 v9, s84, v5
    v_lshlrev_b32 v14, 4, v2
    v_lshl_add_u32 v14, v3, 2, v14
    s_lshl_b32 s86, s{S_SW}, 9
    v_add_u32 v14, s86, v14
    v_lshlrev_b32 v15, 1, v14
    v_sub_u32 v16, {XR + c * XRW + 4088 - 512}, v15
    ds_read_b64 v[24:25], v16 offset:512
    ds_read_b64 v[26:27], v16
    s_lshl_b32 s79, s{S_CP}, 1
    s_add_u32 s79, s79, {c}
    s_lshl_b32 s80, s79, 12
    s_add_u32 s88, s80, {S_OFF}
    {"s_lshl_b32 s86, s89, 16" if c == 0 else "s_and_b32 s86, s89, 0xffff0000"}
    """)
    lbar(a, 4)
    for j in range(2):
        for k in range(4):
            r = 64 + (j * 4 + k) * 4
            a(f"ds_read_b128 v[{r}:{r+3}], v9 offset:{k*8192 + j*1024}")
    a("s_waitcnt lgkmcnt(0)")
    for j in range(2):
        r = 64 + 16 * j
        for e in range(4):
            a(f"""
            v_add_f32 v{r+e}, v{r+e}, v{r+4+e}
            v_add_f32 v{r+8+e}, v{r+8+e}, v{r+12+e}
            v_add_f32 v{r+e}, v{r+e}, v{r+8+e}
            v_mul_f32 v{r+e}, s{S_ISC+c}, v{r+e}
            """)
        x0, x1 = 24 + 2 * j, 25 + 2 * j
        a(f"""
        v_cvt_f32_f16 v100, v{x1}
        v_lshrrev_b32 v101, 16, v{x1}
        v_cvt_f32_f16 v101, v101
        v_cvt_f32_f16 v102, v{x0}
        v_lshrrev_b32 v103, 16, v{x0}
        v_cvt_f32_f16 v103, v103
        v_mul_f32 v101, s86, v101
        v_mul_f32 v100, s86, v100
        v_mul_f32 v103, s86, v103
        v_mul_f32 v102, s86, v102
        v_cvt_pk_bf16_f32 v104, v101, v100
        v_cvt_pk_bf16_f32 v105, v103, v102
        v_cvt_pk_bf16_f32 v106, v{r}, v{r+1}
        v_cvt_pk_bf16_f32 v107, v{r+2}, v{r+3}
        v_lshlrev_b32 v100, 16, v104
        v_and_b32 v101, 0xffff0000, v104
        v_lshlrev_b32 v102, 16, v105
        v_and_b32 v103, 0xffff0000, v105
        v_lshlrev_b32 v108, 16, v106
        v_and_b32 v109, 0xffff0000, v106
        v_lshlrev_b32 v110, 16, v107
        v_and_b32 v111, 0xffff0000, v107
        v_add_f32 v100, v100, v108
        v_add_f32 v101, v101, v109
        v_add_f32 v102, v102, v110
        v_add_f32 v103, v103, v111
        v_cvt_pk_bf16_f32 v{112+2*j}, v100, v101
        v_cvt_pk_bf16_f32 v{113+2*j}, v102, v103
        buffer_store_dwordx2 v[{112+2*j}:{113+2*j}], v15, {WS}, s88 offen offset:{512*j} sc1
        """)


S_SW = 0


def ssm_path(a):
    a("Lssm:\n s_setprio 3")
    a(f"""
    s_sub_u32 s{S_SW}, s3, 8
    v_lshlrev_b32 v62, 2, v1
    v_mov_b32 v63, 0
    v_add_u32 v8, {MISC}, v62
    ds_write_b32 v8, v63
    s_waitcnt lgkmcnt(0)
    s_barrier
    """)
    srd(a, SRD_WG, 10, 512 * 1792 * 2)
    srd(a, SRD_WU, 11, 512 * 1792 * 2)
    a(f"""
    s_and_b32 s76, s2, 7
    s_lshr_b32 s77, s2, 3
    s_lshr_b32 s78, s76, 1
    s_lshl_b32 s78, s78, 2
    s_lshr_b32 s79, s77, 3
    s_add_u32 s78, s78, s79              ; nt
    s_mul_i32 s78, s78, 224
    s_and_b32 s79, s77, 7
    s_mul_i32 s79, s79, {64*3584}
    s_add_u32 s78, s78, s79
    v_mul_u32_u24 v9, 3584, v1
    s_cmp_ge_u32 s{S_SW}, 2
    s_cbranch_scc1 Lwarm_u
    buffer_load_dword v160, v9, s[{SRD_WG}:{SRD_WG+3}], s78 offen
    buffer_load_dword v161, v9, s[{SRD_WG}:{SRD_WG+3}], s78 offen offset:128
    buffer_load_dword v162, v9, s[{SRD_WG}:{SRD_WG+3}], s78 offen offset:220
    s_branch Lwarm_j
Lwarm_u:
    buffer_load_dword v160, v9, s[{SRD_WU}:{SRD_WU+3}], s78 offen
    buffer_load_dword v161, v9, s[{SRD_WU}:{SRD_WU+3}], s78 offen offset:128
    buffer_load_dword v162, v9, s[{SRD_WU}:{SRD_WU+3}], s78 offen offset:220
Lwarm_j:
    s_lshl_b32 s76, s{S_CP}, 9
    s_add_u32 s77, s76, 256
    s_lshl_b32 s78, s{S_CP}, 2
    """)
    for i in range(6):
        q = SRD_T0 if i % 2 == 0 else SRD_T1
        srd(a, q, 1 + i, 512 * 128 * 2)
        a(f"""
        buffer_load_dword v{48+i}, v62, s[{q}:{q+3}], s76 offen
        buffer_load_dword v{54+i}, v62, s[{q}:{q+3}], s77 offen
        """)
    srd(a, SRD_T0, 7, 1024)
    a(f"buffer_load_dword v60, v63, s[{SRD_T0}:{SRD_T0+3}], s78 offen")
    srd(a, SRD_T1, 8, 1024)
    a(f"buffer_load_dword v61, v63, s[{SRD_T1}:{SRD_T1+3}], s78 offen")
    srd(a, SRD_WD, 12, 1792 * 512 * 2)
    wdt(a, 0)
    wdt(a, 1)
    stamp(a, 0)
    a(f"""
    s_and_b32 s76, s{S_SW}, 1
    s_lshl_b32 s77, s76, 4
    s_cmp_eq_u32 s76, 1
    s_cselect_b64 s[84:85], -1, 0
    s_waitcnt vmcnt(16)
    v_readfirstlane_b32 s89, v61
    v_readfirstlane_b32 s74, v60
    """)
    for c in range(2):
        a(f"""
        s_and_b32 s76, s{S_SW}, 1
        s_lshl_b32 s77, s76, 4
        s_cmp_eq_u32 s76, 1
        s_cselect_b64 s[84:85], -1, 0
        """)
        kgen_common(a, c)
        kgen_tables(a, c)
        if c == 0:
            a("s_waitcnt vmcnt(0)")
            wdt_store(a, 0)
            wdt_store(a, 1)
        lbar(a, 4)
        stamp(a, 1 + 8 * c)
        kpads(a)
        kgen_mfma(a)
        stamp(a, 2 + 8 * c)
        if c == 0:
            a(f"v_lshlrev_b32 v10, 8, v2\n v_add_u32 v10, {CNT_A * 256}, v10")
            poll(a, 10, 16, 11)
            stamp(a, 3)
            xcol(a)
        lbar(a, 4)
        if c == 0:
            def sigW(a):
                cnt_addr(a, 76, 2, 4, CNT_W)
                atomic_inc(a, 76, 10, 11)
            wave_is(a, 8, sigW)
        stamp(a, 4 + 8 * c)
        conv(a, c)
        stamp(a, 5 + 8 * c)
        lbar(a, 4)
    a(f"""
    s_waitcnt vmcnt(0)
    v_mov_b32 v10, {MISC + 252}
    v_mov_b32 v11, 1
    s_mov_b64 exec, 1
    ds_add_rtn_u32 v12, v10, v11
    s_waitcnt lgkmcnt(0)
    v_readfirstlane_b32 s76, v12
    s_mov_b64 exec, -1
    s_cmp_lg_u32 s76, 3
    s_cbranch_scc1 LsigC_skip
    """)
    cnt_addr(a, 76, S_CP, 5, CNT_C)
    atomic_inc(a, 76, 10, 11)
    a("LsigC_skip:")
    stamp(a, 20)
    stamp_flush(a)


def build():
    a = Asm()
    prologue(a)
    gemm_path(a)
    ssm_path(a)
    a("Lexit:\n s_endpgm")
    a.finalize()
    txt = f"; @launch grid=(256,1,1) block=(768,1,1) lds={LDS_BYTES}\n"
    txt += '.amdgcn_target "amdgcn-amd-amdhsa--gfx950"\n.text\n'
    txt += f".globl {KNAME}\n.p2align 8\n.type {KNAME},@function\n" + a.text()
    txt += f""".section .rodata,"a"
.p2align 6
.amdhsa_kernel {KNAME}
  .amdhsa_next_free_vgpr 168
  .amdhsa_next_free_sgpr 102
  .amdhsa_accum_offset 168
  .amdhsa_group_segment_fixed_size 0
  .amdhsa_kernarg_size 128
  .amdhsa_user_sgpr_count 2
  .amdhsa_user_sgpr_kernarg_segment_ptr 1
  .amdhsa_system_sgpr_workgroup_id_x 1
.end_amdhsa_kernel
"""
    return txt


if __name__ == "__main__":
    for o in sys.argv[2:]:
        if o == "nostamp": STAMPS = False
    open(sys.argv[1], "w").write(build())
```

```python
import sys, struct
from dsl import Asm

KNAME = "recurrent_scan__ssm_conv_s4__glu_gated_glu__prompt_kernel"
STAMPS = True
DEBUG = False
XSC = " sc1"
GSC = " sc1"

CNT_A, CNT_B, CNT_C, CNT_W = 0, 16, 32, 40
XTS_ = 16640
XN_OFF = 1 << 20
XT_OFF = 4 << 20
WDT_OFF = 8 << 20
H_OFF = 16 << 20
S_OFF = 32 << 20
DBG_OFF = 64 << 20
STAMP_OFF = DBG_OFF + (8 << 20)

SLOT = 28672
NSLOT = 4
TAB = 2 * SLOT
TROW = 528
TAB_ROWS = 96
KCP = NSLOT * SLOT
KCOPY = 4416
KCH = 4 * KCOPY
MISC = KCP + 2 * KCH
XTS = KCP
XNS = KCP + 8192
XR = MISC + 256
LDS_BYTES = XR + 10240
XRW = 5120
CEX = 0
G2P = 0
STILE = 131072
SROW = 144

SRD_X, SRD_WS, SRD_WG, SRD_WU, SRD_OUT, SRD_DBG, SRD_WD, SRD_T0, SRD_T1 = 8, 12, 16, 20, 24, 28, 32, 36, 40
PTR = 44
def P(i): return PTR + 2 * i
S_ISC = 90
S_TT, S_DD = 64, 65

LOG2E = 0x3fb8aa3b
NLOG2E = 0xbfb8aa3b
INV2PI = 0x3e22f983
F32 = lambda x: hex(struct.unpack("<I", struct.pack("<f", x))[0])
WS = f"s[{SRD_WS}:{SRD_WS+3}]"


class VM:
    def __init__(self):
        self.ops = []
    def issue(self, tag, n=1):
        self.ops += [tag] * n
    def wait(self, a, tag):
        idx = max(i for i, t in enumerate(self.ops) if t == tag)
        n = len(self.ops) - 1 - idx
        a(f"s_waitcnt vmcnt({min(n, 63)})")
    def copy(self):
        v = VM(); v.ops = list(self.ops); return v


def merged(a, main_fn, side_fn, every, start=0):
    m = Asm(); main_fn(m)
    sd = Asm(); side_fn(sd)
    groups, cur = [], []
    for it in sd.items:
        if isinstance(it, str) and it == "; GROUP":
            groups.append(cur); cur = []
        else:
            cur.append(it)
    if cur:
        groups.append(cur)
    n = 0
    for it in m.items:
        a.items.append(it)
        if isinstance(it, str):
            continue
        n += 1
        if n >= start and (n - start) % every == 0 and groups:
            a.items += groups.pop(0)
    for g in groups:
        a.items += g


def srd(a, q, ptr_idx, nbytes):
    a(f"""
    s_mov_b32 s{q}, s{P(ptr_idx)}
    s_and_b32 s{q+1}, s{P(ptr_idx)+1}, 0xffff
    s_mov_b32 s{q+2}, {nbytes}
    s_mov_b32 s{q+3}, 0x00020000
    """)


def stamp(a, idx):
    if not STAMPS:
        return
    a(f"""
    s_memtime s[100:101]
    s_waitcnt lgkmcnt(0)
    v_writelane_b32 v4, s100, {idx}
    """)


def stamp_flush(a):
    if not STAMPS:
        return
    a(f"""
    s_lshl_b32 s76, s2, 3
    s_add_u32 s76, s76, s3
    s_lshl_b32 s76, s76, 8
    s_add_u32 s76, s76, {STAMP_OFF}
    v_lshlrev_b32 v6, 2, v1
    buffer_store_dword v4, v6, {WS}, s76 offen
    """)


def allreduce(a, v, tmp, op="v_add_f32"):
    a(f"""
    {op}_dpp v{v}, v{v}, v{v} quad_perm:[1,0,3,2] row_mask:0xf bank_mask:0xf
    {op}_dpp v{v}, v{v}, v{v} quad_perm:[2,3,0,1] row_mask:0xf bank_mask:0xf
    {op}_dpp v{v}, v{v}, v{v} row_half_mirror row_mask:0xf bank_mask:0xf
    {op}_dpp v{v}, v{v}, v{v} row_mirror row_mask:0xf bank_mask:0xf
    v_mov_b32 v{tmp}, v{v}
    v_permlane16_swap_b32 v{v}, v{tmp}
    {op} v{v}, v{v}, v{tmp}
    v_mov_b32 v{tmp}, v{v}
    v_permlane32_swap_b32 v{v}, v{tmp}
    {op} v{v}, v{v}, v{tmp}
    """)


def bf16r(a, dst, src):
    a(f"v_cvt_pk_bf16_f32 v{dst}, v{src}, v{src}\n v_lshlrev_b32 v{dst}, 16, v{dst}")


def poll(a, vreg, target, tmpv, label, srdq=SRD_WS):
    a(f"""
    s_mov_b32 s99, 0
{label}:
    buffer_load_dword v{tmpv}, v{vreg}, s[{srdq}:{srdq+3}], 0 offen sc1
    s_waitcnt vmcnt(0)
    v_cmp_gt_u32 vcc, {target}, v{tmpv}
    s_cbranch_vccz {label}_ok
    s_sleep 1
    s_add_u32 s99, s99, 1
    s_cmp_lt_u32 s99, 0x8000
    s_cbranch_scc1 {label}
{label}_ok:
    """)


def atomic_inc(a, s_off, v1, v2):
    a(f"""
    v_mov_b32 v{v1}, s{s_off}
    v_mov_b32 v{v2}, 1
    s_mov_b64 exec, 1
    buffer_atomic_add v{v2}, v{v1}, {WS}, 0 offen sc1
    s_mov_b64 exec, -1
    """)


def wave0(a, label, fn):
    a(f"s_cmp_lg_u32 s3, 0\n s_cbranch_scc1 {label}")
    fn(a)
    a(f"{label}:")


def par_loads(a, vm, c):
    a(f"""
    v_lshlrev_b32 v62, 2, v1
    v_mov_b32 v63, 0
    s_lshl_b32 s76, s67, 9
    s_add_u32 s76, s76, {256*c}
    s_lshl_b32 s78, s67, 2
    """)
    for i in range(6):
        q = SRD_T0 if i % 2 == 0 else SRD_T1
        srd(a, q, 1 + i, 512 * 128 * 2)
        a(f"buffer_load_dword v{48+i}, v62, s[{q}:{q+3}], s76 offen")
    vm.issue("par", 6)


def prologue(a, vm):
    a(f"""
{KNAME}:
    s_cmp_ge_u32 s2, 256
    s_cbranch_scc1 Lexit
    s_load_dwordx16 s[44:59], s[0:1], 0
    s_load_dwordx16 s[60:75], s[0:1], 64
    v_and_b32 v1, 63, v0
    v_lshrrev_b32 v4, 6, v0
    v_and_b32 v2, 15, v1
    v_lshrrev_b32 v3, 4, v1
    v_readfirstlane_b32 s3, v4
    v_lshlrev_b32 v5, 4, v1
    s_lshl_b32 s86, s2, 3
    s_add_u32 s86, s86, s3
    s_lshl_b32 s87, s86, 10
    s_waitcnt lgkmcnt(0)
    """)
    srd(a, SRD_X, 0, 2048 * 512 * 2)
    a(f"buffer_load_dwordx4 v[10:13], v5, s[{SRD_X}:{SRD_X+3}], s87 offen")
    vm.issue("x")
    srd(a, SRD_WS, 15, 256 << 20)
    srd(a, SRD_DBG, 14, 256)
    a("v_mov_b32 v4, 0")
    stamp(a, 0)
    a(f"""
    s_cmp_lg_u32 s2, 0
    s_cbranch_scc1 Linit_skip
    s_cmp_lg_u32 s3, 0
    s_cbranch_scc1 Linit_skip
    v_lshlrev_b32 v6, 8, v1
    v_mov_b32 v7, 0
    buffer_store_dword v7, v6, {WS}, 0 offen sc1
    s_waitcnt vmcnt(0)
    v_mov_b32 v6, 1
    s_mov_b64 exec, 1
    buffer_store_dword v6, v7, s[{SRD_DBG}:{SRD_DBG+3}], 0 offen sc1
    s_mov_b64 exec, -1
Linit_skip:
    """)
    srd(a, SRD_WG, 10, 512 * 1792 * 2)
    srd(a, SRD_WU, 11, 512 * 1792 * 2)
    srd(a, SRD_OUT, 13, 2048 * 512 * 2)
    srd(a, SRD_WD, 12, 1792 * 512 * 2)
    a(f"""
    s_and_b32 s67, s2, 7
    s_lshl_b32 s67, s67, 5
    s_lshr_b32 s76, s2, 3
    s_add_u32 s67, s67, s76
    v_mov_b32 v63, 0
    """)
    par_loads(a, vm, 0)
    srd(a, SRD_T0, 7, 1024)
    a(f"buffer_load_dword v60, v63, s[{SRD_T0}:{SRD_T0+3}], s78 offen")
    srd(a, SRD_T1, 8, 1024)
    a(f"buffer_load_dword v61, v63, s[{SRD_T1}:{SRD_T1+3}], s78 offen")
    vm.issue("par", 2)
    a("s_waitcnt vmcnt(63)")
    a(f"""
    v_mov_b32 v200, {MISC}
    v_mov_b32 v201, 0
    v_lshl_add_u32 v200, v2, 2, v200
    ds_write_b32 v200, v201
    """)


def warmup(a, vm):
    a(f"""
    v_mov_b32 v63, 0
    s_and_b32 s76, s2, 7
    s_lshr_b32 s77, s2, 3
    s_lshr_b32 s78, s76, 1
    s_lshl_b32 s78, s78, 2
    s_lshr_b32 s79, s77, 3
    s_add_u32 s78, s78, s79
    s_mul_i32 s78, s78, 224
    s_and_b32 s79, s77, 7
    s_mul_i32 s79, s79, {64*3584}
    s_add_u32 s78, s78, s79
    v_mul_u32_u24 v251, 3584, v1
    s_mov_b32 s79, 0
    s_cmp_eq_u32 s3, 1
    s_cselect_b32 s79, 128, s79
    s_cmp_eq_u32 s3, 2
    s_cselect_b32 s79, 220, s79
    s_cmp_eq_u32 s3, 4
    s_cselect_b32 s79, 128, s79
    s_cmp_eq_u32 s3, 5
    s_cselect_b32 s79, 220, s79
    s_add_u32 s78, s78, s79
    s_lshl_b32 s76, s2, 12
    s_cmp_ge_u32 s3, 7
    s_cbranch_scc1 Lt7
    s_cmp_ge_u32 s3, 6
    s_cbranch_scc1 Lt6
    s_cmp_ge_u32 s3, 3
    s_cbranch_scc1 Lt3
    buffer_load_dword v250, v251, s[{SRD_WG}:{SRD_WG+3}], s78 offen
    s_branch Ltj
Lt3:
    buffer_load_dword v250, v251, s[{SRD_WU}:{SRD_WU+3}], s78 offen
    s_branch Ltj
Lt6:
    buffer_load_dword v250, v63, s[{SRD_WD}:{SRD_WD+3}], s76 offen
    s_branch Ltj
Lt7:
    buffer_load_dword v250, v63, s[{SRD_OUT}:{SRD_OUT+3}], s76 offen
Ltj:
    """)
    vm.issue("tlb")


def ln(a, vm):
    f = 20
    vm.wait(a, "x")
    warmup(a, vm)
    for i in range(4):
        a(f"v_lshlrev_b32 v{f+2*i}, 16, v{10+i}\n v_and_b32 v{f+2*i+1}, 0xffff0000, v{10+i}")
    a(f"""
    v_add_f32 v28, v{f}, v{f+1}
    v_add_f32 v29, v{f+2}, v{f+3}
    v_add_f32 v30, v{f+4}, v{f+5}
    v_add_f32 v31, v{f+6}, v{f+7}
    v_add_f32 v28, v28, v29
    v_add_f32 v30, v30, v31
    v_add_f32 v28, v28, v30
    """)
    allreduce(a, 28, 29)
    a("v_mul_f32 v28, 0x3b000000, v28")
    a(f"v_sub_f32 v30, v{f}, v28\n v_mul_f32 v31, v30, v30")
    for i in range(1, 8):
        a(f"v_sub_f32 v30, v{f+i}, v28\n v_fmac_f32 v31, v30, v30")
    allreduce(a, 31, 29)
    a("v_mul_f32 v31, 0x3b000000, v31")
    bf16r(a, 28, 28)
    bf16r(a, 31, 31)
    a("v_add_f32 v31, 0x3727c5ac, v31")
    bf16r(a, 31, 31)
    a("v_sqrt_f32 v31, v31")
    bf16r(a, 31, 31)
    a("v_rcp_f32 v32, v31")
    for i in range(8):
        a(f"v_sub_f32 v{f+i}, v{f+i}, v28")
    for i in range(4):
        a(f"""
        v_cvt_pk_bf16_f32 v33, v{f+2*i}, v{f+2*i+1}
        v_lshlrev_b32 v{f+2*i}, 16, v33
        v_and_b32 v{f+2*i+1}, 0xffff0000, v33
        """)
    for i in range(8):
        a(f"""
        v_mul_f32 v33, v{f+i}, v32
        v_fma_f32 v34, -v33, v31, v{f+i}
        v_fma_f32 v{f+i}, v34, v32, v33
        """)
    for i in range(4):
        a(f"v_cvt_pk_bf16_f32 v{10+i}, v{f+2*i}, v{f+2*i+1}")
    a(f"""
    s_mul_i32 s91, s3, 1040
    s_add_u32 s91, s91, {XNS}
    v_add_u32 v9, s91, v5
    ds_write_b128 v9, v[10:13]
    v_and_b32 v6, 7, v0
    v_lshrrev_b32 v9, 3, v0
    v_mul_u32_u24 v33, 1040, v6
    v_lshl_add_u32 v33, v9, 4, v33
    v_add_u32 v33, {XNS}, v33
    v_lshlrev_b32 v34, 8, v9
    v_lshl_add_u32 v34, v6, 4, v34
    s_lshr_b32 s91, s2, 1
    s_mul_i32 s91, s91, {XTS_}
    s_and_b32 s92, s2, 1
    s_lshl_b32 s92, s92, 7
    s_add_u32 s91, s91, s92
    s_add_u32 s91, s91, {XN_OFF}
    s_waitcnt lgkmcnt(0)
    s_barrier
    ds_read_b128 v[40:43], v33
    s_waitcnt lgkmcnt(0)
    buffer_store_dwordx4 v[40:43], v34, {WS}, s91 offen sc1
    v_mov_b32 v7, 0
    buffer_load_dword v8, v7, s[{SRD_DBG}:{SRD_DBG+3}], 0 offen sc1
    """)
    vm.issue("lnst", 2)


def wdt_issue(a, vm):
    t = 86
    a(f"""
    s_min_u32 s88, s3, 6
    s_mul_i32 s{t+3}, s2, 7
    s_add_u32 s88, s88, s{t+3}
    s_lshr_b32 s{t+3}, s88, 5              ; J
    s_and_b32 s{t+4}, s88, 31              ; Dt
    s_mul_i32 s{t+5}, s{t+3}, 37
    s_lshr_b32 s{t+5}, s{t+5}, 8
    s_mul_i32 s{t+6}, s{t+5}, 7
    s_sub_u32 s{t+6}, s{t+3}, s{t+6}
    s_mul_i32 s{t+5}, s{t+5}, 224
    s_lshl_b32 s{t+7}, s{t+6}, 5
    s_add_u32 s{t+5}, s{t+5}, s{t+7}
    s_cmp_ge_u32 s{t+6}, 3
    s_cselect_b32 s{t+7}, 16, 0
    s_add_u32 s{t+3}, s{t+5}, s{t+7}
    s_add_u32 s{t+7}, s{t+3}, 16
    s_sub_u32 s{t+8}, s{t+5}, 96
    s_add_u32 s{t+9}, s{t+5}, 16
    s_cmp_eq_u32 s{t+6}, 6
    s_cselect_b32 s{t+3}, s{t+8}, s{t+3}
    s_cselect_b32 s{t+7}, s{t+9}, s{t+7}
    s_lshl_b32 s{t+4}, s{t+4}, 5
    s_lshl_b32 s{t+3}, s{t+3}, 10
    s_lshl_b32 s{t+7}, s{t+7}, 10
    s_add_u32 s{t+3}, s{t+3}, s{t+4}
    s_add_u32 s{t+4}, s{t+7}, s{t+4}
    v_lshlrev_b32 v19, 12, v3
    v_lshl_add_u32 v19, v2, 1, v19
    """)
    a("s_mov_b32 s66, s88\n s_mov_b32 s62, s89\n s_mov_b32 s63, s90")


def wdt_loads(a, vm):
    for j in range(8):
        a(f"buffer_load_ushort v{184+j}, v19, s[{SRD_WD}:{SRD_WD+3}], s{62+(j//4)} offen offset:{1024*(j%4)}")
    vm.issue("wg", 8)


def wdt_store(a, vm):
    vm.wait(a, "wg")
    a(f"""
    v_lshl_or_b32 v12, v185, 16, v184
    v_lshl_or_b32 v13, v187, 16, v186
    v_lshl_or_b32 v14, v189, 16, v188
    v_lshl_or_b32 v15, v191, 16, v190
    s_lshl_b32 s66, s66, 10
    s_add_u32 s66, s66, {WDT_OFF}
    buffer_store_dwordx4 v[12:15], v5, {WS}, s66 offen sc1
    """)
    vm.issue("wst")


def gemm1_setup(a):
    a(f"""
    s_and_b32 s76, s2, 7
    s_lshr_b32 s77, s2, 3
    s_and_b32 s78, s76, 1
    s_lshl_b32 s78, s78, 3
    s_and_b32 s79, s77, 7
    s_add_u32 s4, s78, s79               ; mt
    s_lshr_b32 s78, s76, 1
    s_lshl_b32 s78, s78, 2
    s_lshr_b32 s79, s77, 3
    s_add_u32 s5, s78, s79               ; nt
    s_mul_i32 s6, s5, 224
    s_mul_i32 s7, s3, 896
    s_and_b32 s78, s3, 4
    s_and_b32 s79, s3, 1
    s_lshl_b32 s79, s79, 1
    s_or_b32 s78, s78, s79
    s_lshr_b32 s79, s3, 1
    s_and_b32 s79, s79, 1
    s_or_b32 s78, s78, s79
    s_lshl_b32 s78, s78, 2
    v_mul_u32_u24 v18, 147, v1
    v_lshrrev_b32 v18, 11, v18
    v_mul_u32_u24 v19, 14, v18
    v_sub_u32 v19, v1, v19
    v_add_u32 v18, s78, v18
    v_mul_u32_u24 v18, 3584, v18
    v_lshl_add_u32 v18, v19, 4, v18
    """)


def dma_block(a, vm, b):
    slot = (b % NSLOT) * SLOT
    for hf in range(2):
        for img in range(2):
            q = SRD_WG if img == 0 else SRD_WU
            a(f"""
            s_add_u32 s75, s6, {(64*b + 32*hf) * 3584}
            s_add_u32 m0, s7, {slot + hf*14336 + img*7168}
            s_mov_b32 exec_hi, 0x00ffffff
            buffer_load_dwordx4 v18, s[{q}:{q+3}], s75 offen lds
            s_mov_b32 exec_hi, -1
            """)
    vm.issue(f"D{b}", 4)


TOFF = [120]
def T(x): return x + TOFF[0]


def cmul(a, R, X, Y, Tm):
    a(f"""
    v_pk_mul_f32 v[{Tm}:{Tm+1}], v[{X}:{X+1}], v[{Y}:{Y+1}] op_sel:[0,0] op_sel_hi:[1,0]
    v_pk_fma_f32 v[{R}:{R+1}], v[{X}:{X+1}], v[{Y}:{Y+1}], v[{Tm}:{Tm+1}] op_sel:[1,1,0] op_sel_hi:[0,1,1] neg_lo:[1,0,0]
    """)


def direct(a, R, s_l, A2, WV, t0):
    a(f"""
    v_mul_f32 v{t0}, s{s_l}, v{A2}
    v_mul_f32 v{t0+1}, s{s_l}, v{WV}
    v_exp_f32 v{t0}, v{t0}
    v_fract_f32 v{t0+1}, v{t0+1}
    v_cos_f32 v{t0+2}, v{t0+1}
    v_sin_f32 v{t0+3}, v{t0+1}
    v_mul_f32 v{R}, v{t0}, v{t0+2}
    v_mul_f32 v{R+1}, v{t0}, v{t0+3}
    """)


def kgen_setup(a):
    a(f"""
    s_and_b32 s76, s3, 1
    s_lshl_b32 s77, s76, 4
    s_lshr_b32 s78, s3, 1
    s_mov_b32 s79, 0
    s_mov_b32 s80, {F32(16.0)}
    s_mov_b32 s81, 0
    s_mov_b32 s82, 1.0
    s_cmp_eq_u32 s78, 1
    s_cselect_b32 s79, {F32(256.0)}, s79
    s_cselect_b32 s81, {F32(8.0)}, s81
    s_cmp_eq_u32 s78, 2
    s_cselect_b32 s79, {F32(512.0)}, s79
    s_cselect_b32 s80, {F32(32.0)}, s80
    s_cselect_b32 s81, {F32(16.0)}, s81
    s_cselect_b32 s82, 4.0, s82
    s_cmp_eq_u32 s78, 3
    s_cselect_b32 s79, {F32(1024.0)}, s79
    s_cselect_b32 s80, {F32(64.0)}, s80
    s_cselect_b32 s81, {F32(32.0)}, s81
    s_cselect_b32 s82, {F32(8.0)}, s82
    s_cmp_eq_u32 s76, 1
    s_cselect_b64 s[84:85], -1, 0
    s_lshl_b32 s86, s76, 8
    s_mul_i32 s87, s78, {8*TROW}
    s_add_u32 s86, s86, {TAB}
    s_add_u32 s87, s87, s86
    s_mul_i32 s88, s78, {16*TROW}
    s_add_u32 s88, s88, s86
    s_add_u32 s88, s88, {32*TROW}
    v_lshl_add_u32 v30, v1, 2, s87
    v_lshl_add_u32 v31, v1, 2, s88
    s_mov_b32 s92, 0
    s_cmp_ge_u32 s3, 1
    s_cselect_b32 s92, 1, s92
    s_cmp_ge_u32 s3, 2
    s_cselect_b32 s92, 2, s92
    s_cmp_ge_u32 s3, 4
    s_cselect_b32 s92, 3, s92
    s_lshl_b32 s93, 128, s92
    s_cmp_eq_u32 s92, 0
    s_cselect_b32 s93, 0, s93
    s_lshl_b32 s94, 8, s92
    s_max_u32 s94, s94, 16
    s_lshl_b32 s95, 1, s92
    s_lshr_b32 s95, s95, 1
    s_sub_u32 s95, s3, s95
    s_lshl_b32 s95, s95, 4
    s_add_u32 s96, s93, s95
    v_add_u32 v32, s96, v2
    v_cvt_f32_u32 v32, v32
    v_cvt_pk_bf16_f32 v32, v32, v32
    v_lshlrev_b32 v32, 16, v32
    v_cvt_u32_f32 v32, v32
    v_subrev_u32 v32, s93, v32
    v_lshrrev_b32 v36, 2, v32
    v_add_u32 v36, 12, v36
    v_lshrrev_b32 v37, 3, v32
    v_add_u32 v37, 20, v37
    v_cmp_lt_u32 vcc, 32, v32
    v_cndmask_b32 v36, v36, v37, vcc
    v_cmp_gt_u32 vcc, 16, v32
    v_cndmask_b32 v32, v36, v32, vcc
    v_mul_u32_u24 v32, {TROW}, v32
    v_lshl_add_u32 v32, v3, 4, v32
    v_add_u32 v32, {TAB}, v32
    s_lshl_b32 s97, s92, 4
    s_add_u32 s97, s97, 32
    v_add_u32 v33, s97, v2
    v_mul_u32_u24 v33, {TROW}, v33
    v_lshl_add_u32 v33, v3, 4, v33
    v_add_u32 v33, {TAB}, v33
    v_mul_lo_u32 v34, v2, s94
    v_lshl_add_u32 v34, v3, 2, v34
    v_add_u32 v34, s96, v34
    v_add_u32 v34, 16, v34
    v_add_u32 v35, 4, v34
    v_lshrrev_b32 v35, 6, v35
    v_lshlrev_b32 v35, 3, v35
    v_lshl_add_u32 v35, v34, 1, v35
    v_add_u32 v35, {KCP}, v35
    v_lshrrev_b32 v36, 6, v34
    v_lshlrev_b32 v36, 3, v36
    v_lshl_add_u32 v34, v34, 1, v36
    v_add_u32 v34, {KCP}, v34
    """)


def kpads(a, c):
    a(f"""
    s_cmp_lg_u32 s3, 0
    s_cbranch_scc1 Lkz_skip{c}
    v_mul_u32_u24 v36, {KCOPY}, v3
    v_lshl_add_u32 v36, v2, 1, v36
    v_add_u32 v36, {KCP + c * KCH}, v36
    v_mov_b32 v37, 0
    ds_write_b16 v36, v37
    v_cmp_gt_u32 vcc, v3, v2
    s_and_saveexec_b64 s[96:97], vcc
    ds_write_b16 v36, v37 offset:32
    s_mov_b64 exec, s[96:97]
Lkz_skip{c}:
    """)


def kgen_tables(a, c):
    pb = 48
    AR, AI, BR, BI, CR, CI = range(pb, pb + 6)
    t = T
    a(f"""
    {"s_lshl_b32 s68, s74, 16" if c == 0 else "s_and_b32 s68, s74, 0xffff0000"}
    v_mov_b32 v{t(72)}, s68
    v_mul_f32 v{t(72)}, {LOG2E}, v{t(72)}
    v_exp_f32 v{t(72)}, v{t(72)}
    s_nop 0
    v_cvt_pk_bf16_f32 v{t(72)}, v{t(72)}, v{t(72)}
    v_lshlrev_b32 v{t(72)}, 16, v{t(72)}
    v_lshlrev_b32 v{t(74)}, 16, v{BR}
    v_and_b32 v{t(75)}, 0xffff0000, v{BR}
    v_lshlrev_b32 v{t(76)}, 16, v{BI}
    v_and_b32 v{t(77)}, 0xffff0000, v{BI}
    v_lshlrev_b32 v{t(78)}, 16, v{CR}
    v_and_b32 v{t(79)}, 0xffff0000, v{CR}
    v_lshlrev_b32 v{t(80)}, 16, v{CI}
    v_and_b32 v{t(81)}, 0xffff0000, v{CI}
    v_mul_f32 v{t(74)}, v{t(72)}, v{t(74)}
    v_mul_f32 v{t(75)}, v{t(72)}, v{t(75)}
    v_mul_f32 v{t(76)}, v{t(72)}, v{t(76)}
    v_mul_f32 v{t(77)}, v{t(72)}, v{t(77)}
    v_mul_f32 v{t(82)}, v{t(78)}, v{t(74)}
    v_mul_f32 v{t(83)}, v{t(78)}, v{t(76)}
    v_mul_f32 v{t(84)}, v{t(79)}, v{t(75)}
    v_mul_f32 v{t(85)}, v{t(79)}, v{t(77)}
    v_fma_f32 v{t(82)}, -v{t(80)}, v{t(76)}, v{t(82)}
    v_fma_f32 v{t(83)}, v{t(80)}, v{t(74)}, v{t(83)}
    v_fma_f32 v{t(84)}, -v{t(81)}, v{t(77)}, v{t(84)}
    v_fma_f32 v{t(85)}, v{t(81)}, v{t(75)}, v{t(85)}
    v_max3_f32 v{t(86)}, abs(v{t(82)}), abs(v{t(83)}), abs(v{t(84)})
    v_max_f32 v{t(86)}, abs(v{t(85)}), v{t(86)}
    """)
    allreduce(a, t(86), t(87), "v_max_f32")
    a(f"""
    v_lshrrev_b32 v{t(86)}, 23, v{t(86)}
    v_max_u32 v{t(86)}, 8, v{t(86)}
    v_min_u32 v{t(86)}, 250, v{t(86)}
    v_sub_u32 v{t(87)}, 261, v{t(86)}
    v_lshlrev_b32 v{t(87)}, 23, v{t(87)}
    v_subrev_u32 v{t(86)}, 7, v{t(86)}
    v_lshlrev_b32 v{t(86)}, 23, v{t(86)}
    v_readfirstlane_b32 s{S_ISC+c}, v{t(86)}
    v_cndmask_b32 v{t(82)}, v{t(82)}, v{t(84)}, s[84:85]
    v_cndmask_b32 v{t(83)}, v{t(83)}, v{t(85)}, s[84:85]
    v_mul_f32 v{t(82)}, v{t(82)}, v{t(87)}
    v_mul_f32 v{t(83)}, v{t(83)}, v{t(87)}
    v_lshrrev_b32 v{t(74)}, s77, v{AR}
    v_lshlrev_b32 v{t(74)}, 16, v{t(74)}
    v_lshrrev_b32 v{t(75)}, s77, v{AI}
    v_lshlrev_b32 v{t(75)}, 16, v{t(75)}
    v_mul_f32 v{t(74)}, v{t(72)}, v{t(74)}
    v_mul_f32 v{t(75)}, v{t(72)}, v{t(75)}
    v_mul_f32 v{t(74)}, {LOG2E}, v{t(74)}
    v_mul_f32 v{t(75)}, {INV2PI}, v{t(75)}
    """)
    A2, WV = t(74), t(75)
    direct(a, t(88), 81, A2, WV, t(100))
    direct(a, t(90), 82, A2, WV, t(104))
    direct(a, t(92), 79, A2, WV, t(108))
    direct(a, t(94), 80, A2, WV, t(112))
    cmul(a, t(96), t(82), t(92), t(116))
    cmul(a, t(98), t(96), t(94), t(118))
    cmul(a, t(92), t(94), t(94), t(120))
    def wr(j):
        a(f"""
        v_cvt_pk_f16_f32 v{t(122)}, v{t(88)}, v{t(89)}
        ds_write_b32 v30, v{t(122)} offset:{j*TROW}
        v_cvt_pk_f16_f32 v{t(123)}, v{t(96)}, -v{t(97)}
        ds_write_b32 v31, v{t(123)} offset:{2*j*TROW}
        v_cvt_pk_f16_f32 v{t(124)}, v{t(98)}, -v{t(99)}
        ds_write_b32 v31, v{t(124)} offset:{(2*j+1)*TROW}
        """)
    wr(0)
    for j in range(1, 8):
        cmul(a, t(88), t(88), t(90), t(116))
        cmul(a, t(96), t(96), t(92), t(118))
        cmul(a, t(98), t(98), t(92), t(120))
        wr(j)


def kgen_mfma(a, c):
    acc = T(124)
    for half in range(2):
        for s4 in range(4):
            s = 4 * half + s4
            r = T(72) + 8 * s4
            a(f"ds_read_b128 v[{r}:{r+3}], v32 offset:{64*s}")
            a(f"ds_read_b128 v[{r+4}:{r+7}], v33 offset:{64*s}")
        for s4 in range(4):
            s = 4 * half + s4
            r = T(72) + 8 * s4
            a(f"s_waitcnt lgkmcnt({6-2*s4})")
            cc = "0" if s == 0 else f"v[{acc}:{acc+3}]"
            a(f"v_mfma_f32_16x16x32_f16 v[{acc}:{acc+3}], v[{r}:{r+3}], v[{r+4}:{r+7}], {cc}")
    o = c * KCH
    p0, p1, p2 = T(116), T(117), T(118)
    a(f"""
    v_cvt_pk_f16_f32 v{p0}, v{acc}, v{acc+1}
    v_cvt_pk_f16_f32 v{p1}, v{acc+2}, v{acc+3}
    v_alignbit_b32 v{p2}, v{p1}, v{p0}, 16
    ds_write_b64 v34, v[{p0}:{p1}] offset:{o}
    ds_write_b16 v34, v{p0} offset:{o + KCOPY + 2}
    ds_write_b32 v34, v{p2} offset:{o + KCOPY + 4}
    ds_write_b16_d16_hi v35, v{p1} offset:{o + KCOPY + 8}
    ds_write_b32 v34, v{p0} offset:{o + 2*KCOPY + 4}
    ds_write_b32 v35, v{p1} offset:{o + 2*KCOPY + 8}
    ds_write_b16 v34, v{p0} offset:{o + 3*KCOPY + 6}
    ds_write_b32 v35, v{p2} offset:{o + 3*KCOPY + 8}
    ds_write_b16_d16_hi v35, v{p1} offset:{o + 3*KCOPY + 12}
    """)


XF, ACC1, WF = 64, 128, 32


def x_addr(a):
    a(f"""
    s_lshl_b32 s69, s4, 3
    s_add_u32 s69, s69, s3
    s_mul_i32 s69, s69, {XTS_}
    s_add_u32 s69, s69, {XN_OFF}
    """)


def x_issue(a, vm, s0, s1):
    for s in range(s0, s1):
        r = XF + s * 4
        if s % 4 == 0 or s == s0:
            a(f"s_add_u32 s70, s69, {(s//4)*4096}")
        a(f"buffer_load_dwordx4 v[{r}:{r+3}], v5, {WS}, s70 offen offset:{1024*(s%4)}{XSC}")
        vm.issue(f"X{s}")


def epi1(a):
    a(f"""
    s_lshl_b32 s78, s4, 3
    s_add_u32 s78, s78, s3
    s_mul_i32 s78, s78, {56*1024}
    s_add_u32 s78, s78, {H_OFF}
    s_lshr_b32 s79, s5, 1
    s_mul_i32 s79, s79, 7
    s_and_b32 s80, s5, 1
    s_mul_i32 s81, s80, 3
    s_add_u32 s81, s81, s79
    s_lshl_b32 s81, s81, 10
    s_add_u32 s81, s81, s78
    s_add_u32 s83, s79, 6
    s_lshl_b32 s83, s83, 10
    s_add_u32 s83, s83, s78
    s_lshl_b32 s80, s80, 3
    s_add_u32 s83, s83, s80
    v_mov_b32 v38, {NLOG2E}
    """)
    for j in range(7):
        g_ = ACC1 + j * 4
        u = ACC1 + (7 + j) * 4
        ob = 8 + 4 * ((j // 2) % 4) + 2 * (j & 1)
        for pr in range(2):
            g0, g1, u0, u1 = g_ + 2 * pr, g_ + 2 * pr + 1, u + 2 * pr, u + 2 * pr + 1
            a(f"""
            v_cvt_pk_bf16_f32 v32, v{g0}, v{g1}
            v_cvt_pk_bf16_f32 v33, v{u0}, v{u1}
            v_lshlrev_b32 v34, 16, v32
            v_and_b32 v35, 0xffff0000, v32
            v_mul_f32 v34, v38, v34
            v_mul_f32 v35, v38, v35
            v_exp_f32 v34, v34
            v_exp_f32 v35, v35
            v_lshlrev_b32 v36, 16, v33
            v_and_b32 v37, 0xffff0000, v33
            v_add_f32 v34, 1.0, v34
            v_add_f32 v35, 1.0, v35
            v_rcp_f32 v34, v34
            v_rcp_f32 v35, v35
            s_nop 0
            v_cvt_pk_bf16_f32 v32, v34, v35
            v_lshlrev_b32 v34, 16, v32
            v_and_b32 v35, 0xffff0000, v32
            v_mul_f32 v34, v34, v36
            v_mul_f32 v35, v35, v37
            v_cvt_pk_bf16_f32 v{ob+pr}, v34, v35
            """)
        sb = 8 + 4 * ((j // 2) % 4)
        if j == 6:
            a(f"buffer_store_dwordx2 v[{ob}:{ob+1}], v5, {WS}, s83 offen sc1")
        elif j & 1:
            a(f"buffer_store_dwordx4 v[{sb}:{sb+3}], v5, {WS}, s81 offen offset:{(j//2)*1024} sc1")


def gemm1(a, vm, pre_epi):
    a(f"""
    v_lshrrev_b32 v24, 1, v3
    v_lshlrev_b32 v24, 4, v24
    v_and_b32 v25, 1, v3
    v_lshl_add_u32 v24, v25, 2, v24
    v_lshrrev_b32 v25, 2, v2
    v_add_u32 v24, v24, v25
    v_mul_u32_u24 v24, 224, v24
    v_and_b32 v25, 3, v2
    v_lshl_add_u32 v24, v25, 3, v24
    v_add_u32 v25, {SLOT}, v24
    v_add_u32 v26, {2*SLOT}, v24
    v_add_u32 v27, {3*SLOT}, v24
    """)
    frs = [(b, hf, j, img) for b in range(8) for hf in range(2) for j in range(7) for img in range(2)]
    per_blk = 28
    def rd(i):
        b, hf, j, img = frs[i]
        w = WF + (i % 8) * 4
        va = 24 + (b % NSLOT)
        off = hf * 14336 + img * 7168 + 32 * j
        a(f"ds_read_b64_tr_b16 v[{w}:{w+1}], v{va} offset:{off}")
        a(f"ds_read_b64_tr_b16 v[{w+2}:{w+3}], v{va} offset:{off+1792}")
    PD = 6
    gp = Asm(); wdt_loads(gp, VM())
    ggroups, cur = [], []
    for it in gp.items:
        if isinstance(it, str) and it == "; GROUP":
            ggroups.append(cur); cur = []
        else:
            cur.append(it)
    wp = Asm(); w_prefetch(wp, 0, 4)
    wgroups, cur = [], []
    for it in wp.items:
        if isinstance(it, str) and it == "; GROUP":
            wgroups.append(cur); cur = []
        else:
            cur.append(it)
    for i, (b, hf, j, img) in enumerate(frs):
        s = 2 * b + hf
        if i % per_blk == 0:
            vm.wait(a, f"D{min(b + 1, 7)}")
            a("s_barrier")
            stamp(a, 8 + b)
            if b == 4:
                def sigW(a):
                    cnt_addr(a, 76, 2, 4, CNT_W)
                    atomic_inc(a, 76, 10, 11)
                wave0(a, "LsigW_skip", sigW)
            if b == 6:
                a(f"v_lshlrev_b32 v10, 8, v2\n v_add_u32 v10, {CNT_W * 256}, v10")
                poll(a, 10, 16, 11, "LwaitW")
            if 1 <= b and b + 3 < 8:
                dma_block(a, vm, b + 3)
            if b == 0:
                for k in range(PD):
                    rd(k)
        if j == 0 and img == 0:
            vm.wait(a, f"X{s}")
        out = min(PD - 1, len(frs) - 1 - i)
        a(f"s_waitcnt lgkmcnt({2*out})")
        w = WF + (i % 8) * 4
        xr = XF + s * 4
        r = ACC1 + (img * 7 + j) * 4
        cc = "0" if s == 0 else f"v[{r}:{r+3}]"
        a(f"v_mfma_f32_16x16x32_bf16 v[{r}:{r+3}], v[{w}:{w+3}], v[{xr}:{xr+3}], {cc}")
        if i + PD < len(frs):
            rd(i + PD)
        if b == 0 and i % 3 == 2 and ggroups:
            a.items += ggroups.pop(0)
            vm.issue("wg")
        if b == 1 and i % per_blk == per_blk - 1:
            wdt_store(a, vm)
        if b >= 6 and i % 3 == 2 and wgroups:
            a.items += wgroups.pop(0)
            vm.issue("WP")
    for g in wgroups:
        a.items += g
        vm.issue("WP")
    stamp(a, 16)
    pre_epi(a, vm)
    epi1(a)


CACC = 32
CFRL = [192]


def xcol_issue(a, vm):
    a(f"""
    s_lshl_b32 s77, s67, 1
    s_lshr_b32 s78, s77, 5
    s_lshl_b32 s78, s78, 10
    s_lshr_b32 s79, s77, 3
    s_and_b32 s79, s79, 3
    s_lshl_b32 s79, s79, 8
    s_add_u32 s78, s78, s79
    s_and_b32 s79, s77, 7
    s_lshl_b32 s79, s79, 1
    s_add_u32 s78, s78, s79
    s_mul_i32 s79, s3, {16*XTS_}
    s_add_u32 s78, s78, s79
    s_add_u32 s78, s78, {XN_OFF}
    v_mul_u32_u24 v6, {XTS_}, v3
    v_lshl_add_u32 v6, v2, 4, v6
    s_add_u32 s79, s78, {4*XTS_}
    s_add_u32 s80, s78, {8*XTS_}
    s_add_u32 s81, s78, {12*XTS_}
    buffer_load_dword v28, v6, {WS}, s78 offen sc1
    buffer_load_dword v29, v6, {WS}, s79 offen sc1
    buffer_load_dword v30, v6, {WS}, s80 offen sc1
    buffer_load_dword v31, v6, {WS}, s81 offen sc1
    """)
    vm.issue("XT", 4)


def xcol_stage(a, vm):
    vm.wait(a, "XT")
    a(f"""
    s_lshl_b32 s77, s3, 9
    s_sub_u32 s77, {XR + 4094}, s77
    v_lshlrev_b32 v6, 1, v1
    v_sub_u32 v6, s77, v6
    v_subrev_u32 v6, 384, v6
    """)
    for k in range(4):
        a(f"""
        v_lshlrev_b32 v7, 16, v{28+k}
        v_and_b32 v8, 0xffff0000, v{28+k}
        v_cvt_pk_f16_f32 v7, v7, v8
        ds_write_b16 v6, v7 offset:{384 - 128*k}
        ds_write_b16_d16_hi v6, v7 offset:{384 - 128*k + XRW}
        """)
    a(f"""
    v_lshlrev_b32 v6, 2, v1
    v_add_u32 v6, {XR + 4096}, v6
    v_mov_b32 v7, 0
    ds_write_b32 v6, v7
    ds_write_b32 v6, v7 offset:256
    ds_write_b32 v6, v7 offset:{XRW}
    ds_write_b32 v6, v7 offset:{XRW + 256}
    """)


def conv_setup(a, c):
    a(f"""
    v_sub_u32 v23, 3, v2
    v_and_b32 v23, 3, v23
    v_mul_u32_u24 v20, {KCOPY}, v23
    v_add_u32 v23, v23, v2
    v_lshlrev_b32 v24, 3, v3
    v_sub_u32 v23, v23, v24
    v_add_u32 v23, 25, v23                ; P0
    v_lshl_add_u32 v20, v23, 1, v20
    s_lshl_b32 s87, s3, 6
    s_add_u32 s87, s87, {KCP + c * KCH}
    v_add_u32 v20, s87, v20
    s_lshl_b32 s88, s3, 5
    v_add_u32 v23, s88, v23               ; P0 + 32r
    v_add_u32 v24, 4, v23
    v_lshrrev_b32 v24, 6, v24
    v_lshl_add_u32 v21, v24, 3, v20
    v_add_u32 v21, 8, v21                 ; B2
    v_lshrrev_b32 v23, 6, v23
    v_lshl_add_u32 v20, v23, 3, v20       ; B1
    v_lshlrev_b32 v22, 5, v2
    v_lshl_add_u32 v22, v3, 4, v22
    s_lshl_b32 s88, s3, 6
    s_add_u32 s88, s88, {XR + c * XRW + 528}
    v_sub_u32 v22, s88, v22
    """)


def conv_mfma(a):
    fb = CFRL[0]
    for q in range(8):
        a(f"ds_read_b64 v[{fb+4*q}:{fb+4*q+1}], v20 offset:{544*q}")
        a(f"ds_read_b64 v[{fb+4*q+2}:{fb+4*q+3}], v21 offset:{544*q}")
        a(f"ds_read_b128 v[{fb+32+4*q}:{fb+32+4*q+3}], v22 offset:{64*(56-8*q)}")
    done = set()
    k = 0
    for lvl in range(8):
        a(f"s_waitcnt lgkmcnt({min(15, 3*(7-lvl))})")
        for i in range(8):
            for q in range(i + 1):
                p = i - q
                if max(p, q) == lvl:
                    first = not any((i, q2) in done for q2 in range(i + 1))
                    cc = "0" if first else f"v[{CACC+4*i}:{CACC+4*i+3}]"
                    a(f"v_mfma_f32_16x16x32_f16 v[{CACC+4*i}:{CACC+4*i+3}], v[{fb+4*q}:{fb+4*q+3}], v[{fb+32+4*p}:{fb+32+4*p+3}], {cc}")
                    done.add((i, q))


def cex_addr(c, i):
    if c == 0:
        return (TAB, 7168, 1024 * i) if i < 7 else (KCP + KCH, 1024, 0)
    return (0, 8192, 1024 * i)


def conv_finish(a, c, post_read=None):
    if c == 0:
        a(f"""
        s_mul_i32 s84, s3, 7168
        s_add_u32 s84, s84, {TAB}
        v_add_u32 v6, s84, v5
        s_lshl_b32 s84, s3, 10
        s_add_u32 s84, s84, {KCP + KCH}
        v_add_u32 v7, s84, v5
        """)
        for i in range(7):
            a(f"ds_write_b128 v6, v[{CACC+4*i}:{CACC+3+4*i}] offset:{1024*i}")
        a(f"ds_write_b128 v7, v[{CACC+28}:{CACC+31}]")
        a(f"""
        s_lshl_b32 s84, s3, 10
        s_add_u32 s84, s84, {TAB}
        s_mov_b32 s85, 7168
        s_cmp_eq_u32 s3, 7
        s_cselect_b32 s84, {KCP + KCH}, s84
        s_cselect_b32 s85, 1024, s85
        """)
    else:
        a(f"""
        s_lshl_b32 s84, s3, 13
        v_add_u32 v6, s84, v5
        """)
        for i in range(8):
            a(f"ds_write_b128 v6, v[{CACC+4*i}:{CACC+3+4*i}] offset:{1024*i}")
        a("s_lshl_b32 s84, s3, 10\n s_mov_b32 s85, 8192")
    a(f"""
    v_add_u32 v7, s84, v5
    v_lshlrev_b32 v14, 4, v2
    v_lshl_add_u32 v14, v3, 2, v14
    s_lshl_b32 s86, s3, 8
    v_add_u32 v14, s86, v14               ; t0 = 256 w + 16a' + 4q
    v_lshlrev_b32 v15, 1, v14
    v_sub_u32 v16, {XR + c * XRW + 4088}, v15
    ds_read_b64 v[24:25], v16
    s_lshl_b32 s79, s67, 1
    s_add_u32 s79, s79, {c}
    s_lshl_b32 s80, s79, 12
    s_add_u32 s88, s80, {S_OFF}
    {"s_lshl_b32 s86, s89, 16" if c == 0 else "s_and_b32 s86, s89, 0xffff0000"}
    s_waitcnt lgkmcnt(0)
    s_barrier
    """)
    for k in range(8):
        r = CFRL[0] + 4 * k
        a(f"ds_read_b128 v[{r}:{r+3}], v7")
        if k < 7:
            a("v_add_u32 v7, s85, v7")
    a("s_waitcnt lgkmcnt(0)")
    if post_read:
        post_read(a)
    r = CFRL[0]
    for e in range(4):
        a(f"""
        v_add_f32 v{r+e}, v{r+e}, v{r+4+e}
        v_add_f32 v{r+8+e}, v{r+8+e}, v{r+12+e}
        v_add_f32 v{r+16+e}, v{r+16+e}, v{r+20+e}
        v_add_f32 v{r+24+e}, v{r+24+e}, v{r+28+e}
        v_add_f32 v{r+e}, v{r+e}, v{r+8+e}
        v_add_f32 v{r+16+e}, v{r+16+e}, v{r+24+e}
        v_add_f32 v{r+e}, v{r+e}, v{r+16+e}
        v_mul_f32 v{r+e}, s{S_ISC+c}, v{r+e}
        """)
    x0, x1 = 24, 25
    a(f"""
    v_cvt_f32_f16 v20, v{x1}
    v_lshrrev_b32 v21, 16, v{x1}
    v_cvt_f32_f16 v21, v21
    v_cvt_f32_f16 v22, v{x0}
    v_lshrrev_b32 v23, 16, v{x0}
    v_cvt_f32_f16 v23, v23
    v_mul_f32 v21, s86, v21
    v_mul_f32 v20, s86, v20
    v_mul_f32 v23, s86, v23
    v_mul_f32 v22, s86, v22
    v_cvt_pk_bf16_f32 v24, v21, v20
    v_cvt_pk_bf16_f32 v25, v23, v22
    v_cvt_pk_bf16_f32 v26, v{r}, v{r+1}
    v_cvt_pk_bf16_f32 v27, v{r+2}, v{r+3}
    v_lshlrev_b32 v20, 16, v24
    v_and_b32 v21, 0xffff0000, v24
    v_lshlrev_b32 v22, 16, v25
    v_and_b32 v23, 0xffff0000, v25
    v_lshlrev_b32 v28, 16, v26
    v_and_b32 v29, 0xffff0000, v26
    v_lshlrev_b32 v30, 16, v27
    v_and_b32 v31, 0xffff0000, v27
    v_add_f32 v20, v20, v28
    v_add_f32 v21, v21, v29
    v_add_f32 v22, v22, v30
    v_add_f32 v23, v23, v31
    v_cvt_pk_bf16_f32 v12, v20, v21
    v_cvt_pk_bf16_f32 v13, v22, v23
    buffer_store_dwordx2 v[12:13], v15, {WS}, s88 offen sc1
    """)


def WREG(j): return 192 + 16 * j if j < 4 else 128 + 16 * (j - 4)
HB = [32, 48, 176]
ACC2 = 64


def gemm2_map(a):
    a(f"""
    s_and_b32 s96, s2, 7
    s_lshr_b32 s97, s2, 3
    s_lshl_b32 s96, s96, 2
    s_and_b32 s98, s97, 3
    s_add_u32 s{S_TT}, s96, s98
    s_lshr_b32 s{S_DD}, s97, 2
    """)


def w_prefetch(a, j0, j1):
    a(f"""
    s_mul_i32 s72, s3, 7
    s_add_u32 s72, s72, {j0}
    s_lshl_b32 s72, s72, 5
    s_lshl_b32 s73, s{S_DD}, 2
    s_add_u32 s72, s72, s73
    s_lshl_b32 s72, s72, 10
    s_add_u32 s72, s72, {WDT_OFF}
    """)
    for st in range(j0, j1):
        r = WREG(st)
        for aa in range(4):
            a(f"buffer_load_dwordx4 v[{r+4*aa}:{r+4*aa+3}], v5, {WS}, s72 offen offset:{1024*aa} sc1")
            if aa == 3:
                a("s_add_u32 s72, s72, 32768")


def gemm2(a):
    vm = VM()
    a(f"""
    s_mul_i32 s76, s3, 7
    s_lshl_b32 s77, s{S_TT}, 2
    s_mul_i32 s77, s77, 56
    s_add_u32 s77, s77, s76
    s_lshl_b32 s77, s77, 10
    s_add_u32 s80, s77, {H_OFF}
    s_add_u32 s81, s80, {56*1024}
    s_add_u32 s82, s80, {2*56*1024}
    s_add_u32 s83, s80, {3*56*1024}
    """)
    def h_issue(j):
        fb = HB[j % 3]
        for b in range(4):
            a(f"buffer_load_dwordx4 v[{fb+4*b}:{fb+4*b+3}], v5, {WS}, s{80+b} offen offset:{1024*(j%4)} sc1")
            if j % 4 == 3:
                a(f"s_add_u32 s{80+b}, s{80+b}, 4096")
        vm.issue(f"H{j}", 4)
    for j in range(3):
        h_issue(j)
    for j in range(7):
        vm.wait(a, f"H{j}")
        fb = HB[j % 3]
        wb = WREG(j)
        for aa in range(4):
            for b in range(4):
                r = ACC2 + (aa * 4 + b) * 4
                cc = "0" if j == 0 else f"v[{r}:{r+3}]"
                a(f"v_mfma_f32_16x16x32_bf16 v[{r}:{r+3}], v[{wb+4*aa}:{wb+4*aa+3}], v[{fb+4*b}:{fb+4*b+3}], {cc}")
        if j + 3 < 7:
            h_issue(j + 3)
        if j == 3:
            a(f"""
            s_lshr_b32 s76, s3, 1
            s_lshl_b32 s77, s3, 1
            s_and_b32 s77, s77, 3
            s_lshl_b32 s78, s{S_TT}, 6
            s_lshl_b32 s79, s77, 4
            s_add_u32 s78, s78, s79
            s_lshl_b32 s78, s78, 10
            s_lshl_b32 s79, s{S_DD}, 7
            s_add_u32 s78, s78, s79
            s_lshl_b32 s79, s76, 5
            s_add_u32 s78, s78, s79
            s_add_u32 s79, s78, 16384
            v_lshlrev_b32 v7, 10, v2
            v_lshl_add_u32 v7, v3, 3, v7
            buffer_load_dwordx2 v[10:11], v7, s[{SRD_X}:{SRD_X+3}], s78 offen
            buffer_load_dwordx2 v[12:13], v7, s[{SRD_X}:{SRD_X+3}], s79 offen
            s_lshl_b32 s86, s{S_DD}, 8
            s_add_u32 s86, s86, {CNT_C * 256}
            v_mov_b32 v20, s86
            buffer_load_dword v21, v20, {WS}, 0 offen sc1
            """)
            vm.issue("misc", 3)
    a(f"""
    s_waitcnt vmcnt(0)
    v_cmp_gt_u32 vcc, 32, v21
    s_cbranch_vccz LwaitC_ok2
    """)
    poll(a, 20, 32, 21, "LwaitC")
    a(f"""
LwaitC_ok2:
    v_lshrrev_b32 v8, 4, v0
    v_and_b32 v9, 15, v0
    v_lshlrev_b32 v14, 12, v8
    v_lshl_add_u32 v14, v9, 3, v14
    s_lshl_b32 s80, s{S_DD}, 18
    s_lshl_b32 s81, s{S_TT}, 7
    s_add_u32 s80, s80, s81
    s_add_u32 s80, s80, {S_OFF}
    s_add_u32 s81, s80, {32*4096}
    buffer_load_dwordx2 v[16:17], v14, {WS}, s80 offen sc1
    buffer_load_dwordx2 v[18:19], v14, {WS}, s81 offen sc1
    v_mul_u32_u24 v15, {SROW}, v8
    v_lshl_add_u32 v15, v9, 3, v15
    v_add_u32 v15, {STILE}, v15
    s_lshl_b32 s80, s3, 14
    s_add_u32 s80, s80, {G2P}
    v_add_u32 v6, s80, v5
    """)
    for i in range(16):
        a(f"ds_write_b128 v6, v[{ACC2+4*i}:{ACC2+4*i+3}] offset:{1024*i}")


def final(a, waitC):
    a(f"""
    s_waitcnt vmcnt(0)
    ds_write_b64 v15, v[16:17]
    ds_write_b64 v15, v[18:19] offset:{32*SROW}
    s_waitcnt lgkmcnt(0)
    s_barrier
    s_lshl_b32 s80, s3, 11
    s_add_u32 s80, s80, {G2P}
    v_add_u32 v20, s80, v5
    v_add_u32 v19, 65536, v20
    """)
    for i in range(2):
        for kq in range(8):
            r = 96 + (i * 8 + kq) * 4
            a(f"ds_read_b128 v[{r}:{r+3}], v{20 if kq < 4 else 19} offset:{(kq%4)*16384 + i*1024}")
    a(f"""
    v_lshlrev_b32 v21, 2, v3
    s_lshl_b32 s80, s76, 4
    v_add_u32 v21, s80, v21
    v_mul_u32_u24 v21, {SROW}, v21
    v_lshl_add_u32 v21, v2, 1, v21
    s_lshl_b32 s80, s77, 5
    s_add_u32 s80, s80, {STILE}
    v_add_u32 v21, s80, v21
    """)
    for i in range(2):
        for e in range(4):
            a(f"ds_read_u16 v{64+4*i+e}, v21 offset:{e*SROW + 32*i}")
    a(f"s_mov_b32 s82, {NLOG2E}\n s_waitcnt lgkmcnt(0)")
    for i in range(2):
        b0 = 96 + i * 32
        for e in range(4):
            a(f"""
            v_add_f32 v{b0+e}, v{b0+e}, v{b0+4+e}
            v_add_f32 v{b0+8+e}, v{b0+8+e}, v{b0+12+e}
            v_add_f32 v{b0+16+e}, v{b0+16+e}, v{b0+20+e}
            v_add_f32 v{b0+24+e}, v{b0+24+e}, v{b0+28+e}
            v_add_f32 v{b0+e}, v{b0+e}, v{b0+8+e}
            v_add_f32 v{b0+16+e}, v{b0+16+e}, v{b0+24+e}
            v_add_f32 v{b0+e}, v{b0+e}, v{b0+16+e}
            """)
        for pr in range(2):
            o0, o1 = b0 + 2 * pr, b0 + 2 * pr + 1
            s0, s1 = 64 + 4 * i + 2 * pr, 64 + 4 * i + 2 * pr + 1
            xx = 10 + 2 * i + pr
            a(f"""
            v_cvt_pk_bf16_f32 v22, v{o0}, v{o1}
            v_lshlrev_b32 v23, 16, v22
            v_and_b32 v24, 0xffff0000, v22
            v_mul_f32 v25, s82, v23
            v_mul_f32 v26, s82, v24
            v_exp_f32 v25, v25
            v_exp_f32 v26, v26
            v_lshlrev_b32 v{s0}, 16, v{s0}
            v_lshlrev_b32 v{s1}, 16, v{s1}
            v_add_f32 v25, 1.0, v25
            v_add_f32 v26, 1.0, v26
            v_rcp_f32 v25, v25
            v_rcp_f32 v26, v26
            s_nop 0
            v_mul_f32 v25, v25, v23
            v_mul_f32 v26, v26, v24
            v_cvt_pk_bf16_f32 v22, v25, v26
            v_lshlrev_b32 v23, 16, v22
            v_and_b32 v24, 0xffff0000, v22
            v_mul_f32 v23, v23, v{s0}
            v_mul_f32 v24, v24, v{s1}
            v_cvt_pk_bf16_f32 v22, v23, v24
            v_lshlrev_b32 v23, 16, v22
            v_and_b32 v24, 0xffff0000, v22
            v_lshlrev_b32 v25, 16, v{xx}
            v_and_b32 v26, 0xffff0000, v{xx}
            v_add_f32 v23, v23, v25
            v_add_f32 v24, v24, v26
            v_cvt_pk_bf16_f32 v{28+2*i+pr}, v23, v24
            """)
        a(f"buffer_store_dwordx2 v[{28+2*i}:{29+2*i}], v7, s[{SRD_OUT}:{SRD_OUT+3}], s{78+i} offen")


def cnt_addr(a, sreg, idx_expr_sreg, shift, base):
    a(f"""
    s_lshr_b32 s{sreg}, s{idx_expr_sreg}, {shift}
    s_lshl_b32 s{sreg}, s{sreg}, 8
    s_add_u32 s{sreg}, s{sreg}, {base * 256}
    """)


def build():
    a = Asm()
    vm = VM()
    prologue(a, vm)
    stamp(a, 1)
    ln(a, vm)
    stamp(a, 2)
    gemm1_setup(a)
    wdt_issue(a, vm)
    kgen_setup(a)
    a("s_waitcnt vmcnt(0)")
    a("v_readfirstlane_b32 s89, v61\n v_readfirstlane_b32 s74, v60")
    a("s_barrier")
    stamp(a, 3)
    def sigA(a):
        a(f"""
        v_readfirstlane_b32 s76, v8
        s_cmp_lg_u32 s76, 0
        s_cbranch_scc1 LsigA_go
        v_mov_b32 v10, 0
        """)
        poll(a, 10, 1, 11, "LsigA_poll", SRD_DBG)
        a("LsigA_go:")
        cnt_addr(a, 76, 2, 4, CNT_A)
        atomic_inc(a, 76, 10, 11)
    wave0(a, "LsigA_skip", sigA)
    def side0(x):
        dma_block(x, vm, 0)
        dma_block(x, vm, 1)
    merged(a, lambda x: kgen_tables(x, 0), side0, 8, start=2)
    a("s_waitcnt lgkmcnt(0)\n s_barrier")
    stamp(a, 4)
    kpads(a, 0)
    kgen_mfma(a, 0)
    def waitA(a):
        a(f"v_lshlrev_b32 v10, 8, v2\n v_add_u32 v10, {CNT_A * 256}, v10")
        poll(a, 10, 16, 11, "LwaitA")
    a("s_waitcnt lgkmcnt(0)")
    wave0(a, "LwaitA_skip", waitA)
    a("s_barrier")
    stamp(a, 5)
    xcol_issue(a, vm)
    x_addr(a)
    x_issue(a, vm, 0, 4)
    conv_setup(a, 0)
    xcol_stage(a, vm)
    a("s_waitcnt lgkmcnt(0)\n s_barrier")
    stamp(a, 6)
    merged(a, conv_mfma, lambda x: x_issue(x, vm, 4, 12), 4, start=24)
    stamp(a, 7)
    def post0(a):
        a("s_barrier")
        dma_block(a, vm, 2)
        dma_block(a, vm, 3)
        x_issue(a, vm, 12, 16)
    conv_finish(a, 0, post0)
    stamp(a, 17)
    gemm2_map(a)
    def pre_epi(a, vm_):
        par_loads(a, vm_, 1)
    gemm1(a, vm, pre_epi)
    stamp(a, 20)
    a("s_barrier")
    TOFF[0] = -8
    CFRL[0] = 64
    kgen_setup(a)
    a("s_waitcnt vmcnt(4)")
    stamp(a, 21)
    merged(a, lambda x: kgen_tables(x, 1), lambda x: w_prefetch(x, 4, 7), 12, start=2)
    a("s_waitcnt vmcnt(12) lgkmcnt(0)\n s_barrier")
    def sigB(a):
        cnt_addr(a, 76, 4, 0, CNT_B)
        atomic_inc(a, 76, 10, 11)
    wave0(a, "LsigB_skip", sigB)
    stamp(a, 22)
    kpads(a, 1)
    kgen_mfma(a, 1)
    conv_setup(a, 1)
    a("s_waitcnt lgkmcnt(0)\n s_barrier")
    stamp(a, 23)
    if DEBUG:
        a(f"""
        v_lshlrev_b32 v6, 4, v0
        v_add_u32 v7, {KCP + KCH}, v6
        ds_read_b128 v[8:11], v7
        s_lshl_b32 s76, s2, 13
        s_add_u32 s76, s76, {DBG_OFF}
        s_waitcnt lgkmcnt(0)
        buffer_store_dwordx4 v[8:11], v6, {WS}, s76 offen
        v_mov_b32 v8, s91
        v_mov_b32 v9, s74
        v_mov_b32 v10, v48
        v_mov_b32 v11, v53
        s_add_u32 s76, s76, 0
        v_add_u32 v6, 0x700000, v6
        buffer_store_dwordx4 v[8:11], v6, {WS}, s76 offen
        """)
    conv_mfma(a)
    conv_finish(a, 1)
    stamp(a, 24)
    cnt_addr(a, 76, S_TT, 1, CNT_B)
    a("v_mov_b32 v10, s76")
    poll(a, 10, 16, 11, "LwaitB")
    a(f"""
    v_mov_b32 v10, {MISC + 32}
    v_mov_b32 v11, 1
    s_mov_b64 exec, 1
    ds_add_rtn_u32 v12, v10, v11
    s_waitcnt lgkmcnt(0)
    v_readfirstlane_b32 s76, v12
    s_mov_b64 exec, -1
    s_cmp_lg_u32 s76, 7
    s_cbranch_scc1 LsigC_skip
    """)
    cnt_addr(a, 76, 67, 5, CNT_C)
    atomic_inc(a, 76, 10, 11)
    a("LsigC_skip:\n s_barrier")
    stamp(a, 25)
    gemm2(a)
    stamp(a, 27)
    def waitC(a):
        cnt_addr(a, 86, S_DD, 0, CNT_C)
        a("v_mov_b32 v20, s86")
        poll(a, 20, 32, 21, "LwaitC")
    final(a, waitC)
    stamp(a, 30)
    a("s_waitcnt vmcnt(0)")
    stamp(a, 31)
    stamp_flush(a)
    a("Lexit:\n s_endpgm")
    a.finalize()
    txt = f"; @launch grid=(256,1,1) block=(512,1,1) lds={LDS_BYTES}\n"
    txt += '.amdgcn_target "amdgcn-amd-amdhsa--gfx950"\n.text\n'
    txt += f".globl {KNAME}\n.p2align 8\n.type {KNAME},@function\n" + a.text()
    txt += f""".section .rodata,"a"
.p2align 6
.amdhsa_kernel {KNAME}
  .amdhsa_next_free_vgpr 256
  .amdhsa_next_free_sgpr 102
  .amdhsa_accum_offset 256
  .amdhsa_group_segment_fixed_size 0
  .amdhsa_kernarg_size 128
  .amdhsa_user_sgpr_count 2
  .amdhsa_user_sgpr_kernarg_segment_ptr 1
  .amdhsa_system_sgpr_workgroup_id_x 1
.end_amdhsa_kernel
"""
    return txt


if __name__ == "__main__":
    for o in sys.argv[2:]:
        if o == "nostamp": STAMPS = False
        if o == "debug": DEBUG = True
        if o == "xplain": XSC = ""
        if o == "gplain": GSC = ""
    open(sys.argv[1], "w").write(build())
```
